```python
import torch

def _softmax(x, axis=-1):
    return torch.softmax(x, dim=axis)
def _gelu(x):
    return torch.nn.functional.gelu(x, approximate="tanh")
def _silu(x):
    return torch.nn.functional.silu(x)
def _sigmoid(x):
    return torch.sigmoid(x)
def _layernorm(x, axis=-1, eps=1e-5):
    m = x.mean(dim=axis, keepdim=True)
    v = x.var(dim=axis, keepdim=True, unbiased=False)
    return (x - m) / torch.sqrt(v + eps)
def _scatter_add(tgt, idx, src, axis=0):
    return tgt.clone().index_add_(axis, idx, src)
def _segment_sum(src, seg, n):
    out = torch.zeros((n,) + src.shape[1:], dtype=src.dtype)
    return out.index_add_(0, seg, src)
def _pad(x, pw):
    flat = tuple(v for pair in reversed(pw) for v in pair)
    return torch.nn.functional.pad(x, flat)

kernel_name = 'standalone__dense_activation_relu__prompt'

def setup_inputs():

    _w = (lambda a: (lambda t: t.to(torch.bfloat16) if t.is_floating_point() else t)(torch.as_tensor(a)))
    B, S, D, Dff = 1, 2048, 640, 1536
    return {
        "x": _w((lambda *s: torch.randn(*s, dtype=torch.bfloat16) * 0.05)(B, S, D)),
        "w1": _w((lambda *s: torch.randn(*s, dtype=torch.bfloat16) * 0.05)(D, Dff)),
        "w2": _w((lambda *s: torch.randn(*s, dtype=torch.bfloat16) * 0.05)(Dff, D)),
    }

def reference(x, w1, w2):
    h = torch.einsum("bsd,df->bsf", x, w1)
    zero = torch.zeros_like(h)
    h = torch.maximum(h, zero)
    return torch.einsum("bsf,fd->bsd", h, w2)
```

```python
import sys, argparse

KN = "standalone__dense_activation_relu__prompt_kernel"
HDR = """; Kernarg layout for this problem (48 bytes, ptrs only, base s[0:1]):
;   offset   0: d_in[0] x  shape=(1, 2048, 640) dtype=bfloat16 strides=(2621440, 1280, 2) contiguous=True
;   offset   8: d_in[1] w1  shape=(640, 1536) dtype=bfloat16 strides=(3072, 2) contiguous=True
;   offset  16: d_in[2] w2  shape=(1536, 640) dtype=bfloat16 strides=(1280, 2) contiguous=True
"""
H_OFF = 0
W2P_OFF = 8 << 20
FW_OFF = 12 << 20
FH_OFF = FW_OFF + 65536
PROF_OFF = 0x8000000
WS_USED = 0x10000000

class G:
    def __init__(s, cfg):
        s.L = []; s.vm = []; s.cfg = cfg; s.nstamp = 0; s.lab = 0
    def e(s, t): s.L.append("    " + t)
    def label(s, n): s.L.append(n + ":")
    def c(s, t): s.L.append("    ; " + t)
    def vmem(s, t, tag): s.e(t); s.vm.append(tag)
    def wait_vm(s, tag, extra=""):
        idx = max(i for i, t in enumerate(s.vm) if t == tag)
        n = len(s.vm) - 1 - idx
        assert n <= 63, n
        s.e(f"s_waitcnt vmcnt({n}){extra}")
        s.vm = s.vm[idx + 1:]
    def wait_vm0(s):
        s.e("s_waitcnt vmcnt(0)"); s.vm = []
    def stamp(s):
        if s.cfg.prof:
            r = 64 + 2 * s.nstamp; assert r + 1 < 100
            s.e(f"s_memtime s[{r}:{r+1}]"); s.nstamp += 1

SX, SW1, SW2, SOUT, SDBG, SWS = "s[16:19]", "s[20:23]", "s[24:27]", "s[28:31]", "s[32:35]", "s[36:39]"
sW, sB1, sJ1, sB2, sJ2, sL = "s40", "s41", "s42", "s43", "s44", "s45"
sXB, sWB, sKS, sT0, sT1, sT2, sM0 = "s46", "s47", "s48", "s49", "s50", "s51", "s52"
sHST, sRHO, sCNT, sP0A, sP0B, sW2B, sOUT = "s53", "s54", "s55", "s56", "s57", "s58", "s59"
vL = "v1"
vX = ["v2", "v3"]; vW = ["v4", "v5", "v6"]; vP0 = "v7"
vRX = [[8, 9, 10, 11], [12, 13, 14, 15]]; vRW = [[16, 17], [18, 19]]
vL16, vHST, vOUT, vPW, vT0, vT1 = "v20", "v21", "v22", "v23", "v24", "v25"
vRDW = ["v26", "v27", "v28"]; vRDR, vP0R, vFL = "v29", "v30", "v31"
ACC1 = 32; FX = 80; FW = 96; HB = 144; ACC2 = 192; P0F = 232
vL16B = "v240"; vH = ["v241", "v242", "v243", "v244"]; vT2 = "v245"; POLL = 246; NON = 248; vPH = "v250"
PR = 32

def vr(a, n): return f"v[{a}:{a+n-1}]"

def gen(cfg):
    g = G(cfg); e = g.e
    NS = 10; R = 4
    LDS_P0 = R * 32768
    lds_bytes = LDS_P0 + 8192
    e("s_cmp_ge_u32 s2, 256"); e("s_cbranch_scc1 Lend")
    g.stamp()
    if cfg.prof: e("s_memrealtime s[60:61]")
    e("s_load_dwordx4 s[4:7], s[0:1], 0"); e("s_load_dwordx4 s[8:11], s[0:1], 16"); e("s_load_dwordx4 s[12:15], s[0:1], 32")
    e("v_lshrrev_b32 v24, 6, v0"); e(f"v_and_b32 {vL}, 63, v0"); e("s_nop 0"); e(f"v_readfirstlane_b32 {sW}, v24")
    e(f"s_and_b32 {sT0}, s2, 7"); e(f"s_lshr_b32 {sT1}, s2, 3")
    def part(kind, sb, sj):
        if kind == "A":
            e(f"s_lshl_b32 {sb}, {sT0}, 2"); e(f"s_lshr_b32 {sT2}, {sT1}, 3"); e(f"s_add_u32 {sb}, {sb}, {sT2}"); e(f"s_and_b32 {sj}, {sT1}, 7")
        else:
            e(f"s_lshr_b32 {sb}, {sT0}, 1"); e(f"s_lshl_b32 {sb}, {sb}, 3"); e(f"s_lshr_b32 {sT2}, {sT1}, 2"); e(f"s_add_u32 {sb}, {sb}, {sT2}")
            e(f"s_and_b32 {sj}, {sT0}, 1"); e(f"s_lshl_b32 {sj}, {sj}, 2"); e(f"s_and_b32 {sT2}, {sT1}, 3"); e(f"s_add_u32 {sj}, {sj}, {sT2}")
    part(cfg.p1, sB1, sJ1); part(cfg.p2, sB2, sJ2)
    e(f"s_lshl_b32 {sL}, {sB1}, 3"); e(f"s_add_u32 {sL}, {sL}, {sJ1}")
    e(f"s_mul_i32 {sXB}, {sB1}, {64*1280}"); e(f"s_mul_i32 {sWB}, {sJ1}, 384")
    e(f"s_lshl_b32 {sM0}, {sW}, 13")
    if cfg.r1 > 1:
        e(f"s_add_u32 {sKS}, {sB1}, {sJ1}")
        if cfg.r1 == 2: e(f"s_and_b32 {sKS}, {sKS}, 1"); e(f"s_mul_i32 {sKS}, {sKS}, 5")
        elif cfg.r1 == 4: e(f"s_and_b32 {sKS}, {sKS}, 3"); e(f"s_mul_i32 {sKS}, {sKS}, 5"); e(f"s_lshr_b32 {sKS}, {sKS}, 1")
        elif cfg.r1 == 3:
            e(f"s_mul_i32 {sT2}, {sKS}, 86"); e(f"s_lshr_b32 {sT2}, {sT2}, 8"); e(f"s_mul_i32 {sT2}, {sT2}, 3"); e(f"s_sub_u32 {sKS}, {sKS}, {sT2}")
            e(f"s_mul_i32 {sKS}, {sKS}, 10"); e(f"s_mul_i32 {sKS}, {sKS}, 86"); e(f"s_lshr_b32 {sKS}, {sKS}, 8")
    else:
        e(f"s_mov_b32 {sKS}, 0")
    e(f"v_lshrrev_b32 {vT0}, 3, {vL}"); e(f"s_lshl_b32 {sT2}, {sW}, 4"); e(f"v_add_u32 {vT0}, {sT2}, {vT0}")
    e(f"v_mul_u32_u24 {vT0}, 1280, {vT0}")
    e(f"v_and_b32 {vT1}, 7, {vL}"); e(f"v_lshrrev_b32 {vT2}, 4, {vL}"); e(f"v_xor_b32 {vT1}, {vT1}, {vT2}")
    e(f"v_lshl_add_u32 {vX[0]}, {vT1}, 4, {vT0}")
    e(f"v_xor_b32 {vT1}, 4, {vT1}"); e(f"v_lshl_add_u32 {vX[1]}, {vT1}, 4, {vT0}"); e(f"v_add_u32 {vX[1]}, {8*1280-1024}, {vX[1]}")
    for i in range(3):
        e(f"v_add_u32 {vT0}, {64*i}, {vL}"); e(f"v_mul_u32_u24 {vT1}, 171, {vT0}"); e(f"v_lshrrev_b32 {vT1}, 12, {vT1}")
        e(f"v_mul_u32_u24 {vT2}, 24, {vT1}"); e(f"v_sub_u32 {vT0}, {vT0}, {vT2}")
        e(f"v_and_b32 {vT2}, 2, {vT1}"); e(f"v_lshlrev_b32 {vT2}, 1, {vT2}"); e(f"v_xor_b32 {vT0}, {vT0}, {vT2}")
        e(f"v_add_u32 {vT1}, {sT2}, {vT1}"); e(f"v_mul_u32_u24 {vT1}, 3072, {vT1}")
        e(f"v_lshl_add_u32 {vW[i]}, {vT0}, 4, {vT1}")
        if i: e(f"v_subrev_u32 {vW[i]}, {1024*i}, {vW[i]}")
    e(f"v_lshrrev_b32 {vT0}, 4, {vL}"); e(f"s_lshl_b32 {sT2}, {sW}, 3"); e(f"v_add_u32 {vT0}, {sT2}, {vT0}"); e(f"v_mul_u32_u24 {vT0}, 1280, {vT0}")
    e(f"v_and_b32 {vT1}, 15, {vL}"); e(f"v_lshl_add_u32 {vP0}, {vT1}, 4, {vT0}")
    e(f"s_sub_u32 {sT0}, {sL}, 16"); e(f"s_cmp_lt_u32 {sL}, 240"); e(f"s_cselect_b32 {sT0}, {sL}, {sT0}")
    e(f"s_mul_i32 {sT1}, {sT0}, 1366"); e(f"s_lshr_b32 {sT1}, {sT1}, 16")
    e(f"s_mul_i32 {sT2}, {sT1}, 48"); e(f"s_sub_u32 {sT0}, {sT0}, {sT2}")
    e(f"s_mul_i32 {sT2}, {sT0}, {32*1280}"); e(f"s_lshl_b32 s3, {sT1}, 8"); e(f"s_add_u32 s3, s3, {sT2}")
    e(f"s_lshl_b32 {sT1}, {sT1}, 3"); e(f"s_lshl_b32 {sT2}, {sW}, 1"); e(f"s_add_u32 {sT1}, {sT1}, {sT2}")
    for t2, dst in ((0, sP0A), (1, sP0B)):
        if t2: e(f"s_add_u32 {sT1}, {sT1}, 1")
        e(f"s_mul_i32 {sT2}, {sT1}, 52"); e(f"s_lshr_b32 {sT2}, {sT2}, 8")
        e(f"s_mul_i32 {dst}, {sT2}, 235"); e(f"s_add_u32 {dst}, {dst}, {sT1}")
        e(f"s_mul_i32 {sT2}, {sT0}, 5"); e(f"s_add_u32 {dst}, {dst}, {sT2}")
        e(f"s_lshl_b32 {dst}, {dst}, 10"); e(f"s_add_u32 {dst}, {dst}, {W2P_OFF}")
    e("s_waitcnt lgkmcnt(0)")
    for srd, p, n in ((16, 4, 2621440), (20, 6, 1966080), (24, 8, 1966080), (28, 10, 2621440), (32, 12, 256), (36, 14, WS_USED)):
        e(f"s_mov_b32 s{srd}, s{p}"); e(f"s_mov_b32 s{srd+1}, s{p+1}"); e(f"s_mov_b32 s{srd+2}, {n}"); e(f"s_mov_b32 s{srd+3}, 0x00020000")
    g.stamp()
    e(f"s_or_b32 {sT0}, s2, {sW}"); e("s_cbranch_scc1 Lnn")
    e("s_memrealtime s[100:101]"); e("s_waitcnt lgkmcnt(0)"); e("s_bitset1_b32 s101, 31")
    e(f"v_mov_b32 v{NON}, s100"); e(f"v_mov_b32 v{NON+1}, s101")
    e("s_mov_b64 exec, 1"); e(f"buffer_store_dwordx2 {vr(NON,2)}, off, {SDBG}, 0 sc1"); e("s_mov_b64 exec, -1")
    g.label("Lnn")
    e(f"s_lshl_b32 {sT0}, {sW}, 11"); e(f"s_add_u32 m0, {sT0}, {LDS_P0}"); e(f"s_add_u32 {sT1}, s3, {4*1280-1024}")
    g.vmem(f"buffer_load_dwordx4 {vP0}, {SW2}, s3 offen lds", "p0")
    g.vmem(f"buffer_load_dwordx4 {vP0}, {SW2}, {sT1} offen offset:1024 lds", "p0")
    def dma_stage(s):
        slot = (s % R) * 32768
        e(f"s_lshl_b32 {sT0}, {sKS}, 7"); e(f"s_add_u32 {sT0}, {sT0}, {sXB}")
        e(f"s_add_u32 m0, {sM0}, {slot}")
        e(f"s_mul_i32 {sT1}, {sKS}, {64*3072}")
        g.vmem(f"buffer_load_dwordx4 {vX[0]}, {SX}, {sT0} offen lds", f"st{s}")
        e(f"s_add_u32 {sT1}, {sT1}, {sWB}")
        g.vmem(f"buffer_load_dwordx4 {vX[1]}, {SX}, {sT0} offen offset:1024 lds", f"st{s}")
        e(f"s_add_u32 m0, {sM0}, {slot+2048}")
        e(f"s_add_u32 {sT2}, {sT1}, {8*3072}")
        for i in range(3): g.vmem(f"buffer_load_dwordx4 {vW[i]}, {SW1}, {sT1} offen offset:{1024*i} lds", f"st{s}")
        e(f"s_add_u32 m0, {sM0}, {slot+2048+3072}")
        e(f"s_add_u32 {sKS}, {sKS}, 1")
        for i in range(3): g.vmem(f"buffer_load_dwordx4 {vW[i]}, {SW1}, {sT2} offen offset:{1024*i} lds", f"st{s}")
        e(f"s_cmp_eq_u32 {sKS}, 10"); e(f"s_cselect_b32 {sKS}, 0, {sKS}")
    dma_stage(0)
    g.stamp()
    e(f"v_lshlrev_b32 {vL16}, 4, {vL}"); e(f"v_add_u32 {vL16B}, 4096, {vL16}")
    e(f"s_and_b32 {sT0}, {sW}, 1"); e(f"s_lshr_b32 {sT1}, {sW}, 1")
    e(f"v_bfe_u32 {vT0}, {vL}, 4, 1"); e(f"s_lshl_b32 {sT2}, {sT0}, 1"); e(f"v_add_u32 {vT0}, {sT2}, {vT0}"); e(f"v_lshlrev_b32 {vT0}, 13, {vT0}")
    e(f"v_and_b32 {vT1}, 15, {vL}"); e(f"v_lshl_add_u32 {vT0}, {vT1}, 7, {vT0}")
    e(f"v_bfe_u32 {vT1}, {vL}, 1, 3"); e(f"v_lshrrev_b32 {vT2}, 5, {vL}"); e(f"v_xor_b32 {vT1}, {vT1}, {vT2}")
    e(f"v_lshl_add_u32 v{vRX[0][0]}, {vT1}, 4, {vT0}")
    for q in range(1, 4): e(f"v_xor_b32 v{vRX[0][q]}, {32*q}, v{vRX[0][0]}")
    for q in range(4): e(f"v_add_u32 v{vRX[1][q]}, 0x10000, v{vRX[0][q]}")
    e(f"v_lshrrev_b32 {vT0}, 5, {vL}"); e(f"v_lshlrev_b32 {vT0}, 3, {vT0}"); e(f"v_bfe_u32 {vT1}, {vL}, 2, 2"); e(f"v_add_u32 {vT0}, {vT0}, {vT1}")
    e(f"v_mul_u32_u24 {vT0}, 384, {vT0}")
    e(f"v_bfe_u32 {vT1}, {vL}, 4, 1"); e(f"v_lshl_add_u32 {vT0}, {vT1}, 5, {vT0}")
    e(f"v_and_b32 {vT1}, 1, {vL}"); e(f"v_lshl_add_u32 {vT0}, {vT1}, 4, {vT0}")
    e(f"v_bfe_u32 {vT1}, {vL}, 1, 1"); e(f"v_lshl_add_u32 {vT0}, {vT1}, 3, {vT0}")
    e(f"s_mul_i32 {sT2}, {sT1}, 3"); e(f"v_bfe_u32 {vT1}, {vL}, 3, 1")
    e(f"v_xor_b32 {vT2}, {sT2}, {vT1}"); e(f"v_lshl_add_u32 v{vRW[0][0]}, {vT2}, 6, {vT0}")
    e(f"s_add_u32 {sT2}, {sT2}, 1"); e(f"v_xor_b32 {vT2}, {sT2}, {vT1}"); e(f"v_lshl_add_u32 v{vRW[0][1]}, {vT2}, 6, {vT0}")
    for p in range(2): e(f"v_add_u32 v{vRW[1][p]}, 0x10000, v{vRW[0][p]}")
    e(f"v_bfe_u32 {vT0}, {vL}, 4, 1"); e(f"v_mul_u32_u24 {vT0}, 49152, {vT0}"); e(f"v_and_b32 {vT1}, 15, {vL}"); e(f"v_lshl_add_u32 {vT0}, {vT1}, 4, {vT0}")
    e(f"v_lshrrev_b32 {vT1}, 5, {vL}"); e(f"v_lshl_add_u32 {vHST}, {vT1}, 8, {vT0}")
    e(f"s_lshl_b32 {sHST}, {sB1}, 1"); e(f"s_add_u32 {sHST}, {sHST}, {sT0}"); e(f"s_mul_i32 {sHST}, {sHST}, 96")
    e(f"s_mul_i32 {sT2}, {sJ1}, 6"); e(f"s_add_u32 {sHST}, {sHST}, {sT2}"); e(f"s_mul_i32 {sT2}, {sT1}, 3"); e(f"s_add_u32 {sHST}, {sHST}, {sT2}")
    e(f"s_lshl_b32 {sHST}, {sHST}, 10")
    if H_OFF: e(f"s_add_u32 {sHST}, {sHST}, {H_OFF}")
    e(f"v_lshrrev_b32 {vT0}, 4, {vL}"); e(f"v_lshlrev_b32 {vT0}, 3, {vT0}"); e(f"v_bfe_u32 {vT1}, {vL}, 2, 2"); e(f"v_add_u32 {vT0}, {vT0}, {vT1}")
    e(f"v_lshlrev_b32 {vT0}, 8, {vT0}"); e(f"v_and_b32 {vT1}, 3, {vL}"); e(f"v_lshl_add_u32 {vT0}, {vT1}, 3, {vT0}")
    e(f"s_lshl_b32 {sT2}, {sW}, 6"); e(f"s_add_u32 {sT2}, {sT2}, {LDS_P0}"); e(f"v_add_u32 {vP0R}, {sT2}, {vT0}")
    e(f"s_mul_i32 {sT0}, {sJ2}, 5"); e(f"s_add_u32 {sT1}, {sT0}, 4"); e(f"s_lshr_b32 {sT0}, {sT0}, 3"); e(f"s_lshr_b32 {sT1}, {sT1}, 3")
    e(f"s_mul_i32 {sT0}, {sT0}, 48"); e(f"s_mul_i32 {sT1}, {sT1}, 48"); e(f"s_mul_i32 {sT2}, {sW}, 12")
    e(f"s_add_u32 {sT0}, {sT0}, {sT2}"); e(f"s_add_u32 {sT1}, {sT1}, {sT2}"); e(f"s_sub_u32 {sT1}, {sT1}, 12")
    e(f"v_add_u32 {vT1}, {sT0}, {vL}"); e(f"v_add_u32 {vT2}, {sT1}, {vL}")
    e(f"v_cmp_gt_u32 vcc, 12, {vL}"); e("s_nop 1"); e(f"v_cndmask_b32 {vPW}, {vT2}, {vT1}, vcc")
    e(f"v_mov_b32 {vT1}, {sT0}"); e(f"v_cmp_gt_u32 vcc, 24, {vL}"); e("s_nop 1"); e(f"v_cndmask_b32 {vPW}, {vT1}, {vPW}, vcc")
    e(f"v_lshlrev_b32 {vPW}, 7, {vPW}"); e(f"v_add_u32 {vPW}, {FW_OFF}, {vPW}")
    e(f"s_lshl_b32 {sT1}, {sB2}, 3"); e(f"s_lshl_b32 {sT2}, {sW}, 1"); e(f"s_add_u32 {sT1}, {sT1}, {sT2}")
    e(f"v_and_b32 {vT0}, 1, {vL}"); e(f"v_add_u32 {vT0}, {sT1}, {vT0}"); e(f"v_lshlrev_b32 {vT0}, 7, {vT0}"); e(f"v_add_u32 {vPH}, {FH_OFF}, {vT0}")
    if cfg.rho: e(f"s_and_b32 {sRHO}, {sJ2}, {cfg.rho-1}"); (e(f"s_lshl_b32 {sRHO}, {sRHO}, 1") if cfg.rho == 2 else None)
    else: e(f"s_mov_b32 {sRHO}, 0")
    for i in range(4):
        e(f"s_add_u32 {sT0}, {sW}, {1+i}"); e(f"s_and_b32 {sT1}, {sT0}, 3")
        if i < 3:
            e(f"s_mul_i32 {sT2}, {sT1}, {3*5120}"); e(f"s_add_u32 {sT2}, {sT2}, {i*5120}"); e(f"v_add_u32 {vRDW[i]}, {sT2}, {vL16}")
        e(f"s_add_u32 {sT0}, {sT0}, {sRHO}"); e(f"s_and_b32 {sT0}, {sT0}, 3")
        e(f"s_lshl_b32 {sT1}, {sB2}, 2"); e(f"s_add_u32 {sT1}, {sT1}, {sT0}"); e(f"s_mul_i32 {sT1}, {sT1}, 48")
        e(f"s_mul_i32 {sT2}, {sW}, 12"); e(f"s_add_u32 {sT1}, {sT1}, {sT2}"); e(f"s_lshl_b32 {sT1}, {sT1}, 10")
        if H_OFF: e(f"s_add_u32 {sT1}, {sT1}, {H_OFF}")
        e(f"v_add_u32 {vH[i]}, {sT1}, {vL16}")
        if i == 3:
            e(f"s_lshl_b32 {sOUT}, {sB2}, 2"); e(f"s_add_u32 {sOUT}, {sOUT}, {sT0}"); e(f"s_mul_i32 {sOUT}, {sOUT}, {16*1280}")
            e(f"s_mul_i32 {sT2}, {sJ2}, 160"); e(f"s_add_u32 {sOUT}, {sOUT}, {sT2}")
    e(f"s_mul_i32 {sT2}, {sW}, {3*5120}"); e(f"v_add_u32 {vRDR}, {sT2}, {vL16}")
    e(f"v_and_b32 {vT0}, 15, {vL}"); e(f"v_mul_u32_u24 {vT0}, 1280, {vT0}"); e(f"v_lshrrev_b32 {vT1}, 4, {vL}"); e(f"v_lshl_add_u32 {vOUT}, {vT1}, 3, {vT0}")
    e(f"s_lshl_b32 {sW2B}, {sJ2}, 2"); e(f"s_add_u32 {sW2B}, {sW2B}, {sW}"); e(f"s_mul_i32 {sW2B}, {sW2B}, {60*1024}"); e(f"s_add_u32 {sW2B}, {sW2B}, {W2P_OFF}")
    if cfg.r2 > 1:
        e(f"s_and_b32 {sT0}, {sB2}, {cfg.r2-1}"); e(f"s_mul_i32 {sT0}, {sT0}, {12//cfg.r2}")
    else: e(f"s_mov_b32 {sT0}, 0")
    for s in range(12):
        e(f"s_mov_b32 s{4+s}, {sT0}")
        if s < 11: e(f"s_add_u32 {sT0}, {sT0}, 1"); e(f"s_cmp_eq_u32 {sT0}, 12"); e(f"s_cselect_b32 {sT0}, 0, {sT0}")

    for s in range(1, R - 1): dma_stage(s)
    def reads(s, q):
        slot = s % R; hi = slot >> 1; base = (slot & 1) * 32768
        e(f"ds_read_b128 {vr(FX+4*q,4)}, v{vRX[hi][q]} offset:{base}")
        for T in range(3):
            for half in range(2):
                off = base + q * 8192 + 2048 + 4 * half * 384 + (64 * T if T != 1 else 0)
                e(f"ds_read_b64_tr_b16 {vr(FW+12*q+4*T+2*half,2)}, v{vRW[hi][T&1]} offset:{off}")
    def mfmas(s, q):
        for T in range(3):
            cc = "0" if (s == 0 and q == 0) else vr(ACC1+16*T,16)
            e(f"v_mfma_f32_32x32x16_bf16 {vr(ACC1+16*T,16)}, {vr(FW+12*q+4*T,4)}, {vr(FX+4*q,4)}, {cc}")
    def w2_loads(blocks):
        for s in blocks:
            e(f"s_mul_i32 {sT0}, s{4+s}, 5120"); e(f"s_add_u32 {sT0}, {sT0}, {sW2B}")
            for t in range(5):
                a = 4 * (5 * s + t)
                if t < 4: g.vmem(f"buffer_load_dwordx4 a[{a}:{a+3}], {vL16}, {SWS}, {sT0} offen offset:{1024*t} sc1", f"w2_{s}")
                else: g.vmem(f"buffer_load_dwordx4 a[{a}:{a+3}], {vL16B}, {SWS}, {sT0} offen sc1", f"w2_{s}")
    FLAGW_STAGE = cfg.flagw
    for s in range(NS):
        if s == FLAGW_STAGE: g.wait_vm("p0st") if ("p0st" in g.vm and g.vm.index("p0st") > max(i for i, t in enumerate(g.vm) if t == f"st{s}")) else g.wait_vm(f"st{s}")
        else: g.wait_vm(f"st{s}")
        e("s_barrier")
        if s in (0, 1, 5, 9): g.stamp()
        if s == FLAGW_STAGE - 2:
            g.vmem(f"buffer_load_dwordx2 {vr(NON,2)}, off, {SDBG}, 0 sc1", "non")
        if s == FLAGW_STAGE:
            if "non" in g.vm: g.wait_vm("non")
            e(f"v_cmp_ne_u32 vcc, 0, v{NON+1}"); e(f"s_mov_b32 {sCNT}, 0"); e("s_nop 0"); e("s_cbranch_vccnz Lnon_ok")
            g.label("Lnon")
            e("s_sleep 2"); e(f"buffer_load_dwordx2 {vr(NON,2)}, off, {SDBG}, 0 sc1"); e("s_waitcnt vmcnt(0)")
            e(f"v_cmp_ne_u32 vcc, 0, v{NON+1}")
            e(f"s_add_u32 {sCNT}, {sCNT}, 1"); e(f"s_cmp_gt_u32 {sCNT}, 100000"); e("s_cbranch_scc1 Lnon_ok")
            e("s_cbranch_vccz Lnon")
            g.label("Lnon_ok")
            e(f"s_cmp_lg_u32 {sW}, 0"); e(f"s_cbranch_scc1 Lnf1")
            e(f"s_lshl_b32 {sT0}, {sL}, 7"); e(f"s_add_u32 {sT0}, {sT0}, {FW_OFF}")
            e("s_mov_b64 exec, 1"); e(f"buffer_store_dwordx2 {vr(NON,2)}, off, {SWS}, {sT0} sc1"); e("s_mov_b64 exec, -1")
            g.label("Lnf1")
        if s == 0:
            for t2 in range(2):
                for half in range(2):
                    e(f"ds_read_b64_tr_b16 {vr(P0F+4*t2+2*half,2)}, {vP0R} offset:{half*1024+t2*32}")
            e("s_waitcnt lgkmcnt(0)")
            g.vmem(f"buffer_store_dwordx4 {vr(P0F,4)}, {vL16}, {SWS}, {sP0A} offen sc1", "p0st")
            g.vmem(f"buffer_store_dwordx4 {vr(P0F+4,4)}, {vL16}, {SWS}, {sP0B} offen sc1", "p0st")
        reads(s, 0); reads(s, 1)
        if s + R - 1 < NS: dma_stage(s + R - 1)
        e("s_waitcnt lgkmcnt(7)"); mfmas(s, 0); reads(s, 2)
        e("s_waitcnt lgkmcnt(7)"); mfmas(s, 1); reads(s, 3)
        e("s_waitcnt lgkmcnt(7)"); mfmas(s, 2)
        e("s_waitcnt lgkmcnt(0)"); mfmas(s, 3)
    g.stamp()
    e("s_nop 7"); e("s_nop 7")
    PK = FX
    for T in range(3):
        for i in range(8):
            e(f"v_cvt_pk_bf16_f32 v{PK+8*T+i}, v{ACC1+16*T+2*i}, v{ACC1+16*T+2*i+1}")
        for i in range(8):
            e(f"v_pk_max_i16 v{PK+8*T+i}, v{PK+8*T+i}, 0")
        for c in range(2):
            g.vmem(f"buffer_store_dwordx4 {vr(PK+8*T+4*c,4)}, {vHST}, {SWS}, {sHST} offen offset:{T*1024+c*512} sc1", "hst")
    def poll(name, vaddr):
        e(f"s_mov_b32 {sCNT}, 0")
        e(f"s_branch L{name}_go")
        g.label(f"L{name}")
        e(f"s_sleep {cfg.sleep}")
        g.label(f"L{name}_go")
        e(f"buffer_load_dwordx2 {vr(POLL,2)}, {vaddr}, {SWS}, 0 offen sc1")
        g.wait_vm0()
        e(f"v_cmp_ne_u64 vcc, {vr(POLL,2)}, {vr(NON,2)}")
        e(f"s_add_u32 {sCNT}, {sCNT}, 1"); e(f"s_cmp_gt_u32 {sCNT}, 100000"); e(f"s_cbranch_scc1 L{name}_done")
        e(f"s_cbranch_vccnz L{name}")
        g.label(f"L{name}_done")
    poll("pw", vPW)
    g.stamp()
    e("s_barrier")
    e(f"s_cmp_lg_u32 {sW}, 0"); e(f"s_cbranch_scc1 Lnf2")
    e(f"s_lshl_b32 {sT0}, {sL}, 7"); e(f"s_add_u32 {sT0}, {sT0}, {FH_OFF}")
    e("s_mov_b64 exec, 1"); e(f"buffer_store_dwordx2 {vr(NON,2)}, off, {SWS}, {sT0} sc1"); e("s_mov_b64 exec, -1")
    g.label("Lnf2")
    w2_loads(range(12))
    g.stamp()
    poll("ph", vPH)
    g.stamp()
    for s in range(12): e(f"s_lshl_b32 s{4+s}, s{4+s}, 10")
    def hload(i, s): g.vmem(f"buffer_load_dwordx4 {vr(HB+4*s,4)}, {vH[i]}, {SWS}, s{4+s} offen sc1", f"h{i}_{s}")
    for s in range(12): hload(0, s)
    for i in range(4):
        acc = ACC2 + 20 * (i & 1)
        for s in range(12):
            g.wait_vm(f"h{i}_{s}")
            if i == 0 and s == 0: g.stamp()
            for t in range(5):
                a = 4 * (5 * s + t)
                cc = "0" if s == 0 else vr(acc+4*t,4)
                e(f"v_mfma_f32_16x16x32_bf16 {vr(acc+4*t,4)}, a[{a}:{a+3}], {vr(HB+4*s,4)}, {cc}")
            if i < 3: hload(i + 1, s)
            if i > 0 and s == 1:
                pacc = ACC2 + 20 * ((i - 1) & 1)
                for t in range(5): e(f"ds_write_b128 {vRDW[i-1]}, {vr(pacc+4*t,4)} offset:{1024*t}")
            if i == 3 and s == 5:
                e("s_waitcnt lgkmcnt(0)"); e("s_barrier")
                for k in range(3):
                    for t in range(5): e(f"ds_read_b128 {vr(PR+20*k+4*t,4)}, {vRDR} offset:{5120*k+1024*t}")
            if i == 3 and s == 9:
                e("s_waitcnt lgkmcnt(0)")
                for r in range(20): e(f"v_add_f32 v{PR+r}, v{PR+r}, v{PR+20+r}")
            if i == 3 and s == 10:
                for r in range(20): e(f"v_add_f32 v{PR+r}, v{PR+r}, v{PR+40+r}")
    g.stamp()
    acc = ACC2 + 20
    e("s_nop 7")
    for t in range(5):
        for r in range(4): e(f"v_add_f32 v{PR+4*t+r}, v{PR+4*t+r}, v{acc+4*t+r}")
        e(f"v_cvt_pk_bf16_f32 v{PR+20+2*t}, v{PR+4*t}, v{PR+4*t+1}"); e(f"v_cvt_pk_bf16_f32 v{PR+21+2*t}, v{PR+4*t+2}, v{PR+4*t+3}")
        e(f"buffer_store_dwordx2 {vr(PR+20+2*t,2)}, {vOUT}, {SOUT}, {sOUT} offen offset:{32*t}")
    if cfg.prof:
        e("s_waitcnt vmcnt(0)"); g.stamp(); e("s_memrealtime s[62:63]"); e("s_waitcnt lgkmcnt(0)")
        e(f"s_lshl_b32 {sT0}, s2, 2"); e(f"s_add_u32 {sT0}, {sT0}, {sW}"); e(f"s_lshl_b32 {sT0}, {sT0}, 7"); e(f"s_add_u32 {sT0}, {sT0}, {PROF_OFF}")
        e("s_mov_b64 exec, 1")
        regs = ["s60", "s62"] + [f"s{64+2*i}" for i in range(g.nstamp)]
        for i, r in enumerate(regs):
            e(f"v_mov_b32 v24, {r}"); e(f"buffer_store_dword v24, off, {SWS}, {sT0} offset:{4*i}"); e("s_nop 1")
    g.label("Lend")
    body = "\n".join(g.L)
    return f"""{HDR}; @launch grid=(256,1,1) block=(256,1,1) lds={lds_bytes}
.amdgcn_target "amdgcn-amd-amdhsa--gfx950"
.text
.globl {KN}
.p2align 8
.type {KN},@function
{KN}:
{body}
    s_endpgm
.section .rodata,"a"
.p2align 6
.amdhsa_kernel {KN}
  .amdhsa_next_free_vgpr 496
  .amdhsa_next_free_sgpr 102
  .amdhsa_accum_offset 256
  .amdhsa_group_segment_fixed_size 0
  .amdhsa_kernarg_size 48
  .amdhsa_user_sgpr_count 2
  .amdhsa_user_sgpr_kernarg_segment_ptr 1
  .amdhsa_system_sgpr_workgroup_id_x 1
.end_amdhsa_kernel
"""

if __name__ == "__main__":
    ap = argparse.ArgumentParser()
    ap.add_argument("-o", default="k.s"); ap.add_argument("--prof", type=int, default=0)
    ap.add_argument("--p1", default="B"); ap.add_argument("--p2", default="B")
    ap.add_argument("--r1", type=int, default=1); ap.add_argument("--r2", type=int, default=1); ap.add_argument("--rho", type=int, default=0)
    ap.add_argument("--flagw", type=int, default=4); ap.add_argument("--sleep", type=int, default=2)
    cfg = ap.parse_args()
    open(cfg.o, "w").write(gen(cfg))
```

```python
import sys, argparse

KN = "standalone__dense_activation_relu__prompt_kernel"
HDR = """; Kernarg layout for this problem (48 bytes, ptrs only, base s[0:1]):
;   offset   0: d_in[0] x  shape=(1, 2048, 640) dtype=bfloat16 strides=(2621440, 1280, 2) contiguous=True
;   offset   8: d_in[1] w1  shape=(640, 1536) dtype=bfloat16 strides=(3072, 2) contiguous=True
;   offset  16: d_in[2] w2  shape=(1536, 640) dtype=bfloat16 strides=(1280, 2) contiguous=True
"""
H_OFF = 0
W2P_OFF = 8 << 20
FW_OFF = 12 << 20
FH_OFF = FW_OFF + 65536
PROF_OFF = 0x8000000
WS_USED = 0x10000000

class G:
    def __init__(s, cfg):
        s.L = []; s.vm = []; s.cfg = cfg; s.nstamp = 0; s.lab = 0
    def e(s, t): s.L.append("    " + t)
    def label(s, n): s.L.append(n + ":")
    def c(s, t): s.L.append("    ; " + t)
    def vmem(s, t, tag): s.e(t); s.vm.append(tag)
    def wait_vm(s, tag, extra=""):
        idx = max(i for i, t in enumerate(s.vm) if t == tag)
        n = len(s.vm) - 1 - idx
        assert n <= 63, n
        s.e(f"s_waitcnt vmcnt({n}){extra}")
        s.vm = s.vm[idx + 1:]
    def wait_vm0(s):
        s.e("s_waitcnt vmcnt(0)"); s.vm = []
    def stamp(s):
        if s.cfg.prof:
            r = 64 + 2 * s.nstamp; assert r + 1 < 100
            s.e(f"s_memtime s[{r}:{r+1}]"); s.nstamp += 1

SX, SW1, SW2, SOUT, SDBG, SWS = "s[16:19]", "s[20:23]", "s[24:27]", "s[28:31]", "s[32:35]", "s[36:39]"
sW, sB1, sJ1, sB2, sJ2, sL = "s40", "s41", "s42", "s43", "s44", "s45"
sXB, sWB, sKS, sT0, sT1, sT2, sM0 = "s46", "s47", "s48", "s49", "s50", "s51", "s52"
sHST, sRHO, sCNT, sP0A, sP0B, sW2B, sOUT = "s53", "s54", "s55", "s56", "s57", "s58", "s59"
vL = "v1"
vX = ["v2", "v3"]; vW = ["v4", "v5", "v6"]; vP0 = "v7"
vRX = [[8, 9, 10, 11], [12, 13, 14, 15]]; vRW = [[16, 17], [18, 19]]
vL16, vHST, vOUT, vPW, vT0, vT1 = "v20", "v21", "v22", "v23", "v24", "v25"
vRDW = ["v26", "v27", "v28"]; vRDR, vP0R, vFL = "v29", "v30", "v31"
ACC1 = 32; FX = 80; FW = 96; HB = 144; ACC2 = 192; P0F = 232
vL16B = "v240"; vH = ["v241", "v242", "v243", "v244"]; vT2 = "v245"; POLL = 246; NON = 248; vPH = "v250"
PR = 32

def vr(a, n): return f"v[{a}:{a+n-1}]"

def gen(cfg):
    g = G(cfg); e = g.e
    NS = 10; R = 4
    LDS_P0 = R * 32768
    lds_bytes = LDS_P0 + 8192
    e("s_cmp_ge_u32 s2, 256"); e("s_cbranch_scc1 Lend")
    g.stamp()
    if cfg.prof: e("s_memrealtime s[60:61]")
    e("s_load_dwordx4 s[4:7], s[0:1], 0"); e("s_load_dwordx4 s[8:11], s[0:1], 16"); e("s_load_dwordx4 s[12:15], s[0:1], 32")
    e("v_lshrrev_b32 v24, 6, v0"); e(f"v_and_b32 {vL}, 63, v0"); e("s_nop 0"); e(f"v_readfirstlane_b32 {sW}, v24")
    e(f"s_and_b32 {sT0}, s2, 7"); e(f"s_lshr_b32 {sT1}, s2, 3")
    def part(kind, sb, sj):
        if kind == "A":
            e(f"s_lshl_b32 {sb}, {sT0}, 2"); e(f"s_lshr_b32 {sT2}, {sT1}, 3"); e(f"s_add_u32 {sb}, {sb}, {sT2}"); e(f"s_and_b32 {sj}, {sT1}, 7")
        else:
            e(f"s_lshr_b32 {sb}, {sT0}, 1"); e(f"s_lshl_b32 {sb}, {sb}, 3"); e(f"s_lshr_b32 {sT2}, {sT1}, 2"); e(f"s_add_u32 {sb}, {sb}, {sT2}")
            e(f"s_and_b32 {sj}, {sT0}, 1"); e(f"s_lshl_b32 {sj}, {sj}, 2"); e(f"s_and_b32 {sT2}, {sT1}, 3"); e(f"s_add_u32 {sj}, {sj}, {sT2}")
    part(cfg.p1, sB1, sJ1); part(cfg.p2, sB2, sJ2)
    e(f"s_lshl_b32 {sL}, {sB1}, 3"); e(f"s_add_u32 {sL}, {sL}, {sJ1}")
    e(f"s_mul_i32 {sXB}, {sB1}, {64*1280}"); e(f"s_mul_i32 {sWB}, {sJ1}, 384")
    e(f"s_lshl_b32 {sM0}, {sW}, 13")
    if cfg.r1 > 1:
        e(f"s_add_u32 {sKS}, {sB1}, {sJ1}")
        if cfg.r1 == 2: e(f"s_and_b32 {sKS}, {sKS}, 1"); e(f"s_mul_i32 {sKS}, {sKS}, 5")
        elif cfg.r1 == 4: e(f"s_and_b32 {sKS}, {sKS}, 3"); e(f"s_mul_i32 {sKS}, {sKS}, 5"); e(f"s_lshr_b32 {sKS}, {sKS}, 1")
        elif cfg.r1 == 3:
            e(f"s_mul_i32 {sT2}, {sKS}, 86"); e(f"s_lshr_b32 {sT2}, {sT2}, 8"); e(f"s_mul_i32 {sT2}, {sT2}, 3"); e(f"s_sub_u32 {sKS}, {sKS}, {sT2}")
            e(f"s_mul_i32 {sKS}, {sKS}, 10"); e(f"s_mul_i32 {sKS}, {sKS}, 86"); e(f"s_lshr_b32 {sKS}, {sKS}, 8")
    else:
        e(f"s_mov_b32 {sKS}, 0")
    e(f"v_lshrrev_b32 {vT0}, 3, {vL}"); e(f"s_lshl_b32 {sT2}, {sW}, 4"); e(f"v_add_u32 {vT0}, {sT2}, {vT0}")
    e(f"v_mul_u32_u24 {vT0}, 1280, {vT0}")
    e(f"v_and_b32 {vT1}, 7, {vL}"); e(f"v_lshrrev_b32 {vT2}, 4, {vL}"); e(f"v_xor_b32 {vT1}, {vT1}, {vT2}")
    e(f"v_lshl_add_u32 {vX[0]}, {vT1}, 4, {vT0}")
    e(f"v_xor_b32 {vT1}, 4, {vT1}"); e(f"v_lshl_add_u32 {vX[1]}, {vT1}, 4, {vT0}"); e(f"v_add_u32 {vX[1]}, {8*1280-1024}, {vX[1]}")
    for i in range(3):
        e(f"v_add_u32 {vT0}, {64*i}, {vL}"); e(f"v_mul_u32_u24 {vT1}, 171, {vT0}"); e(f"v_lshrrev_b32 {vT1}, 12, {vT1}")
        e(f"v_mul_u32_u24 {vT2}, 24, {vT1}"); e(f"v_sub_u32 {vT0}, {vT0}, {vT2}")
        e(f"v_and_b32 {vT2}, 2, {vT1}"); e(f"v_lshlrev_b32 {vT2}, 1, {vT2}"); e(f"v_xor_b32 {vT0}, {vT0}, {vT2}")
        e(f"v_add_u32 {vT1}, {sT2}, {vT1}"); e(f"v_mul_u32_u24 {vT1}, 3072, {vT1}")
        e(f"v_lshl_add_u32 {vW[i]}, {vT0}, 4, {vT1}")
        if i: e(f"v_subrev_u32 {vW[i]}, {1024*i}, {vW[i]}")
    e(f"v_lshrrev_b32 {vT0}, 4, {vL}"); e(f"s_lshl_b32 {sT2}, {sW}, 3"); e(f"v_add_u32 {vT0}, {sT2}, {vT0}"); e(f"v_mul_u32_u24 {vT0}, 1280, {vT0}")
    e(f"v_and_b32 {vT1}, 15, {vL}"); e(f"v_lshl_add_u32 {vP0}, {vT1}, 4, {vT0}")
    e(f"s_sub_u32 {sT0}, {sL}, 16"); e(f"s_cmp_lt_u32 {sL}, 240"); e(f"s_cselect_b32 {sT0}, {sL}, {sT0}")
    e(f"s_mul_i32 {sT1}, {sT0}, 1366"); e(f"s_lshr_b32 {sT1}, {sT1}, 16")
    e(f"s_mul_i32 {sT2}, {sT1}, 48"); e(f"s_sub_u32 {sT0}, {sT0}, {sT2}")
    e(f"s_mul_i32 {sT2}, {sT0}, {32*1280}"); e(f"s_lshl_b32 s3, {sT1}, 8"); e(f"s_add_u32 s3, s3, {sT2}")
    e(f"s_lshl_b32 {sT1}, {sT1}, 3"); e(f"s_lshl_b32 {sT2}, {sW}, 1"); e(f"s_add_u32 {sT1}, {sT1}, {sT2}")
    for t2, dst in ((0, sP0A), (1, sP0B)):
        if t2: e(f"s_add_u32 {sT1}, {sT1}, 1")
        e(f"s_mul_i32 {sT2}, {sT1}, 52"); e(f"s_lshr_b32 {sT2}, {sT2}, 8")
        e(f"s_mul_i32 {dst}, {sT2}, 235"); e(f"s_add_u32 {dst}, {dst}, {sT1}")
        e(f"s_mul_i32 {sT2}, {sT0}, 5"); e(f"s_add_u32 {dst}, {dst}, {sT2}")
        e(f"s_lshl_b32 {dst}, {dst}, 10"); e(f"s_add_u32 {dst}, {dst}, {W2P_OFF}")
    e("s_waitcnt lgkmcnt(0)")
    for srd, p, n in ((16, 4, 2621440), (20, 6, 1966080), (24, 8, 1966080), (28, 10, 2621440), (32, 12, 256), (36, 14, WS_USED)):
        e(f"s_mov_b32 s{srd}, s{p}"); e(f"s_mov_b32 s{srd+1}, s{p+1}"); e(f"s_mov_b32 s{srd+2}, {n}"); e(f"s_mov_b32 s{srd+3}, 0x00020000")
    g.stamp()
    e(f"s_or_b32 {sT0}, s2, {sW}"); e("s_cbranch_scc1 Lnn")
    e("s_memrealtime s[100:101]"); e("s_waitcnt lgkmcnt(0)"); e("s_bitset1_b32 s101, 31")
    e(f"v_mov_b32 v{NON}, s100"); e(f"v_mov_b32 v{NON+1}, s101")
    e("s_mov_b64 exec, 1"); e(f"buffer_store_dwordx2 {vr(NON,2)}, off, {SDBG}, 0 sc1"); e("s_mov_b64 exec, -1")
    g.label("Lnn")
    e(f"s_lshl_b32 {sT0}, {sW}, 11"); e(f"s_add_u32 m0, {sT0}, {LDS_P0}"); e(f"s_add_u32 {sT1}, s3, {4*1280-1024}")
    g.vmem(f"buffer_load_dwordx4 {vP0}, {SW2}, s3 offen lds", "p0")
    g.vmem(f"buffer_load_dwordx4 {vP0}, {SW2}, {sT1} offen offset:1024 lds", "p0")
    def dma_stage(s):
        slot = (s % R) * 32768
        e(f"s_lshl_b32 {sT0}, {sKS}, 7"); e(f"s_add_u32 {sT0}, {sT0}, {sXB}")
        e(f"s_add_u32 m0, {sM0}, {slot}")
        e(f"s_mul_i32 {sT1}, {sKS}, {64*3072}")
        g.vmem(f"buffer_load_dwordx4 {vX[0]}, {SX}, {sT0} offen lds", f"st{s}")
        e(f"s_add_u32 {sT1}, {sT1}, {sWB}")
        g.vmem(f"buffer_load_dwordx4 {vX[1]}, {SX}, {sT0} offen offset:1024 lds", f"st{s}")
        e(f"s_add_u32 m0, {sM0}, {slot+2048}")
        e(f"s_add_u32 {sT2}, {sT1}, {8*3072}")
        for i in range(3): g.vmem(f"buffer_load_dwordx4 {vW[i]}, {SW1}, {sT1} offen offset:{1024*i} lds", f"st{s}")
        e(f"s_add_u32 m0, {sM0}, {slot+2048+3072}")
        e(f"s_add_u32 {sKS}, {sKS}, 1")
        for i in range(3): g.vmem(f"buffer_load_dwordx4 {vW[i]}, {SW1}, {sT2} offen offset:{1024*i} lds", f"st{s}")
        e(f"s_cmp_eq_u32 {sKS}, 10"); e(f"s_cselect_b32 {sKS}, 0, {sKS}")
    dma_stage(0)
    g.stamp()
    e(f"v_lshlrev_b32 {vL16}, 4, {vL}"); e(f"v_add_u32 {vL16B}, 4096, {vL16}")
    e(f"s_and_b32 {sT0}, {sW}, 1"); e(f"s_lshr_b32 {sT1}, {sW}, 1")
    e(f"v_bfe_u32 {vT0}, {vL}, 4, 1"); e(f"s_lshl_b32 {sT2}, {sT0}, 1"); e(f"v_add_u32 {vT0}, {sT2}, {vT0}"); e(f"v_lshlrev_b32 {vT0}, 13, {vT0}")
    e(f"v_and_b32 {vT1}, 15, {vL}"); e(f"v_lshl_add_u32 {vT0}, {vT1}, 7, {vT0}")
    e(f"v_bfe_u32 {vT1}, {vL}, 1, 3"); e(f"v_lshrrev_b32 {vT2}, 5, {vL}"); e(f"v_xor_b32 {vT1}, {vT1}, {vT2}")
    e(f"v_lshl_add_u32 v{vRX[0][0]}, {vT1}, 4, {vT0}")
    for q in range(1, 4): e(f"v_xor_b32 v{vRX[0][q]}, {32*q}, v{vRX[0][0]}")
    for q in range(4): e(f"v_add_u32 v{vRX[1][q]}, 0x10000, v{vRX[0][q]}")
    e(f"v_lshrrev_b32 {vT0}, 5, {vL}"); e(f"v_lshlrev_b32 {vT0}, 3, {vT0}"); e(f"v_bfe_u32 {vT1}, {vL}, 2, 2"); e(f"v_add_u32 {vT0}, {vT0}, {vT1}")
    e(f"v_mul_u32_u24 {vT0}, 384, {vT0}")
    e(f"v_bfe_u32 {vT1}, {vL}, 4, 1"); e(f"v_lshl_add_u32 {vT0}, {vT1}, 5, {vT0}")
    e(f"v_and_b32 {vT1}, 1, {vL}"); e(f"v_lshl_add_u32 {vT0}, {vT1}, 4, {vT0}")
    e(f"v_bfe_u32 {vT1}, {vL}, 1, 1"); e(f"v_lshl_add_u32 {vT0}, {vT1}, 3, {vT0}")
    e(f"s_mul_i32 {sT2}, {sT1}, 3"); e(f"v_bfe_u32 {vT1}, {vL}, 3, 1")
    e(f"v_xor_b32 {vT2}, {sT2}, {vT1}"); e(f"v_lshl_add_u32 v{vRW[0][0]}, {vT2}, 6, {vT0}")
    e(f"s_add_u32 {sT2}, {sT2}, 1"); e(f"v_xor_b32 {vT2}, {sT2}, {vT1}"); e(f"v_lshl_add_u32 v{vRW[0][1]}, {vT2}, 6, {vT0}")
    for p in range(2): e(f"v_add_u32 v{vRW[1][p]}, 0x10000, v{vRW[0][p]}")
    e(f"v_bfe_u32 {vT0}, {vL}, 4, 1"); e(f"v_mul_u32_u24 {vT0}, 49152, {vT0}"); e(f"v_and_b32 {vT1}, 15, {vL}"); e(f"v_lshl_add_u32 {vT0}, {vT1}, 4, {vT0}")
    e(f"v_lshrrev_b32 {vT1}, 5, {vL}"); e(f"v_lshl_add_u32 {vHST}, {vT1}, 8, {vT0}")
    e(f"s_lshl_b32 {sHST}, {sB1}, 1"); e(f"s_add_u32 {sHST}, {sHST}, {sT0}"); e(f"s_mul_i32 {sHST}, {sHST}, 96")
    e(f"s_mul_i32 {sT2}, {sJ1}, 6"); e(f"s_add_u32 {sHST}, {sHST}, {sT2}"); e(f"s_mul_i32 {sT2}, {sT1}, 3"); e(f"s_add_u32 {sHST}, {sHST}, {sT2}")
    e(f"s_lshl_b32 {sHST}, {sHST}, 10")
    if H_OFF: e(f"s_add_u32 {sHST}, {sHST}, {H_OFF}")
    e(f"v_lshrrev_b32 {vT0}, 4, {vL}"); e(f"v_lshlrev_b32 {vT0}, 3, {vT0}"); e(f"v_bfe_u32 {vT1}, {vL}, 2, 2"); e(f"v_add_u32 {vT0}, {vT0}, {vT1}")
    e(f"v_lshlrev_b32 {vT0}, 8, {vT0}"); e(f"v_and_b32 {vT1}, 3, {vL}"); e(f"v_lshl_add_u32 {vT0}, {vT1}, 3, {vT0}")
    e(f"s_lshl_b32 {sT2}, {sW}, 6"); e(f"s_add_u32 {sT2}, {sT2}, {LDS_P0}"); e(f"v_add_u32 {vP0R}, {sT2}, {vT0}")
    e(f"s_mul_i32 {sT0}, {sJ2}, 5"); e(f"s_add_u32 {sT1}, {sT0}, 4"); e(f"s_lshr_b32 {sT0}, {sT0}, 3"); e(f"s_lshr_b32 {sT1}, {sT1}, 3")
    e(f"s_mul_i32 {sT0}, {sT0}, 48"); e(f"s_mul_i32 {sT1}, {sT1}, 48"); e(f"s_mul_i32 {sT2}, {sW}, 12")
    e(f"s_add_u32 {sT0}, {sT0}, {sT2}"); e(f"s_add_u32 {sT1}, {sT1}, {sT2}"); e(f"s_sub_u32 {sT1}, {sT1}, 12")
    e(f"v_add_u32 {vT1}, {sT0}, {vL}"); e(f"v_add_u32 {vT2}, {sT1}, {vL}")
    e(f"v_cmp_gt_u32 vcc, 12, {vL}"); e("s_nop 1"); e(f"v_cndmask_b32 {vPW}, {vT2}, {vT1}, vcc")
    e(f"v_mov_b32 {vT1}, {sT0}"); e(f"v_cmp_gt_u32 vcc, 24, {vL}"); e("s_nop 1"); e(f"v_cndmask_b32 {vPW}, {vT1}, {vPW}, vcc")
    e(f"v_lshlrev_b32 {vPW}, 7, {vPW}"); e(f"v_add_u32 {vPW}, {FW_OFF}, {vPW}")
    e(f"s_lshl_b32 {sT1}, {sB2}, 3"); e(f"s_lshl_b32 {sT2}, {sW}, 1"); e(f"s_add_u32 {sT1}, {sT1}, {sT2}")
    e(f"v_and_b32 {vT0}, 1, {vL}"); e(f"v_add_u32 {vT0}, {sT1}, {vT0}"); e(f"v_lshlrev_b32 {vT0}, 7, {vT0}"); e(f"v_add_u32 {vPH}, {FH_OFF}, {vT0}")
    if cfg.rho: e(f"s_and_b32 {sRHO}, {sJ2}, {cfg.rho-1}"); (e(f"s_lshl_b32 {sRHO}, {sRHO}, 1") if cfg.rho == 2 else None)
    else: e(f"s_mov_b32 {sRHO}, 0")
    for i in range(4):
        e(f"s_add_u32 {sT0}, {sW}, {1+i}"); e(f"s_and_b32 {sT1}, {sT0}, 3")
        if i < 3:
            e(f"s_mul_i32 {sT2}, {sT1}, {3*5120}"); e(f"s_add_u32 {sT2}, {sT2}, {i*5120}"); e(f"v_add_u32 {vRDW[i]}, {sT2}, {vL16}")
        e(f"s_add_u32 {sT0}, {sT0}, {sRHO}"); e(f"s_and_b32 {sT0}, {sT0}, 3")
        e(f"s_lshl_b32 {sT1}, {sB2}, 2"); e(f"s_add_u32 {sT1}, {sT1}, {sT0}"); e(f"s_mul_i32 {sT1}, {sT1}, 48")
        e(f"s_mul_i32 {sT2}, {sW}, 12"); e(f"s_add_u32 {sT1}, {sT1}, {sT2}"); e(f"s_lshl_b32 {sT1}, {sT1}, 10")
        if H_OFF: e(f"s_add_u32 {sT1}, {sT1}, {H_OFF}")
        e(f"v_add_u32 {vH[i]}, {sT1}, {vL16}")
        if i == 3:
            e(f"s_lshl_b32 {sOUT}, {sB2}, 2"); e(f"s_add_u32 {sOUT}, {sOUT}, {sT0}"); e(f"s_mul_i32 {sOUT}, {sOUT}, {16*1280}")
            e(f"s_mul_i32 {sT2}, {sJ2}, 160"); e(f"s_add_u32 {sOUT}, {sOUT}, {sT2}")
    e(f"s_mul_i32 {sT2}, {sW}, {3*5120}"); e(f"v_add_u32 {vRDR}, {sT2}, {vL16}")
    e(f"v_and_b32 {vT0}, 15, {vL}"); e(f"v_mul_u32_u24 {vT0}, 1280, {vT0}"); e(f"v_lshrrev_b32 {vT1}, 4, {vL}"); e(f"v_lshl_add_u32 {vOUT}, {vT1}, 3, {vT0}")
    e(f"s_lshl_b32 {sW2B}, {sJ2}, 2"); e(f"s_add_u32 {sW2B}, {sW2B}, {sW}"); e(f"s_mul_i32 {sW2B}, {sW2B}, {60*1024}"); e(f"s_add_u32 {sW2B}, {sW2B}, {W2P_OFF}")
    if cfg.r2 > 1:
        e(f"s_and_b32 {sT0}, {sB2}, {cfg.r2-1}"); e(f"s_mul_i32 {sT0}, {sT0}, {12//cfg.r2}")
    else: e(f"s_mov_b32 {sT0}, 0")
    for s in range(12):
        e(f"s_mov_b32 s{4+s}, {sT0}")
        if s < 11: e(f"s_add_u32 {sT0}, {sT0}, 1"); e(f"s_cmp_eq_u32 {sT0}, 12"); e(f"s_cselect_b32 {sT0}, 0, {sT0}")

    for s in range(1, R - 1): dma_stage(s)
    def reads(s, q):
        slot = s % R; hi = slot >> 1; base = (slot & 1) * 32768
        e(f"ds_read_b128 {vr(FX+4*q,4)}, v{vRX[hi][q]} offset:{base}")
        for T in range(3):
            for half in range(2):
                off = base + q * 8192 + 2048 + 4 * half * 384 + (64 * T if T != 1 else 0)
                e(f"ds_read_b64_tr_b16 {vr(FW+12*q+4*T+2*half,2)}, v{vRW[hi][T&1]} offset:{off}")
    def mfmas(s, q):
        for T in range(3):
            cc = "0" if (s == 0 and q == 0) else vr(ACC1+16*T,16)
            e(f"v_mfma_f32_32x32x16_bf16 {vr(ACC1+16*T,16)}, {vr(FW+12*q+4*T,4)}, {vr(FX+4*q,4)}, {cc}")
    def w2_loads(blocks):
        for s in blocks:
            e(f"s_mul_i32 {sT0}, s{4+s}, 5120"); e(f"s_add_u32 {sT0}, {sT0}, {sW2B}")
            for t in range(5):
                a = 4 * (5 * s + t)
                if t < 4: g.vmem(f"buffer_load_dwordx4 a[{a}:{a+3}], {vL16}, {SWS}, {sT0} offen offset:{1024*t} sc1", f"w2_{s}")
                else: g.vmem(f"buffer_load_dwordx4 a[{a}:{a+3}], {vL16B}, {SWS}, {sT0} offen sc1", f"w2_{s}")
    FLAGW_STAGE = cfg.flagw
    for s in range(NS):
        if s == FLAGW_STAGE: g.wait_vm("p0st") if ("p0st" in g.vm and g.vm.index("p0st") > max(i for i, t in enumerate(g.vm) if t == f"st{s}")) else g.wait_vm(f"st{s}")
        else: g.wait_vm(f"st{s}")
        e("s_barrier")
        if s in (0, 1, 5, 9): g.stamp()
        if s == FLAGW_STAGE - 2:
            g.vmem(f"buffer_load_dwordx2 {vr(NON,2)}, off, {SDBG}, 0 sc1", "non")
        if s == FLAGW_STAGE:
            if "non" in g.vm: g.wait_vm("non")
            e(f"v_cmp_ne_u32 vcc, 0, v{NON+1}"); e(f"s_mov_b32 {sCNT}, 0"); e("s_nop 0"); e("s_cbranch_vccnz Lnon_ok")
            g.label("Lnon")
            e("s_sleep 2"); e(f"buffer_load_dwordx2 {vr(NON,2)}, off, {SDBG}, 0 sc1"); e("s_waitcnt vmcnt(0)")
            e(f"v_cmp_ne_u32 vcc, 0, v{NON+1}")
            e(f"s_add_u32 {sCNT}, {sCNT}, 1"); e(f"s_cmp_gt_u32 {sCNT}, 100000"); e("s_cbranch_scc1 Lnon_ok")
            e("s_cbranch_vccz Lnon")
            g.label("Lnon_ok")
            e(f"s_cmp_lg_u32 {sW}, 0"); e(f"s_cbranch_scc1 Lnf1")
            e(f"s_lshl_b32 {sT0}, {sL}, 7"); e(f"s_add_u32 {sT0}, {sT0}, {FW_OFF}")
            e("s_mov_b64 exec, 1"); e(f"buffer_store_dwordx2 {vr(NON,2)}, off, {SWS}, {sT0} sc1"); e("s_mov_b64 exec, -1")
            g.label("Lnf1")
        if s == 0:
            for t2 in range(2):
                for half in range(2):
                    e(f"ds_read_b64_tr_b16 {vr(P0F+4*t2+2*half,2)}, {vP0R} offset:{half*1024+t2*32}")
            e("s_waitcnt lgkmcnt(0)")
            g.vmem(f"buffer_store_dwordx4 {vr(P0F,4)}, {vL16}, {SWS}, {sP0A} offen sc1", "p0st")
            g.vmem(f"buffer_store_dwordx4 {vr(P0F+4,4)}, {vL16}, {SWS}, {sP0B} offen sc1", "p0st")
        reads(s, 0); reads(s, 1)
        if s + R - 1 < NS: dma_stage(s + R - 1)
        e("s_waitcnt lgkmcnt(7)"); mfmas(s, 0); reads(s, 2)
        e("s_waitcnt lgkmcnt(7)"); mfmas(s, 1); reads(s, 3)
        e("s_waitcnt lgkmcnt(7)"); mfmas(s, 2)
        e("s_waitcnt lgkmcnt(0)"); mfmas(s, 3)
    g.stamp()
    e("s_nop 7"); e("s_nop 7")
    PK = FX
    for T in range(3):
        for i in range(8):
            e(f"v_cvt_pk_bf16_f32 v{PK+8*T+i}, v{ACC1+16*T+2*i}, v{ACC1+16*T+2*i+1}")
        for i in range(8):
            e(f"v_pk_max_i16 v{PK+8*T+i}, v{PK+8*T+i}, 0")
        for c in range(2):
            g.vmem(f"buffer_store_dwordx4 {vr(PK+8*T+4*c,4)}, {vHST}, {SWS}, {sHST} offen offset:{T*1024+c*512} sc1", "hst")
    def poll(name, vaddr):
        e(f"s_mov_b32 {sCNT}, 0")
        e(f"s_branch L{name}_go")
        g.label(f"L{name}")
        e(f"s_sleep {cfg.sleep}")
        g.label(f"L{name}_go")
        e(f"buffer_load_dwordx2 {vr(POLL,2)}, {vaddr}, {SWS}, 0 offen sc1")
        g.wait_vm0()
        e(f"v_cmp_ne_u64 vcc, {vr(POLL,2)}, {vr(NON,2)}")
        e(f"s_add_u32 {sCNT}, {sCNT}, 1"); e(f"s_cmp_gt_u32 {sCNT}, 100000"); e(f"s_cbranch_scc1 L{name}_done")
        e(f"s_cbranch_vccnz L{name}")
        g.label(f"L{name}_done")
    poll("pw", vPW)
    g.stamp()
    e("s_barrier")
    e(f"s_cmp_lg_u32 {sW}, 0"); e(f"s_cbranch_scc1 Lnf2")
    e(f"s_lshl_b32 {sT0}, {sL}, 7"); e(f"s_add_u32 {sT0}, {sT0}, {FH_OFF}")
    e("s_mov_b64 exec, 1"); e(f"buffer_store_dwordx2 {vr(NON,2)}, off, {SWS}, {sT0} sc1"); e("s_mov_b64 exec, -1")
    g.label("Lnf2")
    w2_loads(range(12))
    g.stamp()
    poll("ph", vPH)
    g.stamp()
    for s in range(12): e(f"s_lshl_b32 s{4+s}, s{4+s}, 10")
    def hload(i, s): g.vmem(f"buffer_load_dwordx4 {vr(HB+4*s,4)}, {vH[i]}, {SWS}, s{4+s} offen sc1", f"h{i}_{s}")
    for s in range(12): hload(0, s)
    for i in range(4):
        acc = ACC2 + 20 * (i & 1)
        for s in range(12):
            g.wait_vm(f"h{i}_{s}")
            if i == 0 and s == 0: g.stamp()
            for t in range(5):
                a = 4 * (5 * s + t)
                cc = "0" if s == 0 else vr(acc+4*t,4)
                e(f"v_mfma_f32_16x16x32_bf16 {vr(acc+4*t,4)}, a[{a}:{a+3}], {vr(HB+4*s,4)}, {cc}")
            if i < 3: hload(i + 1, s)
            if i > 0 and s == 1:
                pacc = ACC2 + 20 * ((i - 1) & 1)
                for t in range(5): e(f"ds_write_b128 {vRDW[i-1]}, {vr(pacc+4*t,4)} offset:{1024*t}")
            if i == 3 and s == 5:
                e("s_waitcnt lgkmcnt(0)"); e("s_barrier")
                for k in range(3):
                    for t in range(5): e(f"ds_read_b128 {vr(PR+20*k+4*t,4)}, {vRDR} offset:{5120*k+1024*t}")
            if i == 3 and s == 9:
                e("s_waitcnt lgkmcnt(0)")
                for r in range(20): e(f"v_add_f32 v{PR+r}, v{PR+r}, v{PR+20+r}")
            if i == 3 and s == 10:
                for r in range(20): e(f"v_add_f32 v{PR+r}, v{PR+r}, v{PR+40+r}")
    g.stamp()
    acc = ACC2 + 20
    e("s_nop 7")
    for t in range(5):
        for r in range(4): e(f"v_add_f32 v{PR+4*t+r}, v{PR+4*t+r}, v{acc+4*t+r}")
        e(f"v_cvt_pk_bf16_f32 v{PR+20+2*t}, v{PR+4*t}, v{PR+4*t+1}"); e(f"v_cvt_pk_bf16_f32 v{PR+21+2*t}, v{PR+4*t+2}, v{PR+4*t+3}")
        e(f"buffer_store_dwordx2 {vr(PR+20+2*t,2)}, {vOUT}, {SOUT}, {sOUT} offen offset:{32*t}")
    if cfg.prof:
        e("s_waitcnt vmcnt(0)"); g.stamp(); e("s_memrealtime s[62:63]"); e("s_waitcnt lgkmcnt(0)")
        e(f"s_lshl_b32 {sT0}, s2, 2"); e(f"s_add_u32 {sT0}, {sT0}, {sW}"); e(f"s_lshl_b32 {sT0}, {sT0}, 7"); e(f"s_add_u32 {sT0}, {sT0}, {PROF_OFF}")
        e("s_mov_b64 exec, 1")
        regs = ["s60", "s62"] + [f"s{64+2*i}" for i in range(g.nstamp)]
        for i, r in enumerate(regs):
            e(f"v_mov_b32 v24, {r}"); e(f"buffer_store_dword v24, off, {SWS}, {sT0} offset:{4*i}"); e("s_nop 1")
    if cfg.prof == 2:
        e("v_mov_b32 v24, s62"); e(f"buffer_atomic_umax v24, off, {SDBG}, 0 offset:8 sc1"); e("s_nop 1")
        e("s_not_b32 s60, s60"); e("v_mov_b32 v24, s60"); e(f"buffer_atomic_umax v24, off, {SDBG}, 0 offset:12 sc1"); e("s_nop 1")
        e(f"s_cmp_lg_u32 s2, 77"); e("s_cbranch_scc1 Lend"); e(f"s_cmp_lg_u32 {sW}, 1"); e("s_cbranch_scc1 Lend")
        for i in range(1, 13):
            e(f"s_sub_u32 {sT1}, s{64+2*(i+1)}, s64"); e(f"v_mov_b32 v24, {sT1}"); e(f"buffer_store_dword v24, off, {SDBG}, 0 offset:{12+4*i}"); e("s_nop 1")
    if cfg.delay:
        e(f"s_mov_b32 {sCNT}, 0"); g.label("Ldel"); e("s_nop 15"); e("s_nop 15"); e("s_nop 15"); e("s_nop 15"); e(f"s_add_u32 {sCNT}, {sCNT}, 1"); e(f"s_cmp_lt_u32 {sCNT}, {cfg.delay}"); e("s_cbranch_scc1 Ldel")
    g.label("Lend")
    body = "\n".join(g.L)
    return f"""{HDR}; @launch grid=(256,1,1) block=(256,1,1) lds={lds_bytes}
.amdgcn_target "amdgcn-amd-amdhsa--gfx950"
.text
.globl {KN}
.p2align 8
.type {KN},@function
{KN}:
{body}
    s_endpgm
.section .rodata,"a"
.p2align 6
.amdhsa_kernel {KN}
  .amdhsa_next_free_vgpr 496
  .amdhsa_next_free_sgpr 102
  .amdhsa_accum_offset 256
  .amdhsa_group_segment_fixed_size 0
  .amdhsa_kernarg_size 48
  .amdhsa_user_sgpr_count 2
  .amdhsa_user_sgpr_kernarg_segment_ptr 1
  .amdhsa_system_sgpr_workgroup_id_x 1
.end_amdhsa_kernel
"""

if __name__ == "__main__":
    ap = argparse.ArgumentParser()
    ap.add_argument("-o", default="k.s"); ap.add_argument("--prof", type=int, default=0)
    ap.add_argument("--p1", default="B"); ap.add_argument("--p2", default="B")
    ap.add_argument("--r1", type=int, default=1); ap.add_argument("--r2", type=int, default=1); ap.add_argument("--rho", type=int, default=0)
    ap.add_argument("--delay", type=int, default=0); ap.add_argument("--flagw", type=int, default=4); ap.add_argument("--sleep", type=int, default=2)
    cfg = ap.parse_args()
    open(cfg.o, "w").write(gen(cfg))
```

```python
import sys, argparse

KN = "standalone__dense_activation_relu__prompt_kernel"
HDR = """; Kernarg layout for this problem (48 bytes, ptrs only, base s[0:1]):
"""
H_OFF = 0
W2P_OFF = 6 << 20
FW_OFF = W2P_OFF + (1920 << 10)
FH_OFF = FW_OFF + 32768
PROF_OFF = 0x8000000
WS_USED = 0x10000000

class G:
    def __init__(s, cfg):
        s.L = []; s.vm = []; s.cfg = cfg; s.nstamp = 0
    def e(s, t): s.L.append("    " + t)
    def label(s, n): s.L.append(n + ":")
    def vmem(s, t, tag): s.e(t); s.vm.append(tag)
    def wait_vm(s, *tags):
        idxs = [i for i, t in enumerate(s.vm) if t in tags]
        if not idxs: return
        idx = max(idxs)
        n = len(s.vm) - 1 - idx
        assert n <= 63, n
        s.e(f"s_waitcnt vmcnt({n})")
        s.vm = s.vm[idx + 1:]
    def stamp(s):
        if s.cfg.prof:
            r = 64 + 2 * s.nstamp; assert r + 1 < 100
            s.e(f"s_memtime s[{r}:{r+1}]"); s.nstamp += 1

SX, SW1, SW2, SOUT, SDBG, SWS = "s[16:19]", "s[20:23]", "s[24:27]", "s[28:31]", "s[32:35]", "s[36:39]"
sW, sB1, sJ1, sB2, sJ2, sL = "s40", "s41", "s42", "s43", "s44", "s45"
sXB, sWB, sKS, sT0, sT1, sT2, sM0 = "s46", "s47", "s48", "s49", "s50", "s51", "s52"
sHST, sRHO, sCNT, sP0A, sP0B, sW2B, sOUT = "s53", "s54", "s55", "s56", "s57", "s58", "s59"
sDX, sDW, sDW2 = "s0", "s1", "s3"
vL = "v1"
vX = ["v2", "v3"]; vW = ["v4", "v5", "v6"]; vP0 = "v7"
vRX = [[8, 9, 10, 11], [12, 13, 14, 15], [251, 252, 253, 254]]; vRW = [[16, 17], [18, 19], [31, 255]]
vL16, vHST, vOUT, vPW, vT0, vT1 = "v20", "v21", "v22", "v23", "v24", "v25"
vRDW = ["v26", "v27", "v28"]; vRDR, vP0R = "v29", "v30"
ACC1 = 32; FX = 80; FW = 96; HB = 144; ACC2 = 192; P0F = 232
vL16B = "v240"; vH = ["v241", "v242", "v243", "v244"]; vT2 = "v245"; POLL = 246; NON = 248; vPH = "v250"
PR = 32

def vr(a, n): return f"v[{a}:{a+n-1}]"

def gen(cfg):
    g = G(cfg); e = g.e
    NS = 10; R = cfg.R
    LDS_P0 = 4 * 32768
    lds_bytes = 4 * 32768 + 8192 if R == 4 else 5 * 32768
    e("s_cmp_ge_u32 s2, 256"); e("s_cbranch_scc1 Lend")
    e("s_load_dwordx4 s[4:7], s[0:1], 0"); e("s_load_dwordx4 s[8:11], s[0:1], 16"); e("s_load_dwordx4 s[12:15], s[0:1], 32")
    g.stamp()
    if cfg.prof: e("s_memrealtime s[60:61]")
    e("v_lshrrev_b32 v24, 6, v0"); e(f"v_and_b32 {vL}, 63, v0"); e("s_nop 0"); e(f"v_readfirstlane_b32 {sW}, v24")
    e(f"s_and_b32 {sT0}, s2, 7"); e(f"s_lshr_b32 {sT1}, s2, 3")
    def part(kind, sb, sj):
        if kind == "A":
            e(f"s_lshl_b32 {sb}, {sT0}, 2"); e(f"s_lshr_b32 {sT2}, {sT1}, 3"); e(f"s_add_u32 {sb}, {sb}, {sT2}"); e(f"s_and_b32 {sj}, {sT1}, 7")
        else:
            e(f"s_lshr_b32 {sb}, {sT0}, 1"); e(f"s_lshl_b32 {sb}, {sb}, 3"); e(f"s_lshr_b32 {sT2}, {sT1}, 2"); e(f"s_add_u32 {sb}, {sb}, {sT2}")
            e(f"s_and_b32 {sj}, {sT0}, 1"); e(f"s_lshl_b32 {sj}, {sj}, 2"); e(f"s_and_b32 {sT2}, {sT1}, 3"); e(f"s_add_u32 {sj}, {sj}, {sT2}")
    part(cfg.p1, sB1, sJ1); part(cfg.p2, sB2, sJ2)
    if cfg.r1 > 1:
        e(f"s_add_u32 {sKS}, {sB1}, {sJ1}")
        if cfg.r1 in (2, 4, 8):
            e(f"s_and_b32 {sKS}, {sKS}, {cfg.r1-1}"); e(f"s_mul_i32 {sKS}, {sKS}, 10"); e(f"s_lshr_b32 {sKS}, {sKS}, {cfg.r1.bit_length()-1}")
        elif cfg.r1 == 3:
            e(f"s_mul_i32 {sT2}, {sKS}, 86"); e(f"s_lshr_b32 {sT2}, {sT2}, 8"); e(f"s_mul_i32 {sT2}, {sT2}, 3"); e(f"s_sub_u32 {sKS}, {sKS}, {sT2}")
            e(f"s_mul_i32 {sKS}, {sKS}, 860"); e(f"s_lshr_b32 {sKS}, {sKS}, 8")
        elif cfg.r1 == 5:
            e(f"s_mul_i32 {sT2}, {sKS}, 52"); e(f"s_lshr_b32 {sT2}, {sT2}, 8"); e(f"s_mul_i32 {sT2}, {sT2}, 5"); e(f"s_sub_u32 {sKS}, {sKS}, {sT2}")
            e(f"s_lshl_b32 {sKS}, {sKS}, 1")
    else:
        e(f"s_mov_b32 {sKS}, 0")
    if cfg.xo:
        e(f"s_lshr_b32 {sT2}, {sT0}, 1"); e(f"s_and_b32 {sXB}, {sT0}, 1"); e(f"s_xor_b32 {sT2}, {sT2}, {sXB}")
        e(f"s_mul_i32 {sT2}, {sT2}, {cfg.xo}"); e(f"s_lshr_b32 {sT2}, {sT2}, 2"); e(f"s_add_u32 {sKS}, {sKS}, {sT2}")
        e(f"s_sub_u32 {sT2}, {sKS}, 10"); e(f"s_cmp_ge_u32 {sKS}, 10"); e(f"s_cselect_b32 {sKS}, {sT2}, {sKS}")
    e(f"s_lshl_b32 {sL}, {sB1}, 3"); e(f"s_add_u32 {sL}, {sL}, {sJ1}")
    e(f"s_mul_i32 {sXB}, {sB1}, {64*1280}"); e(f"s_mul_i32 {sWB}, {sJ1}, 384")
    e(f"s_lshl_b32 {sM0}, {sW}, 13")
    e(f"v_lshrrev_b32 {vT0}, 3, {vL}"); e(f"s_lshl_b32 {sT2}, {sW}, 4"); e(f"v_add_u32 {vT0}, {sT2}, {vT0}")
    e(f"v_mul_u32_u24 {vT0}, 1280, {vT0}")
    e(f"v_and_b32 {vT1}, 7, {vL}"); e(f"v_lshrrev_b32 {vT2}, 4, {vL}"); e(f"v_xor_b32 {vT1}, {vT1}, {vT2}")
    e(f"v_lshl_add_u32 {vX[0]}, {vT1}, 4, {vT0}")
    e(f"v_xor_b32 {vT1}, 4, {vT1}"); e(f"v_lshl_add_u32 {vX[1]}, {vT1}, 4, {vT0}"); e(f"v_add_u32 {vX[1]}, {8*1280-1024}, {vX[1]}")
    for i in range(3):
        e(f"v_add_u32 {vT0}, {64*i}, {vL}"); e(f"v_mul_u32_u24 {vT1}, 171, {vT0}"); e(f"v_lshrrev_b32 {vT1}, 12, {vT1}")
        e(f"v_mul_u32_u24 {vT2}, 24, {vT1}"); e(f"v_sub_u32 {vT0}, {vT0}, {vT2}")
        e(f"v_and_b32 {vT2}, 2, {vT1}"); e(f"v_lshlrev_b32 {vT2}, 1, {vT2}"); e(f"v_xor_b32 {vT0}, {vT0}, {vT2}")
        e(f"v_add_u32 {vT1}, {sT2}, {vT1}"); e(f"v_mul_u32_u24 {vT1}, 3072, {vT1}")
        e(f"v_lshl_add_u32 {vW[i]}, {vT0}, 4, {vT1}")
        if i: e(f"v_subrev_u32 {vW[i]}, {1024*i}, {vW[i]}")
    e(f"v_lshrrev_b32 {vT0}, 4, {vL}"); e(f"s_lshl_b32 {sT2}, {sW}, 3"); e(f"v_add_u32 {vT0}, {sT2}, {vT0}"); e(f"v_mul_u32_u24 {vT0}, 1280, {vT0}")
    e(f"v_and_b32 {vT1}, 15, {vL}"); e(f"v_lshl_add_u32 {vP0}, {vT1}, 4, {vT0}")
    e(f"s_sub_u32 {sP0A}, {sL}, 16"); e(f"s_cmp_lt_u32 {sL}, 240"); e(f"s_cselect_b32 {sP0A}, {sL}, {sP0A}")
    e(f"s_mul_i32 {sP0B}, {sP0A}, 1366"); e(f"s_lshr_b32 {sP0B}, {sP0B}, 16")
    e(f"s_mul_i32 {sT2}, {sP0B}, 48"); e(f"s_sub_u32 {sP0A}, {sP0A}, {sT2}")
    e(f"s_mul_i32 {sT2}, {sP0A}, {32*1280}"); e(f"s_lshl_b32 {sT0}, {sP0B}, 8"); e(f"s_add_u32 {sT0}, {sT0}, {sT2}")
    e(f"s_add_u32 {sT1}, {sT0}, {4*1280-1024}")
    for srd, n in ((16, 2621440), (20, 1966080), (24, 1966080), (28, 2621440), (32, 256), (36, WS_USED)):
        e(f"s_mov_b32 s{srd+2}, {n}"); e(f"s_mov_b32 s{srd+3}, 0x00020000")
    e(f"s_lshl_b32 {sT2}, {sW}, 11"); e(f"s_add_u32 m0, {sT2}, {LDS_P0}")
    e("s_waitcnt lgkmcnt(0)")
    for srd, p in ((16, 4), (20, 6), (24, 8), (28, 10), (32, 12), (36, 14)):
        e(f"s_mov_b64 s[{srd}:{srd+1}], s[{p}:{p+1}]")
    g.stamp()
    def dma_groups(s):
        slot = (s % R) * 32768; tag = f"st{s}"
        gr = []
        gr.append(([f"s_lshl_b32 {sDX}, {sKS}, 7", f"s_add_u32 m0, {sM0}, {slot}", f"s_add_u32 {sDX}, {sDX}, {sXB}"], f"buffer_load_dwordx4 {vX[0]}, {SX}, {sDX} offen lds", tag))
        gr.append(([f"s_mul_i32 {sDW}, {sKS}, {64*3072}"], f"buffer_load_dwordx4 {vX[1]}, {SX}, {sDX} offen offset:1024 lds", tag))
        gr.append(([f"s_add_u32 m0, {sM0}, {slot+2048}", f"s_add_u32 {sDW}, {sDW}, {sWB}"], f"buffer_load_dwordx4 {vW[0]}, {SW1}, {sDW} offen lds", tag))
        gr.append(([f"s_add_u32 {sKS}, {sKS}, 1"], f"buffer_load_dwordx4 {vW[1]}, {SW1}, {sDW} offen offset:1024 lds", tag))
        gr.append(([f"s_cmp_eq_u32 {sKS}, 10", f"s_cselect_b32 {sKS}, 0, {sKS}"], f"buffer_load_dwordx4 {vW[2]}, {SW1}, {sDW} offen offset:2048 lds", tag))
        gr.append(([f"s_add_u32 m0, {sM0}, {slot+2048+3072}", f"s_add_u32 {sDW2}, {sDW}, {8*3072}"], f"buffer_load_dwordx4 {vW[0]}, {SW1}, {sDW2} offen lds", tag))
        gr.append(([], f"buffer_load_dwordx4 {vW[1]}, {SW1}, {sDW2} offen offset:1024 lds", tag))
        gr.append(([], f"buffer_load_dwordx4 {vW[2]}, {SW1}, {sDW2} offen offset:2048 lds", tag))
        return gr
    def issue(gr):
        for t in gr[0]: e(t)
        g.vmem(gr[1], gr[2])
    if cfg.p0first:
        g.vmem(f"buffer_load_dwordx4 {vP0}, {SW2}, {sT0} offen lds", "p0")
        g.vmem(f"buffer_load_dwordx4 {vP0}, {SW2}, {sT1} offen offset:1024 lds", "p0")
        for gr in dma_groups(0): issue(gr)
    else:
        for gr in dma_groups(0): issue(gr)
        e(f"s_add_u32 m0, {sT2}, {LDS_P0}"); e("s_nop 0")
        g.vmem(f"buffer_load_dwordx4 {vP0}, {SW2}, {sT0} offen lds", "p0")
        g.vmem(f"buffer_load_dwordx4 {vP0}, {SW2}, {sT1} offen offset:1024 lds", "p0")
    e(f"s_or_b32 {sT0}, s2, {sW}"); e("s_cbranch_scc1 Lnn")
    e("s_memrealtime s[100:101]"); e("s_waitcnt lgkmcnt(0)"); e("s_bitset1_b32 s101, 31")
    e(f"v_mov_b32 v{NON}, s100"); e(f"v_mov_b32 v{NON+1}, s101")
    e("s_mov_b64 exec, 1"); e(f"buffer_store_dwordx2 {vr(NON,2)}, off, {SDBG}, 0 sc1"); e("s_mov_b64 exec, -1")
    g.label("Lnn")
    g.stamp()
    e(f"s_mov_b32 {sT0}, {sP0A}"); e(f"s_lshl_b32 {sT1}, {sP0B}, 3"); e(f"s_lshl_b32 {sT2}, {sW}, 1"); e(f"s_add_u32 {sT1}, {sT1}, {sT2}")
    for t2, dst in ((0, sP0A), (1, sP0B)):
        if t2: e(f"s_add_u32 {sT1}, {sT1}, 1")
        e(f"s_mul_i32 {sT2}, {sT1}, 52"); e(f"s_lshr_b32 {sT2}, {sT2}, 8")
        e(f"s_mul_i32 {dst}, {sT2}, 235"); e(f"s_add_u32 {dst}, {dst}, {sT1}")
        e(f"s_mul_i32 {sT2}, {sT0}, 5"); e(f"s_add_u32 {dst}, {dst}, {sT2}")
        e(f"s_lshl_b32 {dst}, {dst}, 10"); e(f"s_add_u32 {dst}, {dst}, {W2P_OFF}")
    e(f"v_lshlrev_b32 {vL16}, 4, {vL}"); e(f"v_add_u32 {vL16B}, 4096, {vL16}")
    e(f"s_and_b32 {sT0}, {sW}, 1"); e(f"s_lshr_b32 {sT1}, {sW}, 1")
    e(f"v_bfe_u32 {vT0}, {vL}, 4, 1"); e(f"s_lshl_b32 {sT2}, {sT0}, 1"); e(f"v_add_u32 {vT0}, {sT2}, {vT0}"); e(f"v_lshlrev_b32 {vT0}, 13, {vT0}")
    e(f"v_and_b32 {vT1}, 15, {vL}"); e(f"v_lshl_add_u32 {vT0}, {vT1}, 7, {vT0}")
    e(f"v_bfe_u32 {vT1}, {vL}, 1, 3"); e(f"v_lshrrev_b32 {vT2}, 5, {vL}"); e(f"v_xor_b32 {vT1}, {vT1}, {vT2}")
    e(f"v_lshl_add_u32 v{vRX[0][0]}, {vT1}, 4, {vT0}")
    for q in range(1, 4): e(f"v_xor_b32 v{vRX[0][q]}, {32*q}, v{vRX[0][0]}")
    for hi in range(1, (R + 1) // 2):
        for q in range(4): e(f"v_add_u32 v{vRX[hi][q]}, {hi*0x10000}, v{vRX[0][q]}")
    e(f"v_lshrrev_b32 {vT0}, 5, {vL}"); e(f"v_lshlrev_b32 {vT0}, 3, {vT0}"); e(f"v_bfe_u32 {vT1}, {vL}, 2, 2"); e(f"v_add_u32 {vT0}, {vT0}, {vT1}")
    e(f"v_mul_u32_u24 {vT0}, 384, {vT0}")
    e(f"v_bfe_u32 {vT1}, {vL}, 4, 1"); e(f"v_lshl_add_u32 {vT0}, {vT1}, 5, {vT0}")
    e(f"v_and_b32 {vT1}, 1, {vL}"); e(f"v_lshl_add_u32 {vT0}, {vT1}, 4, {vT0}")
    e(f"v_bfe_u32 {vT1}, {vL}, 1, 1"); e(f"v_lshl_add_u32 {vT0}, {vT1}, 3, {vT0}")
    e(f"s_mul_i32 {sT2}, {sT1}, 3"); e(f"v_bfe_u32 {vT1}, {vL}, 3, 1")
    e(f"v_xor_b32 {vT2}, {sT2}, {vT1}"); e(f"v_lshl_add_u32 v{vRW[0][0]}, {vT2}, 6, {vT0}")
    e(f"s_add_u32 {sT2}, {sT2}, 1"); e(f"v_xor_b32 {vT2}, {sT2}, {vT1}"); e(f"v_lshl_add_u32 v{vRW[0][1]}, {vT2}, 6, {vT0}")
    for hi in range(1, (R + 1) // 2):
        for p in range(2): e(f"v_add_u32 v{vRW[hi][p]}, {hi*0x10000}, v{vRW[0][p]}")
    e(f"v_bfe_u32 {vT0}, {vL}, 4, 1"); e(f"v_mul_u32_u24 {vT0}, 49152, {vT0}"); e(f"v_and_b32 {vT1}, 15, {vL}"); e(f"v_lshl_add_u32 {vT0}, {vT1}, 4, {vT0}")
    e(f"v_lshrrev_b32 {vT1}, 5, {vL}"); e(f"v_lshl_add_u32 {vHST}, {vT1}, 8, {vT0}")
    e(f"s_lshl_b32 {sHST}, {sB1}, 1"); e(f"s_add_u32 {sHST}, {sHST}, {sT0}"); e(f"s_mul_i32 {sHST}, {sHST}, 96")
    e(f"s_mul_i32 {sT2}, {sJ1}, 6"); e(f"s_add_u32 {sHST}, {sHST}, {sT2}"); e(f"s_mul_i32 {sT2}, {sT1}, 3"); e(f"s_add_u32 {sHST}, {sHST}, {sT2}")
    e(f"s_lshl_b32 {sHST}, {sHST}, 10")
    e(f"v_lshrrev_b32 {vT0}, 4, {vL}"); e(f"v_lshlrev_b32 {vT0}, 3, {vT0}"); e(f"v_bfe_u32 {vT1}, {vL}, 2, 2"); e(f"v_add_u32 {vT0}, {vT0}, {vT1}")
    e(f"v_lshlrev_b32 {vT0}, 8, {vT0}"); e(f"v_and_b32 {vT1}, 3, {vL}"); e(f"v_lshl_add_u32 {vT0}, {vT1}, 3, {vT0}")
    e(f"s_lshl_b32 {sT2}, {sW}, 6"); e(f"s_add_u32 {sT2}, {sT2}, {LDS_P0}"); e(f"v_add_u32 {vP0R}, {sT2}, {vT0}")
    for gr in dma_groups(1): issue(gr)
    e(f"s_mul_i32 {sT0}, {sJ2}, 5"); e(f"s_add_u32 {sT1}, {sT0}, 4"); e(f"s_lshr_b32 {sT0}, {sT0}, 3"); e(f"s_lshr_b32 {sT1}, {sT1}, 3")
    e(f"s_mul_i32 {sT0}, {sT0}, 48"); e(f"s_mul_i32 {sT1}, {sT1}, 48"); e(f"s_mul_i32 {sT2}, {sW}, 12")
    e(f"s_add_u32 {sT0}, {sT0}, {sT2}"); e(f"s_add_u32 {sT1}, {sT1}, {sT2}"); e(f"s_sub_u32 {sT1}, {sT1}, 12")
    e(f"v_add_u32 {vT1}, {sT0}, {vL}"); e(f"v_add_u32 {vT2}, {sT1}, {vL}")
    e(f"v_cmp_gt_u32 vcc, 12, {vL}"); e("s_nop 1"); e(f"v_cndmask_b32 {vPW}, {vT2}, {vT1}, vcc")
    e(f"v_mov_b32 {vT1}, {sT0}"); e(f"v_cmp_gt_u32 vcc, 24, {vL}"); e("s_nop 1"); e(f"v_cndmask_b32 {vPW}, {vT1}, {vPW}, vcc")
    e(f"v_lshlrev_b32 {vPW}, 7, {vPW}"); e(f"v_add_u32 {vPW}, {FW_OFF}, {vPW}")
    e(f"s_lshl_b32 {sT1}, {sB2}, 3"); e(f"s_lshl_b32 {sT2}, {sW}, 1"); e(f"s_add_u32 {sT1}, {sT1}, {sT2}")
    e(f"v_and_b32 {vT0}, 1, {vL}"); e(f"v_add_u32 {vT0}, {sT1}, {vT0}"); e(f"v_lshlrev_b32 {vT0}, 7, {vT0}"); e(f"v_add_u32 {vPH}, {FH_OFF}, {vT0}")
    if cfg.rho:
        e(f"s_and_b32 {sRHO}, {sJ2}, {cfg.rho-1}")
        if cfg.rho == 2: e(f"s_lshl_b32 {sRHO}, {sRHO}, 1")
    else: e(f"s_mov_b32 {sRHO}, 0")
    for i in range(4):
        e(f"s_add_u32 {sT0}, {sW}, {1+i}"); e(f"s_and_b32 {sT1}, {sT0}, 3")
        if i < 3:
            e(f"s_mul_i32 {sT2}, {sT1}, {3*5120}"); e(f"s_add_u32 {sT2}, {sT2}, {i*5120}"); e(f"v_add_u32 {vRDW[i]}, {sT2}, {vL16}")
        e(f"s_add_u32 {sT0}, {sT0}, {sRHO}"); e(f"s_and_b32 {sT0}, {sT0}, 3")
        e(f"s_lshl_b32 {sT1}, {sB2}, 2"); e(f"s_add_u32 {sT1}, {sT1}, {sT0}"); e(f"s_mul_i32 {sT1}, {sT1}, 48")
        e(f"s_mul_i32 {sT2}, {sW}, 12"); e(f"s_add_u32 {sT1}, {sT1}, {sT2}"); e(f"s_lshl_b32 {sT1}, {sT1}, 10")
        e(f"v_add_u32 {vH[i]}, {sT1}, {vL16}")
        if i == 3:
            e(f"s_lshl_b32 {sOUT}, {sB2}, 2"); e(f"s_add_u32 {sOUT}, {sOUT}, {sT0}"); e(f"s_mul_i32 {sOUT}, {sOUT}, {16*1280}")
            e(f"s_mul_i32 {sT2}, {sJ2}, 160"); e(f"s_add_u32 {sOUT}, {sOUT}, {sT2}")
    e(f"s_mul_i32 {sT2}, {sW}, {3*5120}"); e(f"v_add_u32 {vRDR}, {sT2}, {vL16}")
    e(f"v_and_b32 {vT0}, 15, {vL}"); e(f"v_mul_u32_u24 {vT0}, 1280, {vT0}"); e(f"v_lshrrev_b32 {vT1}, 4, {vL}"); e(f"v_lshl_add_u32 {vOUT}, {vT1}, 3, {vT0}")
    e(f"s_lshl_b32 {sW2B}, {sJ2}, 2"); e(f"s_add_u32 {sW2B}, {sW2B}, {sW}"); e(f"s_mul_i32 {sW2B}, {sW2B}, {60*1024}"); e(f"s_add_u32 {sW2B}, {sW2B}, {W2P_OFF}")
    e(f"v_add_u32 {vL16B}, {sW2B}, {vL16B}"); e(f"v_add_u32 {vT2}, {sW2B}, {vL16}")
    if cfg.r2 > 1:
        e(f"s_and_b32 {sT0}, {sB2}, {cfg.r2-1}"); e(f"s_mul_i32 {sT0}, {sT0}, {1024*(12//cfg.r2)}")
    else: e(f"s_mov_b32 {sT0}, 0")
    for s in range(12):
        e(f"s_mov_b32 s{4+s}, {sT0}")
        if s < 11: e(f"s_add_u32 {sT0}, {sT0}, 1024"); e(f"s_cmp_eq_u32 {sT0}, {12*1024}"); e(f"s_cselect_b32 {sT0}, 0, {sT0}")
    vW2A = vT2
    for s in range(2, R - 2): [issue(gr) for gr in dma_groups(s)]

    def w2_groups():
        out = []
        for s in range(12):
            for t in range(5):
                a = 4 * (5 * s + t)
                pre = [f"s_mul_i32 {sDX}, s{4+s}, 5"] if t == 0 else []
                if t < 4: out.append((pre, f"buffer_load_dwordx4 a[{a}:{a+3}], {vW2A}, {SWS}, {sDX} offen offset:{1024*t} sc1", f"w2_{s}"))
                else: out.append((pre, f"buffer_load_dwordx4 a[{a}:{a+3}], {vL16B}, {SWS}, {sDX} offen sc1", f"w2_{s}"))
        return out
    w2q = w2_groups()
    def rd_list(n):
        s, q = divmod(n, 4)
        slot = s % R; hi = slot >> 1; base = (slot & 1) * 32768
        out = [f"ds_read_b128 {vr(FX+4*q,4)}, v{vRX[hi][q]} offset:{base}"]
        for T in range(3):
            for half in range(2):
                off = base + q * 8192 + 2048 + 4 * half * 384 + (64 * T if T != 1 else 0)
                out.append(f"ds_read_b64_tr_b16 {vr(FW+12*q+4*T+2*half,2)}, v{vRW[hi][T&1]} offset:{off}")
        return out
    def mfma1(n, T):
        q = n % 4
        cc = "0" if n == 0 else vr(ACC1+16*T,16)
        e(f"v_mfma_f32_32x32x16_bf16 {vr(ACC1+16*T,16)}, {vr(FW+12*q+4*T,4)}, {vr(FX+4*q,4)}, {cc}")
    def spin(name, load, cmp):
        e(cmp); e(f"s_mov_b32 {sCNT}, 0"); e("s_nop 0"); e(f"s_cbranch_vccz L{name}_ok")
        g.label(f"L{name}")
        e(f"s_sleep {cfg.sleep}"); e(load); e("s_waitcnt vmcnt(0)"); e(cmp)
        e(f"s_add_u32 {sCNT}, {sCNT}, 1"); e(f"s_cmp_gt_u32 {sCNT}, 200000"); e(f"s_cbranch_scc1 L{name}_ok")
        e(f"s_cbranch_vccnz L{name}")
        g.label(f"L{name}_ok")
    def flag_store(name, off):
        e(f"s_cmp_lg_u32 {sW}, 0"); e(f"s_cbranch_scc1 L{name}")
        e(f"s_lshl_b32 {sT0}, {sL}, 7"); e(f"s_add_u32 {sT0}, {sT0}, {off}")
        e("s_mov_b64 exec, 1"); e(f"buffer_store_dwordx2 {vr(NON,2)}, off, {SWS}, {sT0} sc1"); e("s_mov_b64 exec, -1")
        g.label(f"L{name}")
    ld_non = f"buffer_load_dwordx2 {vr(NON,2)}, off, {SDBG}, 0 sc1"; cmp_non = f"v_cmp_eq_u32 vcc, 0, v{NON+1}"
    ld_pw = f"buffer_load_dwordx2 {vr(POLL,2)}, {vPW}, {SWS}, 0 offen sc1"
    ld_ph = f"buffer_load_dwordx2 {vr(POLL,2)}, {vPH}, {SWS}, 0 offen sc1"
    cmp_poll = f"v_cmp_ne_u64 vcc, {vr(POLL,2)}, {vr(NON,2)}"
    pend = []
    w2_ok = [False]; w2_early = [cfg.n0]
    def barrier(s):
        tags = [f"st{s}"]
        if s == 0: tags.append("p0")
        if s == cfg.flagw: tags += ["p0st", "non"]
        if s == cfg.chkw: tags.append("pw")
        assert not pend, pend
        g.wait_vm(*tags)
        e("s_barrier")
        if s in (0, 1, 3, 5, 9): g.stamp()
        if s == 0:
            for t2 in range(2):
                for half in range(2):
                    e(f"ds_read_b64_tr_b16 {vr(P0F+4*t2+2*half,2)}, {vP0R} offset:{half*1024+t2*32}")
            g.vmem(ld_non, "non")
            e("s_waitcnt lgkmcnt(0)")
            g.vmem(f"buffer_store_dwordx4 {vr(P0F,4)}, {vL16}, {SWS}, {sP0A} offen sc1", "p0st")
            g.vmem(f"buffer_store_dwordx4 {vr(P0F+4,4)}, {vL16}, {SWS}, {sP0B} offen sc1", "p0st")
        if s == cfg.flagw:
            spin("non", ld_non, cmp_non); flag_store("nf1", FW_OFF)
        if s == cfg.pollw: g.vmem(ld_pw, "pw")
        if s == cfg.chkw:
            spin("pw", ld_pw, cmp_poll); w2_ok[0] = True
        ns = s + R - 2
        if ns < NS: pend.extend(dma_groups(ns))
    def slot_issue():
        if pend: issue(pend.pop(0))
        elif w2_ok[0] and w2_early[0] > 0 and w2q:
            issue(w2q.pop(0)); w2_early[0] -= 1
    barrier(0)
    for t in rd_list(0): e(t)
    for t in rd_list(1): e(t)
    for _ in range(4): slot_issue()
    for n in range(40):
        s, q = divmod(n, 4)
        if q == 2 and s + 1 < NS: barrier(s + 1)
        e(f"s_waitcnt lgkmcnt({7 if n < 39 else 0})")
        rd = rd_list(n + 2) if n + 2 < 40 else []
        mfma1(n, 0)
        for t in rd[0:3]: e(t)
        mfma1(n, 1)
        for t in rd[3:5]: e(t)
        slot_issue()
        mfma1(n, 2)
        for t in rd[5:7]: e(t)
        slot_issue()
    g.stamp()
    e("s_nop 7"); e("s_nop 3")
    PK = HB
    for T in range(3):
        for i in range(8): e(f"v_cvt_pk_bf16_f32 v{PK+8*T+i}, v{ACC1+16*T+2*i}, v{ACC1+16*T+2*i+1}")
        for i in range(8): e(f"v_pk_max_i16 v{PK+8*T+i}, v{PK+8*T+i}, 0")
        for c in range(2):
            g.vmem(f"buffer_store_dwordx4 {vr(PK+8*T+4*c,4)}, {vHST}, {SWS}, {sHST} offen offset:{T*1024+c*512} sc1", "hst")
    if not w2_ok[0]:
        g.wait_vm("pw"); spin("pw", ld_pw, cmp_poll)
    for _ in range(min(cfg.n1, len(w2q))): issue(w2q.pop(0))
    g.wait_vm("hst")
    g.stamp()
    e("s_barrier")
    flag_store("nf2", FH_OFF)
    for _ in range(max(0, len(w2q) - cfg.n3)): issue(w2q.pop(0))
    g.vmem(ld_ph, "ph")
    g.stamp()
    while w2q: issue(w2q.pop(0))
    g.wait_vm("ph")
    g.stamp()
    spin("ph", ld_ph, cmp_poll)
    g.stamp()
    def hload(i, s): g.vmem(f"buffer_load_dwordx4 {vr(HB+4*s,4)}, {vH[i]}, {SWS}, s{4+s} offen sc1", f"h{i}_{s}")
    for s in range(12): hload(0, s)
    for i in range(4):
        acc = ACC2 + 20 * (i & 1)
        for s in range(12):
            g.wait_vm(f"h{i}_{s}")
            if i == 0 and s == 0: g.stamp()
            for t in range(5):
                a = 4 * (5 * s + t)
                cc = "0" if s == 0 else vr(acc+4*t,4)
                e(f"v_mfma_f32_16x16x32_bf16 {vr(acc+4*t,4)}, a[{a}:{a+3}], {vr(HB+4*s,4)}, {cc}")
                if i > 0 and s == 1:
                    pacc = ACC2 + 20 * ((i - 1) & 1)
                    e(f"ds_write_b128 {vRDW[i-1]}, {vr(pacc+4*t,4)} offset:{1024*t}")
                if i == 3 and s in (5, 6, 7):
                    k = s - 5
                    e(f"ds_read_b128 {vr(PR+20*k+4*t,4)}, {vRDR} offset:{5120*k+1024*t}")
                if i == 3 and s in (9, 10):
                    for r in range(4): e(f"v_add_f32 v{PR+4*t+r}, v{PR+4*t+r}, v{PR+20*(s-8)+4*t+r}")
            if i < 3: hload(i + 1, s)
            if i == 3 and s == 4: e("s_waitcnt lgkmcnt(0)"); e("s_barrier")
            if i == 3 and s == 8: e("s_waitcnt lgkmcnt(0)")
    g.stamp()
    acc = ACC2 + 20
    e("s_nop 3")
    for t in range(5):
        for r in range(4): e(f"v_add_f32 v{PR+4*t+r}, v{PR+4*t+r}, v{acc+4*t+r}")
        e(f"v_cvt_pk_bf16_f32 v{PR+20+2*t}, v{PR+4*t}, v{PR+4*t+1}"); e(f"v_cvt_pk_bf16_f32 v{PR+21+2*t}, v{PR+4*t+2}, v{PR+4*t+3}")
        e(f"buffer_store_dwordx2 {vr(PR+20+2*t,2)}, {vOUT}, {SOUT}, {sOUT} offen offset:{32*t} {cfg.outsc}")
    if cfg.prof:
        e("s_waitcnt vmcnt(0)"); g.stamp(); e("s_memrealtime s[62:63]"); e("s_waitcnt lgkmcnt(0)")
        e(f"s_lshl_b32 {sT0}, s2, 2"); e(f"s_add_u32 {sT0}, {sT0}, {sW}"); e(f"s_lshl_b32 {sT0}, {sT0}, 7"); e(f"s_add_u32 {sT0}, {sT0}, {PROF_OFF}")
        e("s_mov_b64 exec, 1")
        regs = ["s60", "s62"] + [f"s{64+2*i}" for i in range(g.nstamp)]
        for i, r in enumerate(regs):
            e(f"v_mov_b32 v24, {r}"); e(f"buffer_store_dword v24, off, {SWS}, {sT0} offset:{4*i}"); e("s_nop 1")
    g.label("Lend")
    body = "\n".join(g.L)
    return f"""{HDR}; @launch grid=(256,1,1) block=(256,1,1) lds={lds_bytes}
.amdgcn_target "amdgcn-amd-amdhsa--gfx950"
.text
.globl {KN}
.p2align 8
.type {KN},@function
{KN}:
{body}
    s_endpgm
.section .rodata,"a"
.p2align 6
.amdhsa_kernel {KN}
  .amdhsa_next_free_vgpr 496
  .amdhsa_next_free_sgpr 102
  .amdhsa_accum_offset 256
  .amdhsa_group_segment_fixed_size 0
  .amdhsa_kernarg_size 48
  .amdhsa_user_sgpr_count 2
  .amdhsa_user_sgpr_kernarg_segment_ptr 1
  .amdhsa_system_sgpr_workgroup_id_x 1
.end_amdhsa_kernel
"""

def parser():
    ap = argparse.ArgumentParser()
    ap.add_argument("-o", default="k.s"); ap.add_argument("--prof", type=int, default=0)
    ap.add_argument("--p1", default="B"); ap.add_argument("--p2", default="B")
    for name, d in (("r1", 4), ("r2", 1), ("rho", 0), ("xo", 0), ("R", 4), ("flagw", 2), ("pollw", 6), ("chkw", 8), ("sleep", 2),
                    ("n0", 20), ("n1", 20), ("n3", 10), ("p0first", 1)):
        ap.add_argument("--" + name, type=int, default=d)
    ap.add_argument("--outsc", default="")
    return ap
if __name__ == "__main__":
    cfg = parser().parse_args()
    open(cfg.o, "w").write(gen(cfg))
```

```python
import sys, argparse

KN = "standalone__dense_activation_relu__prompt_kernel"
HDR = """; Kernarg layout for this problem (48 bytes, ptrs only, base s[0:1]):
"""
HBAND = 256 << 10
W2P_OFF = 8 << 20
FW_OFF = W2P_OFF + (1920 << 10)
FH_OFF = FW_OFF + 8192
PROF_OFF = 0x8000000
WS_USED = 0x10000000

class G:
    def __init__(s, cfg):
        s.L = []; s.vm = []; s.lg = []; s.cfg = cfg; s.nstamp = 0; s.lgmax = 15
    def e(s, t): s.L.append("    " + t)
    def label(s, n): s.L.append(n + ":")
    def vmem(s, t, tag): s.e(t); s.vm.append(tag)
    def lds(s, t, tag): s.e(t); s.lg.append(tag); assert len(s.lg) <= 15, s.lg
    def wait_vm(s, *tags):
        idxs = [i for i, t in enumerate(s.vm) if t in tags]
        if not idxs: return
        idx = max(idxs); n = len(s.vm) - 1 - idx
        assert n <= 63, n
        s.e(f"s_waitcnt vmcnt({n})"); s.vm = s.vm[idx + 1:]
    def wait_lg(s, *tags):
        idxs = [i for i, t in enumerate(s.lg) if t in tags]
        if not idxs: return
        idx = max(idxs); n = len(s.lg) - 1 - idx
        s.e(f"s_waitcnt lgkmcnt({n})"); s.lg = s.lg[idx + 1:]
    def wait_lg0(s): s.e("s_waitcnt lgkmcnt(0)"); s.lg = []
    def stamp(s, name):
        if s.cfg.prof and name in s.cfg.stamps:
            r = 76 + 2 * s.nstamp; assert r + 1 < 100
            s.e(f"s_memtime s[{r}:{r+1}] ; {name}"); s.nstamp += 1

SX, SW2, SDBG, SWS, SW1, SOUT = "s[16:19]", "s[20:23]", "s[24:27]", "s[32:35]", "s[36:39]", "s[40:43]"
WSB = "s[32:33]"; sNON = "s[70:71]"
sW, sB1, sJ1, sB2, sJ2, sFW = "s44", "s28", "s29", "s30", "s31", "s45"
sXB, sFH, sKS, sT0, sT1, sT2, sM0 = "s46", "s47", "s48", "s49", "s50", "s51", "s52"
sHST, sTP, sCNT, sP0A, sPWA, sTD, sOUT = "s53", "s54", "s55", "s56", "s57", "s58", "s59"
sDA, sPH, sT3 = "s0", "s1", "s3"
KW = 60
vL = "v1"; vX = ["v2", "v3"]; vW = ["v4", "v5"]; vP0 = "v6"; vL16 = "v7"
vRX = [[8, 9, 10, 11], [12, 13, 14, 15]]; vRW = [16, 17]
vHST, vOUT, vTW, vTR, vT0, vT1, vT2 = "v18", "v19", "v20", "v21", "v22", "v23", "v24"
vRDW = ["v25", "v26", "v27"]; vRDR, vP0R, vW2A, vW2B = "v28", "v29", "v30", "v31"
vH = ["v32", "v33", "v34", "v35"]; NON = 36; vOUT2 = ["v38", "v39", "v40"]; vDUM = "v41"
ACC1 = 48; XR = 80; WF = 224; HB = 80; NHB = 24; ACC2 = 176
def vr(a, n): return f"v[{a}:{a+n-1}]"
def xreg(n): return vr(XR + 4 * n, 4) if n < 36 else f"a[{240+4*(n-36)}:{240+4*(n-36)+3}]"

def gen(cfg):
    g = G(cfg); e = g.e
    R = 8; LA = cfg.LA; NST = 20; SLOT = 16384
    LDS_P0 = R * SLOT
    lds_bytes = LDS_P0 + 8192
    LDS_T = 65536
    def mod3(dst, src, tmp):
        e(f"s_mul_i32 {tmp}, {src}, 86"); e(f"s_lshr_b32 {tmp}, {tmp}, 8"); e(f"s_mul_i32 {tmp}, {tmp}, 3"); e(f"s_sub_u32 {dst}, {src}, {tmp}")
    e("s_cmp_ge_u32 s2, 256"); e("s_cbranch_scc1 Lend")
    e("s_load_dwordx4 s[4:7], s[0:1], 0"); e("s_load_dwordx4 s[8:11], s[0:1], 16"); e("s_load_dwordx4 s[12:15], s[0:1], 32")
    g.stamp("start")
    if cfg.prof: e("s_memrealtime s[72:73]")
    e(f"v_lshrrev_b32 {vT0}, 6, v0"); e(f"v_and_b32 {vL}, 63, v0"); e(f"s_and_b32 {sT0}, s2, 7"); e(f"v_readfirstlane_b32 {sW}, {vT0}")
    e(f"s_lshr_b32 {sT1}, s2, 3")
    def part(kind, sb, sj):
        if kind == "A":
            e(f"s_lshl_b32 {sb}, {sT0}, 2"); e(f"s_lshr_b32 {sT2}, {sT1}, 3"); e(f"s_add_u32 {sb}, {sb}, {sT2}"); e(f"s_and_b32 {sj}, {sT1}, 7")
        else:
            e(f"s_lshr_b32 {sb}, {sT0}, 1"); e(f"s_lshl_b32 {sb}, {sb}, 3"); e(f"s_lshr_b32 {sT2}, {sT1}, 2"); e(f"s_add_u32 {sb}, {sb}, {sT2}")
            e(f"s_and_b32 {sj}, {sT0}, 1"); e(f"s_lshl_b32 {sj}, {sj}, 2"); e(f"s_and_b32 {sT2}, {sT1}, 3"); e(f"s_add_u32 {sj}, {sj}, {sT2}")
    part(cfg.p1, sB1, sJ1)
    def t0_of(dst, band):
        if cfg.trot: e(f"s_lshr_b32 {dst}, {band}, {cfg.tsh}"); mod3(dst, dst, sT2)
        else: e(f"s_mov_b32 {dst}, 0")
    t0_of(sTD, sB1)
    if cfg.r1 > 1:
        e(f"s_add_u32 {sKS}, {sB1}, {sJ1}"); e(f"s_and_b32 {sKS}, {sKS}, {cfg.r1-1}"); e(f"s_mul_i32 {sKS}, {sKS}, 10"); e(f"s_lshr_b32 {sKS}, {sKS}, {cfg.r1.bit_length()-1}")
    else: e(f"s_mov_b32 {sKS}, 0")
    e(f"s_mul_i32 {sXB}, {sB1}, {64*1280}"); e(f"s_mul_i32 {sT3}, {sJ1}, 384"); e(f"s_mov_b32 {sTP}, {sTD}")
    e(f"s_lshl_b32 {sT2}, {sTD}, 7"); e(f"s_add_u32 {sT3}, {sT3}, {sT2}")
    e(f"s_lshl_b32 {sM0}, {sW}, 11")
    e(f"v_lshrrev_b32 {vT0}, 3, {vL}"); e(f"s_lshl_b32 {sT2}, {sW}, 4"); e(f"v_add_u32 {vT0}, {sT2}, {vT0}")
    e(f"v_mul_u32_u24 {vP0}, 1280, {vT0}"); e(f"v_mul_u32_u24 {vW[1]}, 3072, {vT0}")
    e(f"v_and_b32 {vT1}, 7, {vL}"); e(f"v_lshrrev_b32 {vT2}, 4, {vL}"); e(f"v_xor_b32 {vT0}, {vT1}, {vT2}")
    e(f"v_lshl_add_u32 {vX[0]}, {vT0}, 4, {vP0}")
    e(f"v_xor_b32 {vT0}, 4, {vT0}"); e(f"v_lshl_add_u32 {vX[1]}, {vT0}, 4, {vP0}"); e(f"v_add_u32 {vX[1]}, {8*1280-1024}, {vX[1]}")
    e(f"v_lshl_add_u32 {vP0}, {vT1}, 4, {vP0}")
    e(f"v_and_b32 {vT2}, 1, {vT2}"); e(f"v_lshlrev_b32 {vT2}, 2, {vT2}"); e(f"v_xor_b32 {vT1}, {vT1}, {vT2}")
    e(f"v_add_u32 {vW[1]}, {sT3}, {vW[1]}")
    e(f"v_lshl_add_u32 {vW[0]}, {vT1}, 4, {vW[1]}"); e(f"v_add_u32 {vW[1]}, {8*3072-1024}, {vW[0]}")
    for srd, n in ((16, 2621440), (36, 1966080), (20, 1966080)):
        e(f"s_mov_b32 s{srd+2}, {n}"); e(f"s_mov_b32 s{srd+3}, 0x00020000")
    e(f"s_lshl_b32 {sFH}, {sB1}, 3"); e(f"s_add_u32 {sFH}, {sFH}, {sJ1}")
    e(f"s_sub_u32 {sHST}, {sFH}, 16"); e(f"s_cmp_lt_u32 {sFH}, 240"); e(f"s_cselect_b32 {sHST}, {sFH}, {sHST}")
    e(f"s_mul_i32 {sPWA}, {sHST}, 2731"); e(f"s_lshr_b32 {sPWA}, {sPWA}, 16")
    e(f"s_mul_i32 {sT2}, {sPWA}, 24"); e(f"s_sub_u32 {sHST}, {sHST}, {sT2}")
    e(f"s_mul_i32 {sT2}, {sHST}, {64*1280}"); e(f"s_lshl_b32 {sP0A}, {sPWA}, 7"); e(f"s_add_u32 {sP0A}, {sP0A}, {sT2}")
    def p0_loads():
        e(f"s_add_u32 m0, {sM0}, {LDS_P0}"); e(f"s_add_u32 {sT2}, {sP0A}, {8*1280-1024}")
        if cfg.xp0ld: return
        g.vmem(f"buffer_load_dwordx4 {vP0}, {SW2}, {sP0A} offen lds", "p0")
        g.vmem(f"buffer_load_dwordx4 {vP0}, {SW2}, {sT2} offen offset:1024 lds", "p0")
    e("s_waitcnt lgkmcnt(0)")
    for srd, p in ((16, 4), (36, 6), (20, 8)): e(f"s_mov_b64 s[{srd}:{srd+1}], s[{p}:{p+1}]")
    g.stamp("srd")
    adv = [f"s_add_u32 {sKS}, {sKS}, 1", f"s_cmp_eq_u32 {sKS}, 10", f"s_cselect_b32 {sKS}, 0, {sKS}"]
    def wchunk(base, tag, c, pre):
        return [(pre + [f"s_add_u32 m0, {sM0}, {base}", "s_nop 0"], f"buffer_load_dwordx4 {vW[0]}, {SW1}, s{KW+c} offen lds", tag),
                ([], f"buffer_load_dwordx4 {vW[1]}, {SW1}, s{KW+c} offen offset:1024 lds", tag)]
    nextpass = [f"s_add_u32 {sTD}, {sTD}, 1", f"s_cmp_eq_u32 {sTD}, 3", f"s_cselect_b32 {sTD}, 0, {sTD}", f"s_cselect_b32 {sT3}, -2, 1", f"s_lshl_b32 {sT3}, {sT3}, 7",
                f"v_add_u32 {vW[0]}, {sT3}, {vW[0]}", f"v_add_u32 {vW[1]}, {sT3}, {vW[1]}"]
    def dma_groups(s):
        slot = (s % R) * SLOT; tag = f"st{s}"
        if s < 10:
            return [([f"s_lshl_b32 {sDA}, {sKS}, 7", f"s_add_u32 m0, {sM0}, {slot}", f"s_add_u32 {sDA}, {sDA}, {sXB}"], f"buffer_load_dwordx4 {vX[0]}, {SX}, {sDA} offen lds", tag),
                    ([f"s_mul_i32 s{KW+s}, {sKS}, {64*3072}"], f"buffer_load_dwordx4 {vX[1]}, {SX}, {sDA} offen offset:1024 lds", tag)] + wchunk(slot + 8192, tag, s, adv)
        c = 2 * ((s - 10) % 5)
        return wchunk(slot, tag, c, nextpass if c == 0 else []) + wchunk(slot + 8192, tag, c + 1, [])
    def issue(gr):
        for t in gr[0]: e(t)
        g.vmem(gr[1], gr[2])
    NPRO = min(cfg.npro, LA)
    if cfg.p0first: p0_loads()
    for s in range(NPRO): [issue(gr) for gr in dma_groups(s)]
    for srd, p, n in ((40, 10, 2621440), (24, 12, 256), (32, 14, WS_USED)):
        e(f"s_mov_b64 s[{srd}:{srd+1}], s[{p}:{p+1}]"); e(f"s_mov_b32 s{srd+2}, {n}"); e(f"s_mov_b32 s{srd+3}, 0x00020000")
    e(f"s_or_b32 {sT2}, s2, {sW}"); e("s_cbranch_scc1 Lnn")
    e("s_memrealtime s[100:101]"); e("s_waitcnt lgkmcnt(0)"); e("s_bitset1_b32 s101, 31")
    e(f"v_mov_b32 v{NON}, s100"); e(f"v_mov_b32 v{NON+1}, s101")
    e("s_mov_b64 exec, 1"); e(f"buffer_store_dwordx2 {vr(NON,2)}, off, {SDBG}, 0 sc1"); e("s_mov_b64 exec, -1")
    g.label("Lnn")
    if cfg.cpf:
        e("s_getpc_b64 s[100:101]"); e(f"s_lshl_b32 {sT2}, {sT1}, 2"); e(f"s_add_u32 {sT2}, {sT2}, {sW}"); e(f"s_lshl_b32 {sT2}, {sT2}, 7")
        e(f"s_min_u32 {sT2}, {sT2}, CODE_END_PF"); e(f"s_add_u32 s100, s100, {sT2}"); e("s_addc_u32 s101, s101, 0"); e("s_load_dword s101, s[100:101], 0")
        g.label("Lpc")
    part(cfg.p2, sB2, sJ2)
    if not cfg.p0first: p0_loads()
    e(f"s_mov_b32 {sT0}, {sHST}"); e(f"s_mov_b32 {sT1}, {sPWA}"); e(f"s_mov_b32 {sT3}, {sFH}")
    e(f"s_mul_i32 {sT2}, {sT0}, 43"); e(f"s_lshr_b32 {sT2}, {sT2}, 8")
    e(f"s_lshl_b32 {sFW}, {sT1}, 2"); e(f"s_add_u32 {sFW}, {sFW}, {sT2}"); e(f"s_lshl_b32 {sFW}, {sFW}, 5")
    e(f"s_mul_i32 {sT2}, {sT2}, 6"); e(f"s_sub_u32 {sT2}, {sT0}, {sT2}"); e(f"s_add_u32 {sFW}, {sFW}, {sT2}"); e(f"s_lshl_b32 {sFW}, {sFW}, 2")
    e(f"s_sub_u32 {sT2}, {sT3}, 200"); e(f"s_lshl_b32 {sT2}, {sT2}, 7"); e(f"s_cmp_lt_u32 {sT3}, 240"); e(f"s_cselect_b32 {sFW}, {sFW}, {sT2}")
    e(f"s_add_u32 {sFW}, {sFW}, {FW_OFF}")
    e(f"s_lshl_b32 {sT1}, {sT1}, 2"); e(f"s_add_u32 {sT1}, {sT1}, {sW}")
    e(f"s_mul_i32 {sT2}, {sT1}, 52"); e(f"s_lshr_b32 {sT2}, {sT2}, 8")
    e(f"s_mul_i32 {sP0A}, {sT2}, 235"); e(f"s_add_u32 {sP0A}, {sP0A}, {sT1}")
    e(f"s_mul_i32 {sT2}, {sT0}, 10"); e(f"s_add_u32 {sP0A}, {sP0A}, {sT2}")
    e(f"s_lshl_b32 {sP0A}, {sP0A}, 10"); e(f"s_add_u32 {sP0A}, {sP0A}, {W2P_OFF}")
    e(f"s_lshr_b32 {sFH}, {sT3}, 1"); e(f"s_lshl_b32 {sFH}, {sFH}, 7"); e(f"s_and_b32 {sT2}, {sJ1}, 1"); e(f"s_lshl_b32 {sT2}, {sT2}, 3")
    e(f"s_add_u32 {sFH}, {sFH}, {sT2}"); e(f"s_add_u32 {sFH}, {sFH}, {FH_OFF}")
    e(f"v_lshlrev_b32 {vL16}, 4, {vL}")
    e(f"s_lshl_b32 {sOUT}, {sB2}, 2"); e(f"s_add_u32 {sOUT}, {sOUT}, {sW}"); e(f"s_mul_i32 {sOUT}, {sOUT}, {16*1280}")
    e(f"s_mul_i32 {sT2}, {sJ2}, 160"); e(f"s_add_u32 {sOUT}, {sOUT}, {sT2}")
    if cfg.warm:
        e("s_mov_b64 exec, 1")
        g.vmem(f"buffer_load_dword {vDUM}, off, {SOUT}, {sOUT}", "warm")
        e(f"s_lshl_b32 {sT2}, {sB1}, 18"); e(f"s_add_u32 {sT2}, {sT2}, {200<<10}")
        g.vmem(f"buffer_load_dword {vDUM}, off, {SWS}, {sT2}", "warm")
        if cfg.p1 != cfg.p2:
            e(f"s_lshl_b32 {sT2}, {sB2}, 18"); e(f"s_add_u32 {sT2}, {sT2}, {200<<10}")
            g.vmem(f"buffer_load_dword {vDUM}, off, {SWS}, {sT2}", "warm")
        e("s_mov_b64 exec, -1")
    e(f"s_and_b32 {sT0}, {sW}, 1"); e(f"s_lshr_b32 {sT1}, {sW}, 1")
    e(f"v_and_b32 {vT0}, 31, {vL}"); e(f"s_lshl_b32 {sT2}, {sT0}, 5"); e(f"v_add_u32 {vT0}, {sT2}, {vT0}"); e(f"v_lshlrev_b32 {vT0}, 7, {vT0}")
    e(f"v_bfe_u32 {vT1}, {vL}, 1, 3"); e(f"v_lshrrev_b32 {vT2}, 5, {vL}"); e(f"v_xor_b32 {vT1}, {vT1}, {vT2}")
    e(f"v_lshl_add_u32 v{vRX[0][0]}, {vT1}, 4, {vT0}")
    for q in range(1, 4): e(f"v_xor_b32 v{vRX[0][q]}, {32*q}, v{vRX[0][0]}")
    for q in range(4): e(f"v_add_u32 v{vRX[1][q]}, 0x10000, v{vRX[0][q]}")
    e(f"v_lshrrev_b32 {vT0}, 5, {vL}"); e(f"v_lshlrev_b32 {vT0}, 3, {vT0}"); e(f"v_bfe_u32 {vT1}, {vL}, 2, 2"); e(f"v_add_u32 {vT0}, {vT0}, {vT1}")
    e(f"v_lshlrev_b32 {vT0}, 7, {vT0}")
    e(f"v_bfe_u32 {vT1}, {vL}, 4, 1"); e(f"v_lshl_add_u32 {vT0}, {vT1}, 5, {vT0}")
    e(f"v_and_b32 {vT1}, 1, {vL}"); e(f"v_lshl_add_u32 {vT0}, {vT1}, 4, {vT0}")
    e(f"v_bfe_u32 {vT1}, {vL}, 1, 1"); e(f"v_lshl_add_u32 {vT0}, {vT1}, 3, {vT0}")
    e(f"v_bfe_u32 {vT1}, {vL}, 3, 1"); e(f"v_xor_b32 {vT1}, {sT1}, {vT1}"); e(f"v_lshl_add_u32 v{vRW[0]}, {vT1}, 6, {vT0}")
    e(f"v_add_u32 v{vRW[1]}, 0x10000, v{vRW[0]}")
    e(f"v_bfe_u32 {vT0}, {vL}, 4, 1"); e(f"v_mul_u32_u24 {vT0}, 49152, {vT0}"); e(f"v_and_b32 {vT1}, 15, {vL}"); e(f"v_lshl_add_u32 {vT0}, {vT1}, 4, {vT0}")
    e(f"v_lshrrev_b32 {vT1}, 5, {vL}"); e(f"v_lshl_add_u32 {vHST}, {vT1}, 8, {vT0}")
    e(f"s_lshl_b32 {sHST}, {sB1}, 8"); e(f"s_mul_i32 {sT2}, {sT0}, 96"); e(f"s_add_u32 {sHST}, {sHST}, {sT2}")
    e(f"s_mul_i32 {sT2}, {sJ1}, 6"); e(f"s_add_u32 {sHST}, {sHST}, {sT2}"); e(f"s_add_u32 {sHST}, {sHST}, {sT1}")
    e(f"s_lshl_b32 {sHST}, {sHST}, 10")
    e(f"v_lshrrev_b32 {vT0}, 4, {vL}"); e(f"v_lshlrev_b32 {vT0}, 3, {vT0}"); e(f"v_bfe_u32 {vT1}, {vL}, 2, 2"); e(f"v_add_u32 {vT0}, {vT0}, {vT1}")
    e(f"v_lshlrev_b32 {vT0}, 7, {vT0}"); e(f"v_and_b32 {vT1}, 3, {vL}"); e(f"v_lshl_add_u32 {vT0}, {vT1}, 3, {vT0}")
    e(f"s_lshl_b32 {sT2}, {sW}, 5"); e(f"s_add_u32 {sT2}, {sT2}, {LDS_P0}"); e(f"v_add_u32 {vP0R}, {sT2}, {vT0}")
    for s in range(NPRO, min(LA, cfg.npro2)): [issue(gr) for gr in dma_groups(s)]
    e(f"s_mul_i32 {sPWA}, {sJ2}, 5"); e(f"s_lshr_b32 {sPWA}, {sPWA}, 2"); e(f"s_lshl_b32 {sPWA}, {sPWA}, 2"); e(f"s_add_u32 {sPWA}, {sPWA}, {sW}")
    e(f"s_lshl_b32 {sPWA}, {sPWA}, 7"); e(f"s_add_u32 {sPWA}, {sPWA}, {FW_OFF}")
    e(f"s_lshl_b32 {sPH}, {sB2}, 2"); e(f"s_add_u32 {sPH}, {sPH}, {sW}"); e(f"s_lshl_b32 {sPH}, {sPH}, 7"); e(f"s_add_u32 {sPH}, {sPH}, {FH_OFF}")
    for i in range(4):
        e(f"s_add_u32 {sT0}, {sW}, {1+i}"); e(f"s_and_b32 {sT0}, {sT0}, 3")
        if i < 3:
            e(f"s_mul_i32 {sT2}, {sT0}, {3*5120}"); e(f"s_add_u32 {sT2}, {sT2}, {i*5120}"); e(f"v_add_u32 {vRDW[i]}, {sT2}, {vL16}")
        e(f"s_lshl_b32 {sT1}, {sB2}, 8"); e(f"s_mul_i32 {sT2}, {sT0}, 48"); e(f"s_add_u32 {sT1}, {sT1}, {sT2}")
        e(f"s_mul_i32 {sT2}, {sW}, 12"); e(f"s_add_u32 {sT1}, {sT1}, {sT2}"); e(f"s_lshl_b32 {sT1}, {sT1}, 10")
        e(f"v_add_u32 {vH[i]}, {sT1}, {vL16}")
    e(f"s_mul_i32 {sT2}, {sW}, {3*5120}"); e(f"v_add_u32 {vRDR}, {sT2}, {vL16}")
    e(f"s_mul_i32 {sT2}, {sW}, 2816"); e(f"s_add_u32 {sT2}, {sT2}, {LDS_T}")
    e(f"v_and_b32 {vT0}, 15, {vL}"); e(f"v_mul_u32_u24 {vT0}, 176, {vT0}"); e(f"v_lshrrev_b32 {vT1}, 4, {vL}"); e(f"v_lshl_add_u32 {vT0}, {vT1}, 3, {vT0}")
    e(f"v_add_u32 {vTW}, {sT2}, {vT0}")
    vTRs = [vTR, vOUT, vDUM]
    for i in range(3):
        e(f"v_add_u32 {vT0}, {64*i}, {vL}"); e(f"v_mul_u32_u24 {vT1}, 205, {vT0}"); e(f"v_lshrrev_b32 {vT1}, 11, {vT1}")
        e(f"v_mul_u32_u24 {vT2}, 10, {vT1}"); e(f"v_sub_u32 {vT0}, {vT0}, {vT2}"); e(f"v_lshlrev_b32 {vT0}, 4, {vT0}")
        e(f"v_mul_u32_u24 {vT2}, 1280, {vT1}"); e(f"v_add_u32 {vOUT2[i]}, {vT2}, {vT0}")
        e(f"v_mul_u32_u24 {vT2}, 176, {vT1}"); e(f"v_add3_u32 v{42+i}, {vT2}, {vT0}, {sT2}")
    e(f"s_lshl_b32 {sT0}, {sJ2}, 2"); e(f"s_add_u32 {sT0}, {sT0}, {sW}"); e(f"s_mul_i32 {sT0}, {sT0}, {60*1024}"); e(f"s_add_u32 {sT0}, {sT0}, {W2P_OFF}")
    e(f"v_add_u32 {vW2A}, {sT0}, {vL16}"); e(f"v_add_u32 {vW2B}, 4096, {vW2A}")
    t0_of(sT0, sB2)
    if cfg.rk == 0: e(f"s_mov_b32 {sT1}, 0")
    elif cfg.rk == 1: e(f"s_and_b32 {sT1}, {sB2}, 1"); e(f"s_lshl_b32 {sT1}, {sT1}, 1")
    elif cfg.rk == 2: e(f"s_and_b32 {sT1}, {sB2}, 1"); e(f"s_lshl_b32 {sT1}, {sT1}, 1"); e(f"s_add_u32 {sT1}, {sT1}, {sJ2}")
    elif cfg.rk == 3: e(f"s_add_u32 {sT1}, {sB2}, {sJ2}"); e(f"s_lshl_b32 {sT1}, {sT1}, 1")
    for kk in range(4):
        e(f"s_add_u32 {sT2}, {sT1}, {kk}"); e(f"s_and_b32 {sCNT}, {sT2}, 1"); e(f"s_bfe_u32 {sT2}, {sT2}, 0x10001"); e(f"s_mul_i32 {sT2}, {sT2}, 6")
        e(f"s_add_u32 {sT2}, {sT2}, {sCNT}"); e(f"s_lshl_b32 s{4+kk}, {sT2}, 10")
    for p in (2, 1, 0):
        e(f"s_add_u32 {sT2}, {sT0}, {p}"); e(f"s_sub_u32 {sCNT}, {sT2}, 3"); e(f"s_cmp_ge_u32 {sT2}, 3"); e(f"s_cselect_b32 {sT2}, {sCNT}, {sT2}"); e(f"s_lshl_b32 {sT2}, {sT2}, 11")
        for kk in range(4): e(f"s_add_u32 s{4+4*p+kk}, s{4+kk}, {sT2}")
    pend = []
    for s in range(max(NPRO, min(LA, cfg.npro2)), LA): pend.extend(dma_groups(s))

    def flag_store(name, sreg, off, wide):
        e(f"s_cmp_lg_u32 {sW}, 0"); e(f"s_cbranch_scc1 L{name}")
        e("s_mov_b64 exec, 1")
        if wide: e(f"buffer_store_dwordx2 {vr(NON,2)}, off, {SWS}, {sreg} offset:{off} sc1")
        else: e(f"buffer_store_dword v{NON}, off, {SWS}, {sreg} sc1")
        e("s_mov_b64 exec, -1")
        g.label(f"L{name}")
    ld_non = f"buffer_load_dwordx2 {vr(NON,2)}, off, {SDBG}, 0 sc1"; cmp_non = f"v_cmp_eq_u32 vcc, 0, v{NON+1}"
    def spin_non():
        e(cmp_non); e(f"s_mov_b32 {sCNT}, 0"); e("s_nop 0"); e(f"s_cbranch_vccz Lnon_ok")
        g.label("Lnon")
        e(f"s_sleep {cfg.sleep}"); e(ld_non); e("s_waitcnt vmcnt(0)"); e(cmp_non)
        e(f"s_add_u32 {sCNT}, {sCNT}, 1"); e(f"s_cmp_gt_u32 {sCNT}, 200000"); e(f"s_cbranch_scc1 Lnon_ok")
        e(f"s_cbranch_vccnz Lnon")
        g.label("Lnon_ok")
        e(f"v_readfirstlane_b32 s70, v{NON}"); e(f"v_readfirstlane_b32 s71, v{NON+1}")
    ld_pw = f"s_load_dwordx8 s[16:23], {WSB}, {sPWA} glc\n    s_load_dwordx8 s[24:31], {WSB}, {sPWA} offset:512 glc"
    def s_check(name, reload, test):
        g.wait_lg0(); e(f"s_mov_b32 {sCNT}, 0")
        g.label(f"L{name}")
        test(); e(f"s_cbranch_scc1 L{name}_ok")
        e(f"s_sleep {cfg.sleep}"); e(reload); e("s_waitcnt lgkmcnt(0)")
        e(f"s_add_u32 {sCNT}, {sCNT}, 1"); e(f"s_cmp_lt_u32 {sCNT}, 400000"); e(f"s_cbranch_scc1 L{name}")
        g.label(f"L{name}_ok")
    def test_pw():
        e("s_xor_b64 s[16:17], s[16:17], s[18:19]"); e("s_xor_b64 s[18:19], s[18:19], s[20:21]"); e("s_xor_b64 s[22:23], s[20:21], s[24:25]")
        e("s_xor_b64 s[24:25], s[24:25], s[26:27]"); e("s_xor_b64 s[26:27], s[26:27], s[28:29]"); e("s_xor_b32 s30, s28, s29"); e("s_xor_b32 s31, s28, s70")
        e("s_or_b64 s[16:17], s[16:17], s[18:19]"); e("s_or_b64 s[22:23], s[22:23], s[24:25]"); e("s_or_b64 s[26:27], s[26:27], s[30:31]")
        e("s_or_b64 s[16:17], s[16:17], s[22:23]"); e("s_or_b64 s[16:17], s[16:17], s[26:27]"); e("s_cmp_eq_u64 s[16:17], 0")
    def test_ph():
        e(f"s_xor_b64 s[16:17], s[16:17], {sNON}"); e(f"s_xor_b64 s[18:19], s[18:19], {sNON}"); e("s_or_b64 s[16:17], s[16:17], s[18:19]"); e("s_cmp_eq_u64 s[16:17], 0")
    ld_ph = f"s_load_dwordx4 s[16:19], {WSB}, {sPH} glc"

    def wblk(s):
        out = []
        for t in range(5):
            a = 4 * (5 * s + t)
            pre = [f"s_mul_i32 {sXB}, s{4+s}, 5"] if t == 0 else []
            if t < 4: out.append(("W", pre, f"buffer_load_dwordx4 a[{a}:{a+3}], {vW2A}, {SWS}, {sXB} offen offset:{1024*t} sc1", f"w{s}"))
            else: out.append(("W", pre, f"buffer_load_dwordx4 a[{a}:{a+3}], {vW2B}, {SWS}, {sXB} offen sc1", f"w{s}"))
        return out
    stream = []; groups = []
    for s in range(cfg.lead): stream += wblk(s)
    for s in range(8):
        for i in range(4): stream.append(("H", s, i)); groups.append((s, i))
        if s + cfg.lead < 12: stream += wblk(s + cfg.lead)
    for i in range(4):
        for s in range(8, 12): stream.append(("H", s, i)); groups.append((s, i))
    for p in (2, 1, 0):
        idx = stream.index(("H", 4 * p, 0))
        stream.insert(idx, ("C", p))
        stream.insert(max(0, idx - (cfg.pd if p else cfg.pd0)), ("P", p))
    hbuf = {}; hcount = [0]
    def stream_issue(allow_h=True):
        it = stream[0]
        if it[0] == "W":
            stream.pop(0)
            for t in it[1]: e(t)
            g.vmem(it[2], it[3]); return True
        if it[0] == "P":
            stream.pop(0)
            if it[1]: e(f"s_add_u32 {sPH}, {sPH}, 16")
            e(ld_ph); g.lgmax = 13
            return stream_issue(allow_h)
        if not allow_h: return False
        if it[0] == "C":
            stream.pop(0); g.stamp(f"c{it[1]}a"); s_check(f"ph{it[1]}", ld_ph, test_ph); g.stamp(f"c{it[1]}b"); return stream_issue()
        _, s, i = stream.pop(0)
        b = hcount[0] % NHB; hcount[0] += 1
        assert b not in hbuf.values(), "H buffer still pending"
        hbuf[(s, i)] = b
        g.vmem(f"buffer_load_dwordx4 {vr(HB+4*b,4)}, {vH[i]}, {SWS}, s{4+s} offen sc1", f"h{s}_{i}")
        return True

    NSTEP = 120
    def stage_of(n): return n // 4 if n < 40 else 10 + (n - 40) // 8
    def first_step(s): return 4 * s if s < 10 else 40 + 8 * (s - 10)
    def last_step(s): return first_step(s + 1) - 1
    def DD(n): return cfg.d0 if n < 40 else cfg.d1
    def reads(n):
        s = stage_of(n); slot = s % R; hi = slot >> 2; base = (slot & 3) * SLOT
        q = n % 4; out = []
        if n < 40:
            out.append(f"ds_read_b128 {xreg(n)}, v{vRX[hi][q]} offset:{base}"); wb = base + 8192
        else: wb = base + 8192 * (((n - 40) % 8) // 4)
        for half in range(2):
            out.append(f"ds_read_b64_tr_b16 {vr(WF+4*(n%8)+2*half,2)}, v{vRW[hi]} offset:{wb+(16*q+4*half)*128}")
        return out
    w2_ok = [False]; early = [cfg.n0]; done_step = [-1]; flagged = set(); issued_tags = set()
    def barrier(s):
        tags = [f"st{s}"]
        if s == cfg.p0s: tags.append("p0")
        if s == cfg.flagw: tags += ["p0st", "non"]
        for p in (0, 1):
            if s == cfg.fh[p]: tags.append(f"hst{p}")
        while pend and int(pend[0][2][2:]) <= s: issue(pend.pop(0))
        g.wait_vm(*tags)
        e("s_barrier")
        g.stamp(f"b{s}")
        if s == cfg.p0s:
            for kk in range(2):
                for half in range(2): g.lds(f"ds_read_b64_tr_b16 {vr(ACC1+16+4*kk+2*half,2)}, {vP0R} offset:{half*512+kk*4096}", "p0r")
            g.vmem(ld_non, "non")
            e(f"s_add_u32 {sT0}, {sP0A}, 5120")
            g.wait_lg("p0r")
            if not cfg.xp0st:
                g.vmem(f"buffer_store_dwordx4 {vr(ACC1+16,4)}, {vL16}, {SWS}, {sP0A} offen sc1", "p0st")
                g.vmem(f"buffer_store_dwordx4 {vr(ACC1+20,4)}, {vL16}, {SWS}, {sT0} offen sc1", "p0st")
        if s == cfg.flagw: spin_non(); flag_store("nf1", sFW, 0, False)
        if s == cfg.pollw: assert not any(int(x[2][2:]) < 10 for x in pend) and s + LA > 10 and s > cfg.flagw; e(ld_pw); g.lgmax = 11
        if s == cfg.pollw + cfg.pgap:
            g.stamp("pwa"); s_check("pw", ld_pw, test_pw); w2_ok[0] = True; g.lgmax = 15; g.stamp("pwb")
        for p in (0, 1):
            if s == cfg.fh[p]: assert f"hst{p}" in issued_tags; flag_store(f"nh{p}", sFH, 16 * p, True); flagged.add(p)
        ns = s + LA
        if ns < NST:
            old = ns - R
            assert old < 0 or last_step(old) <= done_step[0], (s, old, done_step[0])
            pend.extend(dma_groups(ns))
    def slot_issue():
        if pend: issue(pend.pop(0))
        elif w2_ok[0] and early[0] > 0 and stream_issue(allow_h=False): early[0] -= 1
    def epilogue_ops(p):
        a = ACC1 + 16 * (p & 1); ops = []
        for i in range(8): ops.append(("v", f"v_cvt_pk_bf16_f32 v{a+i}, v{a+2*i}, v{a+2*i+1}"))
        for i in range(8): ops.append(("v", f"v_pk_max_i16 v{a+i}, v{a+i}, 0"))
        ops.append(("v", f"s_lshl_b32 {sT1}, {sTP}, 11")); ops.append(("v", f"s_add_u32 {sT1}, {sT1}, {sHST}"))
        for c in range(2): ops.append(("m", f"buffer_store_dwordx4 {vr(a+4*c,4)}, {vHST}, {SWS}, {sT1} offen offset:{c*512} sc1", f"hst{p}"))
        ops += [("v", f"s_add_u32 {sTP}, {sTP}, 1"), ("v", f"s_cmp_eq_u32 {sTP}, 3\n    s_cselect_b32 {sTP}, 0, {sTP}")]
        return ops
    def run_ops(ops, k):
        for _ in range(k):
            if not ops: return
            o = ops.pop(0)
            if o[0] == "v": e(o[1])
            else: g.vmem(o[1], o[2]); issued_tags.add(o[2])
    nread = [0]
    def issue_reads_upto(m):
        while nread[0] <= min(m, NSTEP - 1):
            n = nread[0]
            assert n - 8 <= done_step[0]
            if n == first_step(stage_of(n)): barrier(stage_of(n))
            for t in reads(n): g.lds(t, f"r{n}")
            nread[0] += 1
    issue_reads_upto(cfg.d0 - 1)
    ep = []
    for n in range(NSTEP):
        p = n // 40
        if n < 40 or not cfg.w2: g.wait_lg(f"r{n}")
        elif n % 2 == 0: g.wait_lg(f"r{n}", f"r{n+1}")
        a = vr(ACC1 + 16 * (p & 1), 16)
        e(f"v_mfma_f32_32x32x16_bf16 {a}, {vr(WF+4*(n%8),4)}, {xreg(n%40)}, {'0' if n % 40 == 0 else a}")
        done_step[0] = n
        tgt = min(n + DD(n + 1), nread[0] + 1)
        while len(g.lg) + sum(len(reads(k)) for k in range(nread[0], min(tgt, NSTEP - 1) + 1)) > g.lgmax: tgt -= 1
        tgt = max(tgt, min(n + 2, NSTEP - 1))
        issue_reads_upto(tgt)
        if n < 40:
            slot_issue()
            if len(pend) > 4: slot_issue()
        elif n % 2 == 1 or len(pend) > 4: slot_issue()
        if n % 40 == 3 and p > 0: ep = epilogue_ops(p - 1)
        run_ops(ep, 2)
    g.stamp("p1end")
    assert not pend and w2_ok[0]
    for _ in range(2): stream_issue(allow_h=False)
    e("s_nop 7"); e("s_nop 3")
    ep = epilogue_ops(2); run_ops(ep, 100)
    pos = [0]; hpos = {}
    def emit_group(s, i, extra):
        acc = ACC2 + 20 * i; b = hbuf[(s, i)]
        g.wait_vm(f"h{s}_{i}", f"w{s}")
        for t in range(5):
            a = 4 * (5 * s + t)
            cc = "0" if s == 0 else vr(acc+4*t,4)
            e(f"v_mfma_f32_16x16x32_bf16 {vr(acc+4*t,4)}, a[{a}:{a+3}], {vr(HB+4*b,4)}, {cc}")
            for x in extra[t]: x()
    nafter = 0; first = True
    while stream or groups:
        if stream:
            stream_issue(); pos[0] += 1; nafter += 1
            for k in hbuf:
                if k not in hpos: hpos[k] = pos[0]
            for p, nn in ((1, cfg.n1a), (2, cfg.n1)):
                if p not in flagged and nafter >= nn:
                    g.wait_vm(f"hst{p}"); g.stamp(f"hst{p}"); e("s_barrier"); flag_store(f"nh{p}", sFH, 16 * p, True); flagged.add(p)
        if groups and groups[0] in hpos and (not stream or hpos[groups[0]] <= pos[0] - cfg.depth):
            s, i = groups[0]
            extra = [[] for _ in range(5)]
            if s == 9 and i > 0:
                ii = i - 1
                for t in range(5): extra[t].append(lambda t=t, ii=ii: g.lds(f"ds_write_b128 {vRDW[ii]}, {vr(ACC2+20*ii+4*t,4)} offset:{1024*t}", "rw"))
            if i == 3 and s == 10:
                extra[2].append(lambda: (g.wait_lg0(), e("s_barrier")))
                for k in range(3):
                    for u in range(5): extra[2 + k].append(lambda k=k, u=u: g.lds(f"ds_read_b128 {vr(ACC2+20*k+4*u,4)}, {vRDR} offset:{5120*k+1024*u}", f"rr{k}"))
            if i == 3 and s == 11:
                extra[2].append(lambda: g.wait_lg("rr1"))
                for t in (2, 3, 4):
                    for r in range(7 * (t - 2), min(20, 7 * (t - 1))): extra[t].append(lambda r=r: e(f"v_add_f32 v{ACC2+r}, v{ACC2+r}, v{ACC2+20+r}"))
            emit_group(s, i, extra)
            groups.pop(0); del hbuf[(s, i)]
            if first: g.stamp("g0"); first = False
    assert cfg.lead >= 4 and flagged == {0, 1, 2}
    g.stamp("mfend")
    acc = ACC2 + 60; PR = ACC2
    g.wait_lg0()
    for t in range(5):
        for r in range(4): e(f"v_add_f32 v{PR+40+4*t+r}, v{PR+40+4*t+r}, v{acc+4*t+r}"); e(f"v_add_f32 v{PR+4*t+r}, v{PR+4*t+r}, v{PR+40+4*t+r}")
        e(f"v_cvt_pk_bf16_f32 v{PR+20+2*t}, v{PR+4*t}, v{PR+4*t+1}"); e(f"v_cvt_pk_bf16_f32 v{PR+21+2*t}, v{PR+4*t+2}, v{PR+4*t+3}")
        e(f"ds_write_b64 {vTW}, {vr(PR+20+2*t,2)} offset:{32*t}")
    e("s_waitcnt lgkmcnt(0)")
    for i in range(3): e(f"ds_read_b128 {vr(PR+40+4*i,4)}, v{42+i}")
    for i in range(3):
        e(f"s_waitcnt lgkmcnt({2-i})")
        if i == 2: e("s_mov_b32 exec_hi, 0")
        e(f"buffer_store_dwordx4 {vr(PR+40+4*i,4)}, {vOUT2[i]}, {SOUT}, {sOUT} offen {cfg.outsc}")
    if cfg.prof:
        e("s_waitcnt vmcnt(0)"); g.stamp("end"); e("s_memrealtime s[74:75]"); e("s_waitcnt lgkmcnt(0)")
        e(f"s_lshl_b32 {sT0}, s2, 2"); e(f"s_add_u32 {sT0}, {sT0}, {sW}"); e(f"s_lshl_b32 {sT0}, {sT0}, 7"); e(f"s_add_u32 {sT0}, {sT0}, {PROF_OFF}")
        e("s_mov_b64 exec, 1")
        regs = ["s72", "s74"] + [f"s{76+2*i}" for i in range(g.nstamp)]
        for i, r in enumerate(regs):
            e(f"v_mov_b32 v24, {r}"); e(f"buffer_store_dword v24, off, {SWS}, {sT0} offset:{4*i}"); e("s_nop 1")
    g.label("Lend")
    body = "\n".join(g.L)
    pf = ".set CODE_END_PF, Lend - Lpc\n" if cfg.cpf else ""
    return f"""{HDR}; @launch grid=(256,1,1) block=(256,1,1) lds={lds_bytes}
.amdgcn_target "amdgcn-amd-amdhsa--gfx950"
.text
.globl {KN}
.p2align 8
.type {KN},@function
{KN}:
{body}
    s_endpgm
{pf}.section .rodata,"a"
.p2align 6
.amdhsa_kernel {KN}
  .amdhsa_next_free_vgpr 512
  .amdhsa_next_free_sgpr 102
  .amdhsa_accum_offset 256
  .amdhsa_group_segment_fixed_size 0
  .amdhsa_kernarg_size 48
  .amdhsa_user_sgpr_count 2
  .amdhsa_user_sgpr_kernarg_segment_ptr 1
  .amdhsa_system_sgpr_workgroup_id_x 1
.end_amdhsa_kernel
"""

def parser():
    ap = argparse.ArgumentParser()
    ap.add_argument("-o", default="k.s"); ap.add_argument("--prof", type=int, default=0)
    ap.add_argument("--p1", default="B"); ap.add_argument("--p2", default="B")
    for name, d in (("r1", 2), ("trot", 1), ("tsh", 1), ("rk", 1), ("LA", 6), ("npro", 2), ("npro2", 3), ("p0first", 1), ("p0s", 0), ("flagw", 4), ("pollw", 12), ("pgap", 2),
                    ("sleep", 2), ("n0", 20), ("n1a", 4), ("n1", 20), ("lead", 4), ("own0", 4), ("pd", 8), ("pd0", 3), ("depth", 12), ("d0", 3), ("d1", 6),
                    ("fh0", 16), ("fh1", 99), ("cpf", 0), ("warm", 1), ("w2", 1), ("xp0st", 0), ("xp0ld", 0)):
        ap.add_argument("--" + name, type=int, default=d)
    ap.add_argument("--outsc", default="")
    ap.add_argument("--stamps", default="start,b0,b5,b10,b15,p1end,c0b,g0,c1b,c2b,mfend,end")
    return ap
if __name__ == "__main__":
    cfg = parser().parse_args()
    cfg.fh = [cfg.fh0, cfg.fh1]; cfg.stamps = cfg.stamps.split(",")
    open(cfg.o, "w").write(gen(cfg))
```

```python
import sys, argparse

KN = "standalone__dense_activation_relu__prompt_kernel"
HDR = """; Kernarg layout for this problem (48 bytes, ptrs only, base s[0:1]):
"""
HBAND = 256 << 10
W2P_OFF = 8 << 20
FW_OFF = W2P_OFF + (1920 << 10)
FH_OFF = FW_OFF + 8192
PROF_OFF = 0x8000000
WS_USED = 0x10000000

class G:
    def __init__(s, cfg):
        s.L = []; s.vm = []; s.lg = []; s.cfg = cfg; s.nstamp = 0; s.lgmax = 15; s.names = []
    def e(s, t):
        if s.cfg.nocomp & 1 and t.startswith("v_mfma"): return
        if s.cfg.nocomp & 2 and (t.startswith("ds_read_b64_tr_b16 v[2") or t.startswith("ds_read_b128")): return
        if s.cfg.nocomp & 4 and t.startswith("v_mfma_f32_32x32x16"):
            import re
            m = re.match(r"v_mfma_f32_32x32x16_bf16 v\[(\d+):\d+\], (\S+), (\S+), ", t)
            d = int(m.group(1))
            s.flip = getattr(s, "flip", 0) ^ 1
            for h in range(2):
                dd = d + 8 * s.flip + 4 * h
                s.L.append(f"    v_mfma_f32_16x16x32_bf16 v[{dd}:{dd+3}], {m.group(2)}, {m.group(3)}, v[{dd}:{dd+3}]")
            return
        s.L.append("    " + t)
    def label(s, n): s.L.append(n + ":")
    def vmem(s, t, tag): s.e(t); s.vm.append(tag)
    def lds(s, t, tag): s.e(t); s.lg.append(tag); assert len(s.lg) <= 15, s.lg
    def wait_vm(s, *tags):
        idxs = [i for i, t in enumerate(s.vm) if t in tags]
        if not idxs: return
        idx = max(idxs); n = len(s.vm) - 1 - idx
        assert n <= 63, n
        s.e(f"s_waitcnt vmcnt({n})"); s.vm = s.vm[idx + 1:]
    def wait_lg(s, *tags):
        idxs = [i for i, t in enumerate(s.lg) if t in tags]
        if not idxs: return
        idx = max(idxs); n = len(s.lg) - 1 - idx
        s.e(f"s_waitcnt lgkmcnt({n})"); s.lg = s.lg[idx + 1:]
    def wait_lg0(s): s.e("s_waitcnt lgkmcnt(0)"); s.lg = []
    def stamp(s, name):
        if s.cfg.prof == 2:
            k = s.nstamp; assert k < 64
            if k >= 4: s.e(f"v_writelane_b32 v47, s{76+2*((k-4)%8)}, {k-4}")
            r = 76 + 2 * (k % 8)
            if s.cfg.both:
                if name not in s.cfg.stamps: return
                s.e(f"s_memtime s[{r}:{r+1}] ; {name}"); s.nstamp += 1; s.names.append(name)
                k = s.nstamp
                if k >= 4: s.e(f"v_writelane_b32 v47, s{76+2*((k-4)%8)}, {k-4}")
                r = 76 + 2 * (k % 8)
                s.e(f"s_memrealtime s[{r}:{r+1}] ; {name}"); s.nstamp += 1; s.names.append(name + "_rt")
                return
            s.e(f"s_memtime s[{r}:{r+1}] ; {name}"); s.nstamp += 1; s.names.append(name)
        elif s.cfg.prof and name in s.cfg.stamps:
            r = 76 + 2 * s.nstamp; assert r + 1 < 100
            s.e(f"s_memtime s[{r}:{r+1}] ; {name}"); s.nstamp += 1

SX, SW2, SDBG, SWS, SW1, SOUT = "s[16:19]", "s[20:23]", "s[24:27]", "s[32:35]", "s[36:39]", "s[40:43]"
WSB = "s[32:33]"; sNON = "s[70:71]"
sW, sB1, sJ1, sB2, sJ2, sFW = "s44", "s28", "s29", "s30", "s31", "s45"
sXB, sFH, sKS, sT0, sT1, sT2, sM0 = "s46", "s47", "s48", "s49", "s50", "s51", "s52"
sHST, sTP, sCNT, sP0A, sPWA, sTD, sOUT = "s53", "s54", "s55", "s56", "s57", "s58", "s59"
sDA, sPH, sT3 = "s0", "s1", "s3"
KW = 60
vL = "v1"; vX = ["v2", "v3"]; vW = ["v4", "v5"]; vP0 = "v6"; vL16 = "v7"
vRX = [[8, 9, 10, 11], [12, 13, 14, 15]]; vRW = [16, 17]
vHST, vOUT, vTW, vTR, vT0, vT1, vT2 = "v18", "v19", "v20", "v21", "v22", "v23", "v24"
vRDW = ["v25", "v26", "v27"]; vRDR, vP0R, vW2A, vW2B = "v28", "v29", "v30", "v31"
vH = ["v32", "v33", "v34", "v35"]; NON = 36; vOUT2 = ["v38", "v39", "v40"]; vDUM = "v41"
ACC1 = 48; XR = 80; WF = 224; HB = 80; NHB = 24; ACC2 = 176
def vr(a, n): return f"v[{a}:{a+n-1}]"
def xreg(n): return vr(XR + 4 * n, 4) if n < 36 else f"a[{240+4*(n-36)}:{240+4*(n-36)+3}]"

def gen(cfg):
    g = G(cfg); e = g.e
    R = 8; LA = cfg.LA; NST = 20; SLOT = 16384
    LDS_P0 = R * SLOT
    lds_bytes = LDS_P0 + 8192
    LDS_T = 65536
    def mod3(dst, src, tmp):
        e(f"s_mul_i32 {tmp}, {src}, 86"); e(f"s_lshr_b32 {tmp}, {tmp}, 8"); e(f"s_mul_i32 {tmp}, {tmp}, 3"); e(f"s_sub_u32 {dst}, {src}, {tmp}")
    e("s_cmp_ge_u32 s2, 256"); e("s_cbranch_scc1 Lend")
    e("s_load_dwordx4 s[4:7], s[0:1], 0"); e("s_load_dwordx4 s[8:11], s[0:1], 16"); e("s_load_dwordx4 s[12:15], s[0:1], 32")
    e("s_memrealtime s[100:101]")
    g.stamp("start")
    if cfg.prof: e("s_memrealtime s[72:73]")
    e(f"v_lshrrev_b32 {vT0}, 6, v0"); e(f"v_and_b32 {vL}, 63, v0"); e(f"s_and_b32 {sT0}, s2, 7"); e(f"v_readfirstlane_b32 {sW}, {vT0}")
    e(f"s_lshr_b32 {sT1}, s2, 3")
    def part(kind, sb, sj):
        if kind == "A":
            e(f"s_lshl_b32 {sb}, {sT0}, 2"); e(f"s_lshr_b32 {sT2}, {sT1}, 3"); e(f"s_add_u32 {sb}, {sb}, {sT2}"); e(f"s_and_b32 {sj}, {sT1}, 7")
        else:
            e(f"s_lshr_b32 {sb}, {sT0}, 1"); e(f"s_lshl_b32 {sb}, {sb}, 3"); e(f"s_lshr_b32 {sT2}, {sT1}, 2"); e(f"s_add_u32 {sb}, {sb}, {sT2}")
            e(f"s_and_b32 {sj}, {sT0}, 1"); e(f"s_lshl_b32 {sj}, {sj}, 2"); e(f"s_and_b32 {sT2}, {sT1}, 3"); e(f"s_add_u32 {sj}, {sj}, {sT2}")
    part(cfg.p1, sB1, sJ1)
    def t0_of(dst, band):
        if cfg.trot: e(f"s_lshr_b32 {dst}, {band}, {cfg.tsh}"); mod3(dst, dst, sT2)
        else: e(f"s_mov_b32 {dst}, 0")
    t0_of(sTD, sB1)
    if cfg.r1 > 1:
        e(f"s_add_u32 {sKS}, {sB1}, {sJ1}"); e(f"s_and_b32 {sKS}, {sKS}, {cfg.r1-1}"); e(f"s_mul_i32 {sKS}, {sKS}, 10"); e(f"s_lshr_b32 {sKS}, {sKS}, {cfg.r1.bit_length()-1}")
    else: e(f"s_mov_b32 {sKS}, 0")
    e(f"s_mul_i32 {sXB}, {sB1}, {64*1280}"); e(f"s_mul_i32 {sT3}, {sJ1}, 384"); e(f"s_mov_b32 {sTP}, {sTD}")
    e(f"s_lshl_b32 {sT2}, {sTD}, 7"); e(f"s_add_u32 {sT3}, {sT3}, {sT2}")
    e(f"s_lshl_b32 {sM0}, {sW}, 11")
    e(f"v_lshrrev_b32 {vT0}, 3, {vL}"); e(f"s_lshl_b32 {sT2}, {sW}, 4"); e(f"v_add_u32 {vT0}, {sT2}, {vT0}")
    e(f"v_mul_u32_u24 {vP0}, 1280, {vT0}"); e(f"v_mul_u32_u24 {vW[1]}, 3072, {vT0}")
    e(f"v_and_b32 {vT1}, 7, {vL}"); e(f"v_lshrrev_b32 {vT2}, 4, {vL}"); e(f"v_xor_b32 {vT0}, {vT1}, {vT2}")
    e(f"v_lshl_add_u32 {vX[0]}, {vT0}, 4, {vP0}")
    e(f"v_xor_b32 {vT0}, 4, {vT0}"); e(f"v_lshl_add_u32 {vX[1]}, {vT0}, 4, {vP0}"); e(f"v_add_u32 {vX[1]}, {8*1280-1024}, {vX[1]}")
    e(f"v_lshl_add_u32 {vP0}, {vT1}, 4, {vP0}")
    e(f"v_and_b32 {vT2}, 1, {vT2}"); e(f"v_lshlrev_b32 {vT2}, 2, {vT2}"); e(f"v_xor_b32 {vT1}, {vT1}, {vT2}")
    e(f"v_add_u32 {vW[1]}, {sT3}, {vW[1]}")
    e(f"v_lshl_add_u32 {vW[0]}, {vT1}, 4, {vW[1]}"); e(f"v_add_u32 {vW[1]}, {8*3072-1024}, {vW[0]}")
    for srd, n in ((16, 2621440), (36, 1966080), (20, 1966080), (24, 256)):
        e(f"s_mov_b32 s{srd+2}, {n}"); e(f"s_mov_b32 s{srd+3}, 0x00020000")
    e(f"s_lshl_b32 {sFH}, {sB1}, 3"); e(f"s_add_u32 {sFH}, {sFH}, {sJ1}")
    e(f"s_sub_u32 {sHST}, {sFH}, 16"); e(f"s_cmp_lt_u32 {sFH}, 240"); e(f"s_cselect_b32 {sHST}, {sFH}, {sHST}")
    e(f"s_mul_i32 {sPWA}, {sHST}, 2731"); e(f"s_lshr_b32 {sPWA}, {sPWA}, 16")
    e(f"s_mul_i32 {sT2}, {sPWA}, 24"); e(f"s_sub_u32 {sHST}, {sHST}, {sT2}")
    e(f"s_mul_i32 {sT2}, {sHST}, {64*1280}"); e(f"s_lshl_b32 {sP0A}, {sPWA}, 7"); e(f"s_add_u32 {sP0A}, {sP0A}, {sT2}")
    def p0_loads():
        e(f"s_add_u32 m0, {sM0}, {LDS_P0}"); e(f"s_add_u32 {sT2}, {sP0A}, {8*1280-1024}")
        if cfg.xp0ld: return
        g.vmem(f"buffer_load_dwordx4 {vP0}, {SW2}, {sP0A} offen lds", "p0")
        g.vmem(f"buffer_load_dwordx4 {vP0}, {SW2}, {sT2} offen offset:1024 lds", "p0")
    e("s_waitcnt lgkmcnt(0)")
    for srd, p in ((16, 4), (36, 6), (20, 8)): e(f"s_mov_b64 s[{srd}:{srd+1}], s[{p}:{p+1}]")
    e("s_mov_b64 s[24:25], s[12:13]")
    e(f"s_or_b32 {sT2}, s2, {sW}"); e("s_cbranch_scc1 Lnn")
    e("s_bitset1_b32 s101, 31"); e(f"v_mov_b32 v{NON}, s100"); e(f"v_mov_b32 v{NON+1}, s101")
    e("s_mov_b64 exec, 1"); e(f"buffer_store_dwordx2 {vr(NON,2)}, off, {SDBG}, 0 sc1"); e("s_mov_b64 exec, -1")
    g.label("Lnn")
    g.stamp("srd")
    adv = [f"s_add_u32 {sKS}, {sKS}, 1", f"s_cmp_eq_u32 {sKS}, 10", f"s_cselect_b32 {sKS}, 0, {sKS}"]
    def wchunk(base, tag, c, pre):
        return [(pre + [f"s_add_u32 m0, {sM0}, {base}", "s_nop 0"], f"buffer_load_dwordx4 {vW[0]}, {SW1}, s{KW+c} offen lds", tag),
                ([], f"buffer_load_dwordx4 {vW[1]}, {SW1}, s{KW+c} offen offset:1024 lds", tag)]
    nextpass = [f"s_add_u32 {sTD}, {sTD}, 1", f"s_cmp_eq_u32 {sTD}, 3", f"s_cselect_b32 {sTD}, 0, {sTD}", f"s_cselect_b32 {sT3}, -2, 1", f"s_lshl_b32 {sT3}, {sT3}, 7",
                f"v_add_u32 {vW[0]}, {sT3}, {vW[0]}", f"v_add_u32 {vW[1]}, {sT3}, {vW[1]}"]
    def dma_groups(s):
        slot = (s % R) * SLOT; tag = f"st{s}"
        if s < 10:
            return [([f"s_lshl_b32 {sDA}, {sKS}, 7", f"s_add_u32 m0, {sM0}, {slot}", f"s_add_u32 {sDA}, {sDA}, {sXB}"], f"buffer_load_dwordx4 {vX[0]}, {SX}, {sDA} offen lds", tag),
                    ([f"s_mul_i32 s{KW+s}, {sKS}, {64*3072}"], f"buffer_load_dwordx4 {vX[1]}, {SX}, {sDA} offen offset:1024 lds", tag)] + wchunk(slot + 8192, tag, s, adv)
        c = 2 * ((s - 10) % 5)
        return wchunk(slot, tag, c, nextpass if c == 0 else []) + wchunk(slot + 8192, tag, c + 1, [])
    def issue(gr):
        for t in gr[0]: e(t)
        g.vmem(gr[1], gr[2])
    NPRO = min(cfg.npro, LA)
    if cfg.p0first: p0_loads()
    for s in range(NPRO): [issue(gr) for gr in dma_groups(s)]
    for srd, p, n in ((40, 10, 2621440), (32, 14, WS_USED)):
        e(f"s_mov_b64 s[{srd}:{srd+1}], s[{p}:{p+1}]"); e(f"s_mov_b32 s{srd+2}, {n}"); e(f"s_mov_b32 s{srd+3}, 0x00020000")
    if cfg.cpf:
        e("s_getpc_b64 s[100:101]"); e(f"s_lshl_b32 {sT2}, {sT1}, 2"); e(f"s_add_u32 {sT2}, {sT2}, {sW}"); e(f"s_lshl_b32 {sT2}, {sT2}, 7")
        e(f"s_min_u32 {sT2}, {sT2}, CODE_END_PF"); e(f"s_add_u32 s100, s100, {sT2}"); e("s_addc_u32 s101, s101, 0"); e("s_load_dword s101, s[100:101], 0")
        g.label("Lpc")
    part(cfg.p2, sB2, sJ2)
    if not cfg.p0first: p0_loads()
    e(f"s_mov_b32 {sT0}, {sHST}"); e(f"s_mov_b32 {sT1}, {sPWA}"); e(f"s_mov_b32 {sT3}, {sFH}")
    e(f"s_mul_i32 {sT2}, {sT0}, 43"); e(f"s_lshr_b32 {sT2}, {sT2}, 8")
    e(f"s_lshl_b32 {sFW}, {sT1}, 2"); e(f"s_add_u32 {sFW}, {sFW}, {sT2}"); e(f"s_lshl_b32 {sFW}, {sFW}, 5")
    e(f"s_mul_i32 {sT2}, {sT2}, 6"); e(f"s_sub_u32 {sT2}, {sT0}, {sT2}"); e(f"s_add_u32 {sFW}, {sFW}, {sT2}"); e(f"s_lshl_b32 {sFW}, {sFW}, 2")
    e(f"s_sub_u32 {sT2}, {sT3}, 200"); e(f"s_lshl_b32 {sT2}, {sT2}, 7"); e(f"s_cmp_lt_u32 {sT3}, 240"); e(f"s_cselect_b32 {sFW}, {sFW}, {sT2}")
    e(f"s_add_u32 {sFW}, {sFW}, {FW_OFF}")
    e(f"s_lshl_b32 {sT1}, {sT1}, 2"); e(f"s_add_u32 {sT1}, {sT1}, {sW}")
    e(f"s_mul_i32 {sT2}, {sT1}, 52"); e(f"s_lshr_b32 {sT2}, {sT2}, 8")
    e(f"s_mul_i32 {sP0A}, {sT2}, 235"); e(f"s_add_u32 {sP0A}, {sP0A}, {sT1}")
    e(f"s_mul_i32 {sT2}, {sT0}, 10"); e(f"s_add_u32 {sP0A}, {sP0A}, {sT2}")
    e(f"s_lshl_b32 {sP0A}, {sP0A}, 10"); e(f"s_add_u32 {sP0A}, {sP0A}, {W2P_OFF}")
    e(f"s_lshr_b32 {sFH}, {sT3}, 1"); e(f"s_lshl_b32 {sFH}, {sFH}, 7"); e(f"s_and_b32 {sT2}, {sJ1}, 1"); e(f"s_lshl_b32 {sT2}, {sT2}, 3")
    e(f"s_add_u32 {sFH}, {sFH}, {sT2}"); e(f"s_add_u32 {sFH}, {sFH}, {FH_OFF}")
    e(f"v_lshlrev_b32 {vL16}, 4, {vL}")
    e(f"s_lshl_b32 {sOUT}, {sB2}, 2"); e(f"s_add_u32 {sOUT}, {sOUT}, {sW}"); e(f"s_mul_i32 {sOUT}, {sOUT}, {16*1280}")
    e(f"s_mul_i32 {sT2}, {sJ2}, 160"); e(f"s_add_u32 {sOUT}, {sOUT}, {sT2}")
    if cfg.warm:
        e("s_mov_b64 exec, 1")
        g.vmem(f"buffer_load_dword {vDUM}, off, {SOUT}, {sOUT}", "warm")
        e(f"s_lshl_b32 {sT2}, {sB1}, 18"); e(f"s_add_u32 {sT2}, {sT2}, {200<<10}")
        g.vmem(f"buffer_load_dword {vDUM}, off, {SWS}, {sT2}", "warm")
        e(f"s_mov_b32 {sT2}, {FH_OFF + 32768}")
        g.vmem(f"buffer_load_dword {vDUM}, off, {SWS}, {sT2}", "warm")
        if cfg.p1 != cfg.p2:
            e(f"s_lshl_b32 {sT2}, {sB2}, 18"); e(f"s_add_u32 {sT2}, {sT2}, {200<<10}")
            g.vmem(f"buffer_load_dword {vDUM}, off, {SWS}, {sT2}", "warm")
        e("s_mov_b64 exec, -1")
    e(f"s_and_b32 {sT0}, {sW}, 1"); e(f"s_lshr_b32 {sT1}, {sW}, 1")
    e(f"v_and_b32 {vT0}, 31, {vL}"); e(f"s_lshl_b32 {sT2}, {sT0}, 5"); e(f"v_add_u32 {vT0}, {sT2}, {vT0}"); e(f"v_lshlrev_b32 {vT0}, 7, {vT0}")
    e(f"v_bfe_u32 {vT1}, {vL}, 1, 3"); e(f"v_lshrrev_b32 {vT2}, 5, {vL}"); e(f"v_xor_b32 {vT1}, {vT1}, {vT2}")
    e(f"v_lshl_add_u32 v{vRX[0][0]}, {vT1}, 4, {vT0}")
    for q in range(1, 4): e(f"v_xor_b32 v{vRX[0][q]}, {32*q}, v{vRX[0][0]}")
    for q in range(4): e(f"v_add_u32 v{vRX[1][q]}, 0x10000, v{vRX[0][q]}")
    e(f"v_lshrrev_b32 {vT0}, 5, {vL}"); e(f"v_lshlrev_b32 {vT0}, 3, {vT0}"); e(f"v_bfe_u32 {vT1}, {vL}, 2, 2"); e(f"v_add_u32 {vT0}, {vT0}, {vT1}")
    e(f"v_lshlrev_b32 {vT0}, 7, {vT0}")
    e(f"v_bfe_u32 {vT1}, {vL}, 4, 1"); e(f"v_lshl_add_u32 {vT0}, {vT1}, 5, {vT0}")
    e(f"v_and_b32 {vT1}, 1, {vL}"); e(f"v_lshl_add_u32 {vT0}, {vT1}, 4, {vT0}")
    e(f"v_bfe_u32 {vT1}, {vL}, 1, 1"); e(f"v_lshl_add_u32 {vT0}, {vT1}, 3, {vT0}")
    e(f"v_bfe_u32 {vT1}, {vL}, 3, 1"); e(f"v_xor_b32 {vT1}, {sT1}, {vT1}"); e(f"v_lshl_add_u32 v{vRW[0]}, {vT1}, 6, {vT0}")
    e(f"v_add_u32 v{vRW[1]}, 0x10000, v{vRW[0]}")
    e(f"v_bfe_u32 {vT0}, {vL}, 4, 1"); e(f"v_mul_u32_u24 {vT0}, 49152, {vT0}"); e(f"v_and_b32 {vT1}, 15, {vL}"); e(f"v_lshl_add_u32 {vT0}, {vT1}, 4, {vT0}")
    e(f"v_lshrrev_b32 {vT1}, 5, {vL}"); e(f"v_lshl_add_u32 {vHST}, {vT1}, 8, {vT0}")
    e(f"s_lshl_b32 {sHST}, {sB1}, 8"); e(f"s_mul_i32 {sT2}, {sT0}, 96"); e(f"s_add_u32 {sHST}, {sHST}, {sT2}")
    e(f"s_mul_i32 {sT2}, {sJ1}, 6"); e(f"s_add_u32 {sHST}, {sHST}, {sT2}"); e(f"s_add_u32 {sHST}, {sHST}, {sT1}")
    e(f"s_lshl_b32 {sHST}, {sHST}, 10")
    e(f"v_lshrrev_b32 {vT0}, 4, {vL}"); e(f"v_lshlrev_b32 {vT0}, 3, {vT0}"); e(f"v_bfe_u32 {vT1}, {vL}, 2, 2"); e(f"v_add_u32 {vT0}, {vT0}, {vT1}")
    e(f"v_lshlrev_b32 {vT0}, 7, {vT0}"); e(f"v_and_b32 {vT1}, 3, {vL}"); e(f"v_lshl_add_u32 {vT0}, {vT1}, 3, {vT0}")
    e(f"s_lshl_b32 {sT2}, {sW}, 5"); e(f"s_add_u32 {sT2}, {sT2}, {LDS_P0}"); e(f"v_add_u32 {vP0R}, {sT2}, {vT0}")
    for s in range(NPRO, min(LA, cfg.npro2)): [issue(gr) for gr in dma_groups(s)]
    e(f"s_mul_i32 {sPWA}, {sJ2}, 5"); e(f"s_lshr_b32 {sPWA}, {sPWA}, 2"); e(f"s_lshl_b32 {sPWA}, {sPWA}, 2"); e(f"s_add_u32 {sPWA}, {sPWA}, {sW}")
    e(f"s_lshl_b32 {sPWA}, {sPWA}, 7"); e(f"s_add_u32 {sPWA}, {sPWA}, {FW_OFF}")
    e(f"s_lshl_b32 {sPH}, {sB2}, 2"); e(f"s_add_u32 {sPH}, {sPH}, {sW}"); e(f"s_lshl_b32 {sPH}, {sPH}, 7"); e(f"s_add_u32 {sPH}, {sPH}, {FH_OFF}")
    for i in range(4):
        e(f"s_add_u32 {sT0}, {sW}, {1+i}"); e(f"s_and_b32 {sT0}, {sT0}, 3")
        if i < 3:
            e(f"s_mul_i32 {sT2}, {sT0}, {3*5120}"); e(f"s_add_u32 {sT2}, {sT2}, {i*5120}"); e(f"v_add_u32 {vRDW[i]}, {sT2}, {vL16}")
        e(f"s_lshl_b32 {sT1}, {sB2}, 8"); e(f"s_mul_i32 {sT2}, {sT0}, 48"); e(f"s_add_u32 {sT1}, {sT1}, {sT2}")
        e(f"s_mul_i32 {sT2}, {sW}, 12"); e(f"s_add_u32 {sT1}, {sT1}, {sT2}"); e(f"s_lshl_b32 {sT1}, {sT1}, 10")
        e(f"v_add_u32 {vH[i]}, {sT1}, {vL16}")
    e(f"s_mul_i32 {sT2}, {sW}, {3*5120}"); e(f"v_add_u32 {vRDR}, {sT2}, {vL16}")
    e(f"s_mul_i32 {sT2}, {sW}, 2816"); e(f"s_add_u32 {sT2}, {sT2}, {LDS_T}")
    e(f"v_and_b32 {vT0}, 15, {vL}"); e(f"v_mul_u32_u24 {vT0}, 176, {vT0}"); e(f"v_lshrrev_b32 {vT1}, 4, {vL}"); e(f"v_lshl_add_u32 {vT0}, {vT1}, 3, {vT0}")
    e(f"v_add_u32 {vTW}, {sT2}, {vT0}")
    vTRs = [vTR, vOUT, vDUM]
    for i in range(3):
        e(f"v_add_u32 {vT0}, {64*i}, {vL}"); e(f"v_mul_u32_u24 {vT1}, 205, {vT0}"); e(f"v_lshrrev_b32 {vT1}, 11, {vT1}")
        e(f"v_mul_u32_u24 {vT2}, 10, {vT1}"); e(f"v_sub_u32 {vT0}, {vT0}, {vT2}"); e(f"v_lshlrev_b32 {vT0}, 4, {vT0}")
        e(f"v_mul_u32_u24 {vT2}, 1280, {vT1}"); e(f"v_add_u32 {vOUT2[i]}, {vT2}, {vT0}")
        e(f"v_mul_u32_u24 {vT2}, 176, {vT1}"); e(f"v_add3_u32 v{42+i}, {vT2}, {vT0}, {sT2}")
    e(f"s_lshl_b32 {sT0}, {sJ2}, 2"); e(f"s_add_u32 {sT0}, {sT0}, {sW}"); e(f"s_mul_i32 {sT0}, {sT0}, {60*1024}"); e(f"s_add_u32 {sT0}, {sT0}, {W2P_OFF}")
    e(f"v_add_u32 {vW2A}, {sT0}, {vL16}"); e(f"v_add_u32 {vW2B}, 4096, {vW2A}")
    t0_of(sT0, sB2)
    if cfg.rk == 0: e(f"s_mov_b32 {sT1}, 0")
    elif cfg.rk == 1: e(f"s_and_b32 {sT1}, {sB2}, 1"); e(f"s_lshl_b32 {sT1}, {sT1}, 1")
    elif cfg.rk == 2: e(f"s_and_b32 {sT1}, {sB2}, 1"); e(f"s_lshl_b32 {sT1}, {sT1}, 1"); e(f"s_add_u32 {sT1}, {sT1}, {sJ2}")
    elif cfg.rk == 3: e(f"s_add_u32 {sT1}, {sB2}, {sJ2}"); e(f"s_lshl_b32 {sT1}, {sT1}, 1")
    for kk in range(4):
        e(f"s_add_u32 {sT2}, {sT1}, {kk}"); e(f"s_and_b32 {sCNT}, {sT2}, 1"); e(f"s_bfe_u32 {sT2}, {sT2}, 0x10001"); e(f"s_mul_i32 {sT2}, {sT2}, 6")
        e(f"s_add_u32 {sT2}, {sT2}, {sCNT}"); e(f"s_lshl_b32 s{4+kk}, {sT2}, 10")
    for p in (2, 1, 0):
        e(f"s_add_u32 {sT2}, {sT0}, {p}"); e(f"s_sub_u32 {sCNT}, {sT2}, 3"); e(f"s_cmp_ge_u32 {sT2}, 3"); e(f"s_cselect_b32 {sT2}, {sCNT}, {sT2}"); e(f"s_lshl_b32 {sT2}, {sT2}, 11")
        for kk in range(4): e(f"s_add_u32 s{4+4*p+kk}, s{4+kk}, {sT2}")
    pend = []
    for s in range(max(NPRO, min(LA, cfg.npro2)), LA): pend.extend(dma_groups(s))

    def flag_store(name, sreg, off, wide):
        e(f"s_cmp_lg_u32 {sW}, 0"); e(f"s_cbranch_scc1 L{name}")
        e("s_mov_b64 exec, 1")
        if wide: e(f"buffer_store_dwordx2 {vr(NON,2)}, off, {SWS}, {sreg} offset:{off} sc1")
        else: e(f"buffer_store_dword v{NON}, off, {SWS}, {sreg} sc1")
        e("s_mov_b64 exec, -1")
        g.label(f"L{name}")
    ld_non = f"buffer_load_dwordx2 {vr(NON,2)}, off, {SDBG}, 0 sc1"; cmp_non = f"v_cmp_eq_u32 vcc, 0, v{NON+1}"
    def spin_non():
        e(cmp_non); e(f"s_mov_b32 {sCNT}, 0"); e("s_nop 0"); e(f"s_cbranch_vccz Lnon_ok")
        g.label("Lnon")
        e(f"s_sleep {cfg.sleep}"); e(ld_non); e("s_waitcnt vmcnt(0)"); e(cmp_non)
        e(f"s_add_u32 {sCNT}, {sCNT}, 1"); e(f"s_cmp_gt_u32 {sCNT}, 200000"); e(f"s_cbranch_scc1 Lnon_ok")
        e(f"s_cbranch_vccnz Lnon")
        g.label("Lnon_ok")
        e(f"v_readfirstlane_b32 s70, v{NON}"); e(f"v_readfirstlane_b32 s71, v{NON+1}")
    ld_pw = f"s_load_dwordx8 s[16:23], {WSB}, {sPWA} glc\n    s_load_dwordx8 s[24:31], {WSB}, {sPWA} offset:512 glc"
    def s_check(name, reload, test):
        g.wait_lg0(); e(f"s_mov_b32 {sCNT}, 0")
        g.label(f"L{name}")
        test(); e(f"s_cbranch_scc1 L{name}_ok")
        e(f"s_sleep {cfg.sleep}"); e(reload); e("s_waitcnt lgkmcnt(0)")
        e(f"s_add_u32 {sCNT}, {sCNT}, 1"); e(f"s_cmp_lt_u32 {sCNT}, 400000"); e(f"s_cbranch_scc1 L{name}")
        g.label(f"L{name}_ok")
    def test_pw():
        e("s_xor_b64 s[16:17], s[16:17], s[18:19]"); e("s_xor_b64 s[18:19], s[18:19], s[20:21]"); e("s_xor_b64 s[22:23], s[20:21], s[24:25]")
        e("s_xor_b64 s[24:25], s[24:25], s[26:27]"); e("s_xor_b64 s[26:27], s[26:27], s[28:29]"); e("s_xor_b32 s30, s28, s29"); e("s_xor_b32 s31, s28, s70")
        e("s_or_b64 s[16:17], s[16:17], s[18:19]"); e("s_or_b64 s[22:23], s[22:23], s[24:25]"); e("s_or_b64 s[26:27], s[26:27], s[30:31]")
        e("s_or_b64 s[16:17], s[16:17], s[22:23]"); e("s_or_b64 s[16:17], s[16:17], s[26:27]"); e("s_cmp_eq_u64 s[16:17], 0")
    def test_ph():
        e(f"s_xor_b64 s[16:17], s[16:17], {sNON}"); e(f"s_xor_b64 s[18:19], s[18:19], {sNON}"); e("s_or_b64 s[16:17], s[16:17], s[18:19]"); e("s_cmp_eq_u64 s[16:17], 0")
    ld_ph = f"s_load_dwordx4 s[16:19], {WSB}, {sPH} glc"

    def wblk(s):
        out = []
        for t in range(5):
            a = 4 * (5 * s + t)
            pre = [f"s_mul_i32 {sXB}, s{4+s}, 5"] if t == 0 else []
            if t < 4: out.append(("W", pre, f"buffer_load_dwordx4 a[{a}:{a+3}], {vW2A}, {SWS}, {sXB} offen offset:{1024*t} sc1", f"w{s}"))
            else: out.append(("W", pre, f"buffer_load_dwordx4 a[{a}:{a+3}], {vW2B}, {SWS}, {sXB} offen sc1", f"w{s}"))
        return out
    stream = []; groups = []
    for s in range(cfg.lead): stream += wblk(s)
    for s in range(8):
        for i in range(4): stream.append(("H", s, i)); groups.append((s, i))
        if s + cfg.lead < 12: stream += wblk(s + cfg.lead)
    for i in range(4):
        for s in range(8, 12): stream.append(("H", s, i)); groups.append((s, i))
    for p in (2, 1, 0):
        idx = stream.index(("H", 4 * p, 0))
        stream.insert(idx, ("C", p))
        stream.insert(max(0, idx - (cfg.pd if p else cfg.pd0)), ("P", p))
    hbuf = {}; hcount = [0]
    def stream_issue(allow_h=True):
        it = stream[0]
        if it[0] == "W":
            stream.pop(0)
            for t in it[1]: e(t)
            g.vmem(it[2], it[3]); return True
        if it[0] == "P" and not allow_h and cfg.holdp:
            if len(stream) > 1 and stream[1][0] == "W":
                stream[0], stream[1] = stream[1], stream[0]
                return stream_issue(allow_h)
            return False
        if it[0] == "P":
            stream.pop(0)
            if it[1]: e(f"s_add_u32 {sPH}, {sPH}, 16")
            e(ld_ph); g.lgmax = 13
            return stream_issue(allow_h)
        if not allow_h: return False
        if it[0] == "C":
            stream.pop(0); g.stamp(f"c{it[1]}a"); s_check(f"ph{it[1]}", ld_ph, test_ph); g.stamp(f"c{it[1]}b"); return stream_issue()
        _, s, i = stream.pop(0)
        while hcount[0] % NHB in hbuf.values(): hcount[0] += 1
        b = hcount[0] % NHB; hcount[0] += 1
        hbuf[(s, i)] = b
        g.vmem(f"buffer_load_dwordx4 {vr(HB+4*b,4)}, {vH[i]}, {SWS}, s{4+s} offen sc1", f"h{s}_{i}")
        return True

    NSTEP = 120
    def stage_of(n): return n // 4 if n < 40 else 10 + (n - 40) // 8
    def first_step(s): return 4 * s if s < 10 else 40 + 8 * (s - 10)
    def last_step(s): return first_step(s + 1) - 1
    def DD(n): return cfg.d0 if n < 40 else cfg.d1
    def reads(n):
        s = stage_of(n); slot = s % R; hi = slot >> 2; base = (slot & 3) * SLOT
        q = n % 4; out = []
        if n < 40:
            out.append(f"ds_read_b128 {xreg(n)}, v{vRX[hi][q]} offset:{base}"); wb = base + 8192
        else: wb = base + 8192 * (((n - 40) % 8) // 4)
        for half in range(2):
            out.append(f"ds_read_b64_tr_b16 {vr(WF+4*(n%8)+2*half,2)}, v{vRW[hi]} offset:{wb+(16*q+4*half)*128}")
        return out
    w2_ok = [False]; early = [cfg.n0]; done_step = [-1]; flagged = set(); issued_tags = set()
    def barrier(s):
        tags = [f"st{s}"]
        if s == cfg.p0s: tags.append("p0")
        if s == cfg.flagw: tags += ["p0st"]
        for p in (0, 1):
            if s == cfg.fh[p]: tags.append(f"hst{p}")
        while pend and int(pend[0][2][2:]) <= s: issue(pend.pop(0))
        g.wait_vm(*tags)
        e("s_barrier")
        g.stamp(f"b{s}")
        if s == cfg.p0s:
            for kk in range(2):
                for half in range(2): g.lds(f"ds_read_b64_tr_b16 {vr(ACC1+16+4*kk+2*half,2)}, {vP0R} offset:{half*512+kk*4096}", "p0r")
            e(f"s_add_u32 {sT0}, {sP0A}, 5120")
            g.wait_lg("p0r")
            if not cfg.xp0st:
                g.vmem(f"buffer_store_dwordx4 {vr(ACC1+16,4)}, {vL16}, {SWS}, {sP0A} offen sc1", "p0st")
                g.vmem(f"buffer_store_dwordx4 {vr(ACC1+20,4)}, {vL16}, {SWS}, {sT0} offen sc1", "p0st")
        if s == cfg.nons: e(f"s_load_dwordx2 {sNON}, s[24:25], 0"); g.lgmax = 13
        if s == cfg.nons + 2:
            s_check("non", f"s_load_dwordx2 {sNON}, s[24:25], 0 glc", lambda: e("s_cmp_lg_u32 s71, 0")); g.lgmax = 15
            e(f"v_mov_b32 v{NON}, s70"); e(f"v_mov_b32 v{NON+1}, s71")
        if s == cfg.flagw: assert cfg.nons + 2 <= s; flag_store("nf1", sFW, 0, False)
        if s == cfg.pollw: assert not any(int(x[2][2:]) < 10 for x in pend) and s + LA > 10 and s > cfg.flagw; e(ld_pw.replace(' glc', '') if cfg.pwc else ld_pw); g.lgmax = 11
        if s == cfg.pollw + cfg.pgap:
            g.stamp("pwa"); s_check("pw", ld_pw, test_pw); w2_ok[0] = True; g.lgmax = 15; g.stamp("pwb")
        for p in (0, 1):
            if s == cfg.fh[p]: assert f"hst{p}" in issued_tags; flag_store(f"nh{p}", sFH, 16 * p, True); flagged.add(p)
        ns = s + LA
        if ns < NST:
            old = ns - R
            assert old < 0 or last_step(old) <= done_step[0], (s, old, done_step[0])
            pend.extend(dma_groups(ns))
    def slot_issue():
        if pend: issue(pend.pop(0))
        elif w2_ok[0] and early[0] > 0 and stream_issue(allow_h=False): early[0] -= 1
    def epilogue_ops(p):
        a = ACC1 + 16 * (p & 1); ops = []
        for i in range(8): ops.append(("v", f"v_cvt_pk_bf16_f32 v{a+i}, v{a+2*i}, v{a+2*i+1}"))
        for i in range(8): ops.append(("v", f"v_pk_max_i16 v{a+i}, v{a+i}, 0"))
        ops.append(("v", f"s_lshl_b32 {sT1}, {sTP}, 11")); ops.append(("v", f"s_add_u32 {sT1}, {sT1}, {sHST}"))
        for c in range(2): ops.append(("m", f"buffer_store_dwordx4 {vr(a+4*c,4)}, {vHST}, {SWS}, {sT1} offen offset:{c*512} sc1", f"hst{p}"))
        ops += [("v", f"s_add_u32 {sTP}, {sTP}, 1"), ("v", f"s_cmp_eq_u32 {sTP}, 3\n    s_cselect_b32 {sTP}, 0, {sTP}")]
        return ops
    def run_ops(ops, k):
        for _ in range(k):
            if not ops: return
            o = ops.pop(0)
            if o[0] == "v": e(o[1])
            else: g.vmem(o[1], o[2]); issued_tags.add(o[2])
    nread = [0]
    def issue_reads_upto(m):
        while nread[0] <= min(m, NSTEP - 1):
            n = nread[0]
            assert n - 8 <= done_step[0]
            if n == first_step(stage_of(n)): barrier(stage_of(n))
            for t in reads(n): g.lds(t, f"r{n}")
            nread[0] += 1
    issue_reads_upto(cfg.d0 - 1)
    ep = []
    for n in range(NSTEP):
        p = n // 40
        if n < 40 or not cfg.w2: g.wait_lg(f"r{n}")
        elif n % 2 == 0: g.wait_lg(f"r{n}", f"r{n+1}")
        a = vr(ACC1 + 16 * (p & 1), 16)
        e(f"v_mfma_f32_32x32x16_bf16 {a}, {vr(WF+4*(n%8),4)}, {xreg(n%40)}, {'0' if n % 40 == 0 else a}")
        done_step[0] = n
        tgt = min(n + DD(n + 1), nread[0] + 1)
        while len(g.lg) + sum(len(reads(k)) for k in range(nread[0], min(tgt, NSTEP - 1) + 1)) > g.lgmax: tgt -= 1
        tgt = max(tgt, min(n + 2, NSTEP - 1))
        issue_reads_upto(tgt)
        if n < 40:
            slot_issue()
            if len(pend) > 4: slot_issue()
        elif n % 2 == 1 or len(pend) > 4: slot_issue()
        if n % 40 == 3 and p > 0: ep = epilogue_ops(p - 1)
        run_ops(ep, 2)
    g.stamp("p1end")
    assert not pend and w2_ok[0]
    if stream[0][0] == "P": stream_issue()
    for _ in range(2): stream_issue(allow_h=False)
    e("s_nop 7"); e("s_nop 3")
    ep = epilogue_ops(2); run_ops(ep, 100)
    pos = [0]; hpos = {}
    def emit_group(s, i, extra):
        acc = ACC2 + 20 * i; b = hbuf[(s, i)]
        g.wait_vm(f"h{s}_{i}", f"w{s}")
        for t in range(5):
            a = 4 * (5 * s + t)
            cc = "0" if s == 0 else vr(acc+4*t,4)
            e(f"v_mfma_f32_16x16x32_bf16 {vr(acc+4*t,4)}, a[{a}:{a+3}], {vr(HB+4*b,4)}, {cc}")
            for x in extra[t]: x()
    nafter = 0; first = True
    while stream or groups:
        if stream:
            stream_issue(); pos[0] += 1; nafter += 1
            if pos[0] % 6 == 0: g.stamp(f"q{pos[0]}")
            for k in hbuf:
                if k not in hpos: hpos[k] = pos[0]
            for p, nn in ((1, cfg.n1a), (2, cfg.n1)):
                if p not in flagged and nafter >= nn:
                    g.wait_vm(f"hst{p}"); g.stamp(f"hst{p}"); e("s_barrier"); flag_store(f"nh{p}", sFH, 16 * p, True); flagged.add(p)
        if groups and groups[0] in hpos and (not stream or hpos[groups[0]] <= pos[0] - cfg.depth):
            s, i = groups[0]
            extra = [[] for _ in range(5)]
            W = lambda t, ii: (lambda: g.lds(f"ds_write_b128 {vRDW[ii]}, {vr(ACC2+20*ii+4*t,4)} offset:{1024*t}", "rw"))
            Rd = lambda k, u: (lambda: g.lds(f"ds_read_b128 {vr(ACC2+20*k+4*u,4)}, {vRDR} offset:{5120*k+1024*u}", f"rr{k}"))
            A = lambda r, k: (lambda: e(f"v_add_f32 v{ACC2+r}, v{ACC2+r}, v{ACC2+20*k+r}"))
            if s == 9 and i in (1, 2):
                for t in range(5): extra[t].append(W(t, i - 1))
            if i == 2 and s == 11:
                extra[0].append(lambda: (g.wait_lg0(), e("s_barrier")))
                for q in range(10): extra[q // 2].append(Rd(q // 5, q % 5))
            if i == 3 and s == 8:
                for t in range(5): extra[min(4, t + 2)].append(W(t, 2))
            if i == 3 and s == 9:
                extra[0].append(lambda: g.wait_lg("rr1"))
                for r in range(20): extra[r // 5].append(A(r, 1))
                extra[4].append(lambda: (g.wait_lg0(), e("s_barrier")))
                for u in range(5): extra[4].append(Rd(2, u))
            if i == 3 and s == 11:
                extra[0].append(lambda: g.wait_lg0())
                for r in range(20): extra[r // 4].append(A(r, 2))
            emit_group(s, i, extra)
            groups.pop(0); del hbuf[(s, i)]
            if first: g.stamp("g0"); first = False
            if not stream and len(groups) % 3 == 0: g.stamp(f"G{len(groups)}")
    assert cfg.lead >= 4 and flagged == {0, 1, 2}
    g.stamp("mfend")
    acc = ACC2 + 60; PR = ACC2
    g.wait_lg0()
    for t in range(5):
        if True:
            if t == 0: e("s_nop 3")
            for r in (0, 2): e(f"v_pk_add_f32 {vr(PR+4*t+r,2)}, {vr(PR+4*t+r,2)}, {vr(acc+4*t+r,2)}")
        else:
            for r in range(4): e(f"v_add_f32 v{PR+40+4*t+r}, v{PR+40+4*t+r}, v{acc+4*t+r}"); e(f"v_add_f32 v{PR+4*t+r}, v{PR+4*t+r}, v{PR+40+4*t+r}")
        e(f"v_cvt_pk_bf16_f32 v{PR+20+2*t}, v{PR+4*t}, v{PR+4*t+1}"); e(f"v_cvt_pk_bf16_f32 v{PR+21+2*t}, v{PR+4*t+2}, v{PR+4*t+3}")
        e(f"ds_write_b64 {vTW}, {vr(PR+20+2*t,2)} offset:{32*t}")
    e("s_waitcnt lgkmcnt(0)")
    for i in range(3): e(f"ds_read_b128 {vr(PR+40+4*i,4)}, v{42+i}")
    for i in range(3):
        e(f"s_waitcnt lgkmcnt({2-i})")
        if i == 2: e("s_mov_b32 exec_hi, 0")
        e(f"buffer_store_dwordx4 {vr(PR+40+4*i,4)}, {vOUT2[i]}, {SOUT}, {sOUT} offen {cfg.outsc}")
    if cfg.prof:
        e("s_waitcnt vmcnt(0)"); g.stamp("end"); e("s_memrealtime s[74:75]"); e("s_waitcnt lgkmcnt(0)")
        e(f"s_lshl_b32 {sT0}, s2, 2"); e(f"s_add_u32 {sT0}, {sT0}, {sW}"); e(f"s_lshl_b32 {sT0}, {sT0}, 7"); e(f"s_add_u32 {sT0}, {sT0}, {PROF_OFF}")
        if cfg.prof == 2:
            for k in range(max(0, g.nstamp - 4), g.nstamp): e(f"v_writelane_b32 v47, s{76+2*(k%8)}, {k}")
            e("s_mov_b64 exec, -1"); e(f"s_lshl_b32 {sT1}, s2, 2"); e(f"s_add_u32 {sT1}, {sT1}, {sW}"); e(f"s_lshl_b32 {sT1}, {sT1}, 8"); e(f"s_add_u32 {sT1}, {sT1}, {PROF_OFF + 0x100000}")
            e(f"v_lshlrev_b32 v24, 2, {vL}"); e(f"buffer_store_dword v47, v24, {SWS}, {sT1} offen"); e("s_nop 1")
            g.L.append("; STAMPS " + " ".join(g.names)); g.nstamp = 0
        e("s_mov_b64 exec, 1")
        regs = ["s72", "s74"] + [f"s{76+2*i}" for i in range(g.nstamp)]
        for i, r in enumerate(regs):
            e(f"v_mov_b32 v24, {r}"); e(f"buffer_store_dword v24, off, {SWS}, {sT0} offset:{4*i}"); e("s_nop 1")
    g.label("Lend")
    body = "\n".join(g.L)
    pf = ".set CODE_END_PF, Lend - Lpc\n" if cfg.cpf else ""
    return f"""{HDR}; @launch grid=(256,1,1) block=(256,1,1) lds={lds_bytes}
.amdgcn_target "amdgcn-amd-amdhsa--gfx950"
.text
.globl {KN}
.p2align 8
.type {KN},@function
{KN}:
{body}
    s_endpgm
{pf}.section .rodata,"a"
.p2align 6
.amdhsa_kernel {KN}
  .amdhsa_next_free_vgpr 512
  .amdhsa_next_free_sgpr 102
  .amdhsa_accum_offset 256
  .amdhsa_group_segment_fixed_size 0
  .amdhsa_kernarg_size 48
  .amdhsa_user_sgpr_count 2
  .amdhsa_user_sgpr_kernarg_segment_ptr 1
  .amdhsa_system_sgpr_workgroup_id_x 1
.end_amdhsa_kernel
"""

def parser():
    ap = argparse.ArgumentParser()
    ap.add_argument("-o", default="k.s"); ap.add_argument("--prof", type=int, default=0)
    ap.add_argument("--p1", default="B"); ap.add_argument("--p2", default="B")
    for name, d in (("r1", 2), ("trot", 1), ("tsh", 1), ("rk", 1), ("LA", 4), ("npro", 2), ("npro2", 3), ("p0first", 0), ("p0s", 2), ("flagw", 6), ("pollw", 14), ("pgap", 2),
                    ("sleep", 2), ("n0", 20), ("n1a", 12), ("n1", 24), ("lead", 6), ("own0", 4), ("pd", 8), ("pd0", 12), ("depth", 12), ("d0", 3), ("d1", 6),
                    ("fh0", 16), ("fh1", 99), ("cpf", 0), ("warm", 1), ("w2", 1), ("both", 0), ("nons", 1), ("holdp", 1), ("pwc", 1), ("tail2", 1), ("nocomp", 0), ("xp0st", 0), ("xp0ld", 0)):
        ap.add_argument("--" + name, type=int, default=d)
    ap.add_argument("--outsc", default="")
    ap.add_argument("--stamps", default="start,b0,b5,b10,b15,p1end,c0b,g0,c1b,c2b,mfend,end")
    return ap
if __name__ == "__main__":
    cfg = parser().parse_args()
    cfg.fh = [cfg.fh0, cfg.fh1]; cfg.stamps = cfg.stamps.split(",")
    open(cfg.o, "w").write(gen(cfg))
```

```python
import sys, argparse

KN = "standalone__dense_activation_relu__prompt_kernel"
HDR = """; Kernarg layout for this problem (48 bytes, ptrs only, base s[0:1]):
"""
HBAND = 256 << 10
W2P_OFF = 8 << 20
FW_OFF = W2P_OFF + (1920 << 10)
FH_OFF = FW_OFF + 8192
PROF_OFF = 0x8000000
WS_USED = 0x10000000

class G:
    def __init__(s, cfg):
        s.L = []; s.vm = []; s.lg = []; s.cfg = cfg; s.nstamp = 0; s.lgmax = 15; s.names = []
    def e(s, t):
        if s.cfg.nocomp & 1 and t.startswith("v_mfma"): return
        if s.cfg.nocomp & 2 and (t.startswith("ds_read_b64_tr_b16 v[2") or t.startswith("ds_read_b128")): return
        if s.cfg.nocomp & 4 and t.startswith("v_mfma_f32_32x32x16"):
            import re
            m = re.match(r"v_mfma_f32_32x32x16_bf16 v\[(\d+):\d+\], (\S+), (\S+), ", t)
            d = int(m.group(1))
            s.flip = getattr(s, "flip", 0) ^ 1
            for h in range(2):
                dd = d + 8 * s.flip + 4 * h
                s.L.append(f"    v_mfma_f32_16x16x32_bf16 v[{dd}:{dd+3}], {m.group(2)}, {m.group(3)}, v[{dd}:{dd+3}]")
            return
        s.L.append("    " + t)
    def label(s, n): s.L.append(n + ":")
    def vmem(s, t, tag): s.e(t); s.vm.append(tag)
    def lds(s, t, tag): s.e(t); s.lg.append(tag); assert len(s.lg) <= 15, s.lg
    def wait_vm(s, *tags):
        idxs = [i for i, t in enumerate(s.vm) if t in tags]
        if not idxs: return
        idx = max(idxs); n = len(s.vm) - 1 - idx
        assert n <= 63, n
        s.e(f"s_waitcnt vmcnt({n})"); s.vm = s.vm[idx + 1:]
    def wait_lg(s, *tags):
        idxs = [i for i, t in enumerate(s.lg) if t in tags]
        if not idxs: return
        idx = max(idxs); n = len(s.lg) - 1 - idx
        s.e(f"s_waitcnt lgkmcnt({n})"); s.lg = s.lg[idx + 1:]
    def wait_lg0(s): s.e("s_waitcnt lgkmcnt(0)"); s.lg = []
    def stamp(s, name):
        if s.cfg.prof == 2:
            k = s.nstamp; assert k < 64
            if k >= 4: s.e(f"v_writelane_b32 v47, s{76+2*((k-4)%8)}, {k-4}")
            r = 76 + 2 * (k % 8)
            if s.cfg.both:
                if name not in s.cfg.stamps: return
                s.e(f"s_memtime s[{r}:{r+1}] ; {name}"); s.nstamp += 1; s.names.append(name)
                k = s.nstamp
                if k >= 4: s.e(f"v_writelane_b32 v47, s{76+2*((k-4)%8)}, {k-4}")
                r = 76 + 2 * (k % 8)
                s.e(f"s_memrealtime s[{r}:{r+1}] ; {name}"); s.nstamp += 1; s.names.append(name + "_rt")
                return
            s.e(f"s_memtime s[{r}:{r+1}] ; {name}"); s.nstamp += 1; s.names.append(name)
        elif s.cfg.prof and name in s.cfg.stamps:
            r = 76 + 2 * s.nstamp; assert r + 1 < 100
            s.e(f"s_memtime s[{r}:{r+1}] ; {name}"); s.nstamp += 1

SX, SW2, SDBG, SWS, SW1, SOUT = "s[16:19]", "s[20:23]", "s[24:27]", "s[32:35]", "s[36:39]", "s[40:43]"
WSB = "s[32:33]"; sNON = "s[70:71]"
sW, sB1, sJ1, sB2, sJ2, sFW = "s44", "s28", "s29", "s30", "s31", "s45"
sXB, sFH, sKS, sT0, sT1, sT2, sM0 = "s46", "s47", "s48", "s49", "s50", "s51", "s52"
sHST, sTP, sCNT, sP0A, sPWA, sTD, sOUT = "s53", "s54", "s55", "s56", "s57", "s58", "s59"
sDA, sPH, sT3 = "s0", "s1", "s3"
KW = 60
vL = "v1"; vX = ["v2", "v3"]; vW = ["v4", "v5"]; vP0 = "v6"; vL16 = "v7"
vRX = [[8, 9, 10, 11], [12, 13, 14, 15]]; vRW = [16, 17]
vHST, vOUT, vTW, vTR, vT0, vT1, vT2 = "v18", "v19", "v20", "v21", "v22", "v23", "v24"
vRDW = ["v25", "v26", "v27"]; vRDR, vP0R, vW2A, vW2B = "v28", "v29", "v30", "v31"
vH = ["v32", "v33", "v34", "v35"]; NON = 36; vOUT2 = ["v38", "v39", "v40"]; vDUM = "v41"
ACC1 = 48; XR = 80; WF = 224; HB = 80; NHB = 24; ACC2 = 176
def vr(a, n): return f"v[{a}:{a+n-1}]"
def xreg(n): return vr(XR + 4 * n, 4) if n < 36 else f"a[{240+4*(n-36)}:{240+4*(n-36)+3}]"

def gen(cfg):
    g = G(cfg); e = g.e
    R = 8; LA = cfg.LA; NST = 20; SLOT = 16384
    LDS_P0 = R * SLOT
    lds_bytes = LDS_P0 + 8192
    LDS_T = 65536
    def mod3(dst, src, tmp):
        e(f"s_mul_i32 {tmp}, {src}, 86"); e(f"s_lshr_b32 {tmp}, {tmp}, 8"); e(f"s_mul_i32 {tmp}, {tmp}, 3"); e(f"s_sub_u32 {dst}, {src}, {tmp}")
    e("s_cmp_ge_u32 s2, 256"); e("s_cbranch_scc1 Lend")
    e("s_load_dwordx4 s[4:7], s[0:1], 0"); e("s_load_dwordx4 s[8:11], s[0:1], 16"); e("s_load_dwordx4 s[12:15], s[0:1], 32")
    e("s_memrealtime s[100:101]")
    g.stamp("start")
    if cfg.prof: e("s_memrealtime s[72:73]")
    e(f"v_lshrrev_b32 {vT0}, 6, v0"); e(f"v_and_b32 {vL}, 63, v0"); e(f"s_and_b32 {sT0}, s2, 7"); e(f"v_readfirstlane_b32 {sW}, {vT0}")
    e(f"s_lshr_b32 {sT1}, s2, 3")
    def part(kind, sb, sj):
        if kind == "A":
            e(f"s_lshl_b32 {sb}, {sT0}, 2"); e(f"s_lshr_b32 {sT2}, {sT1}, 3"); e(f"s_add_u32 {sb}, {sb}, {sT2}"); e(f"s_and_b32 {sj}, {sT1}, 7")
        else:
            e(f"s_lshr_b32 {sb}, {sT0}, 1"); e(f"s_lshl_b32 {sb}, {sb}, 3"); e(f"s_lshr_b32 {sT2}, {sT1}, 2"); e(f"s_add_u32 {sb}, {sb}, {sT2}")
            e(f"s_and_b32 {sj}, {sT0}, 1"); e(f"s_lshl_b32 {sj}, {sj}, 2"); e(f"s_and_b32 {sT2}, {sT1}, 3"); e(f"s_add_u32 {sj}, {sj}, {sT2}")
    part(cfg.p1, sB1, sJ1)
    def t0_of(dst, band):
        if cfg.trot: e(f"s_lshr_b32 {dst}, {band}, {cfg.tsh}"); mod3(dst, dst, sT2)
        else: e(f"s_mov_b32 {dst}, 0")
    t0_of(sTD, sB1)
    if cfg.r1 > 1:
        e(f"s_add_u32 {sKS}, {sB1}, {sJ1}"); e(f"s_and_b32 {sKS}, {sKS}, {cfg.r1-1}"); e(f"s_mul_i32 {sKS}, {sKS}, 10"); e(f"s_lshr_b32 {sKS}, {sKS}, {cfg.r1.bit_length()-1}")
    else: e(f"s_mov_b32 {sKS}, 0")
    e(f"s_mul_i32 {sXB}, {sB1}, {64*1280}"); e(f"s_mul_i32 {sT3}, {sJ1}, 384"); e(f"s_mov_b32 {sTP}, {sTD}")
    e(f"s_lshl_b32 {sT2}, {sTD}, 7"); e(f"s_add_u32 {sT3}, {sT3}, {sT2}")
    e(f"s_lshl_b32 {sM0}, {sW}, 11")
    e(f"v_lshrrev_b32 {vT0}, 3, {vL}"); e(f"s_lshl_b32 {sT2}, {sW}, 4"); e(f"v_add_u32 {vT0}, {sT2}, {vT0}")
    e(f"v_mul_u32_u24 {vP0}, 1280, {vT0}"); e(f"v_mul_u32_u24 {vW[1]}, 3072, {vT0}")
    e(f"v_and_b32 {vT1}, 7, {vL}"); e(f"v_lshrrev_b32 {vT2}, 4, {vL}"); e(f"v_xor_b32 {vT0}, {vT1}, {vT2}")
    e(f"v_lshl_add_u32 {vX[0]}, {vT0}, 4, {vP0}")
    e(f"v_xor_b32 {vT0}, 4, {vT0}"); e(f"v_lshl_add_u32 {vX[1]}, {vT0}, 4, {vP0}"); e(f"v_add_u32 {vX[1]}, {8*1280-1024}, {vX[1]}")
    e(f"v_lshl_add_u32 {vP0}, {vT1}, 4, {vP0}")
    e(f"v_and_b32 {vT2}, 1, {vT2}"); e(f"v_lshlrev_b32 {vT2}, 2, {vT2}"); e(f"v_xor_b32 {vT1}, {vT1}, {vT2}")
    e(f"v_add_u32 {vW[1]}, {sT3}, {vW[1]}")
    e(f"v_lshl_add_u32 {vW[0]}, {vT1}, 4, {vW[1]}"); e(f"v_add_u32 {vW[1]}, {8*3072-1024}, {vW[0]}")
    for srd, n in ((16, 2621440), (36, 1966080), (20, 1966080), (24, 256)):
        e(f"s_mov_b32 s{srd+2}, {n}"); e(f"s_mov_b32 s{srd+3}, 0x00020000")
    e(f"s_lshl_b32 {sFH}, {sB1}, 3"); e(f"s_add_u32 {sFH}, {sFH}, {sJ1}")
    e(f"s_sub_u32 {sHST}, {sFH}, 16"); e(f"s_cmp_lt_u32 {sFH}, 240"); e(f"s_cselect_b32 {sHST}, {sFH}, {sHST}")
    e(f"s_mul_i32 {sPWA}, {sHST}, 2731"); e(f"s_lshr_b32 {sPWA}, {sPWA}, 16")
    e(f"s_mul_i32 {sT2}, {sPWA}, 24"); e(f"s_sub_u32 {sHST}, {sHST}, {sT2}")
    e(f"s_mul_i32 {sT2}, {sHST}, {64*1280}"); e(f"s_lshl_b32 {sP0A}, {sPWA}, 7"); e(f"s_add_u32 {sP0A}, {sP0A}, {sT2}")
    def p0_loads():
        e(f"s_add_u32 m0, {sM0}, {LDS_P0}"); e(f"s_add_u32 {sT2}, {sP0A}, {8*1280-1024}")
        if cfg.xp0ld: return
        g.vmem(f"buffer_load_dwordx4 {vP0}, {SW2}, {sP0A} offen lds", "p0")
        g.vmem(f"buffer_load_dwordx4 {vP0}, {SW2}, {sT2} offen offset:1024 lds", "p0")
    e("s_waitcnt lgkmcnt(0)")
    for srd, p in ((16, 4), (36, 6), (20, 8)): e(f"s_mov_b64 s[{srd}:{srd+1}], s[{p}:{p+1}]")
    e("s_mov_b64 s[24:25], s[12:13]")
    e(f"s_or_b32 {sT2}, s2, {sW}"); e("s_cbranch_scc1 Lnn")
    e("s_bitset1_b32 s101, 31"); e(f"v_mov_b32 v{NON}, s100"); e(f"v_mov_b32 v{NON+1}, s101")
    e("s_mov_b64 exec, 1"); e(f"buffer_store_dwordx2 {vr(NON,2)}, off, {SDBG}, 0 sc1"); e("s_mov_b64 exec, -1")
    g.label("Lnn")
    g.stamp("srd")
    adv = [f"s_add_u32 {sKS}, {sKS}, 1", f"s_cmp_eq_u32 {sKS}, 10", f"s_cselect_b32 {sKS}, 0, {sKS}"]
    def wchunk(base, tag, c, pre):
        return [(pre + [f"s_add_u32 m0, {sM0}, {base}", "s_nop 0"], f"buffer_load_dwordx4 {vW[0]}, {SW1}, s{KW+c} offen lds", tag),
                ([], f"buffer_load_dwordx4 {vW[1]}, {SW1}, s{KW+c} offen offset:1024 lds", tag)]
    nextpass = [f"s_add_u32 {sTD}, {sTD}, 1", f"s_cmp_eq_u32 {sTD}, 3", f"s_cselect_b32 {sTD}, 0, {sTD}", f"s_cselect_b32 {sT3}, -2, 1", f"s_lshl_b32 {sT3}, {sT3}, 7",
                f"v_add_u32 {vW[0]}, {sT3}, {vW[0]}", f"v_add_u32 {vW[1]}, {sT3}, {vW[1]}"]
    def dma_groups(s):
        slot = (s % R) * SLOT; tag = f"st{s}"
        if s < 10:
            return [([f"s_lshl_b32 {sDA}, {sKS}, 7", f"s_add_u32 m0, {sM0}, {slot}", f"s_add_u32 {sDA}, {sDA}, {sXB}"], f"buffer_load_dwordx4 {vX[0]}, {SX}, {sDA} offen lds", tag),
                    ([f"s_mul_i32 s{KW+s}, {sKS}, {64*3072}"], f"buffer_load_dwordx4 {vX[1]}, {SX}, {sDA} offen offset:1024 lds", tag)] + wchunk(slot + 8192, tag, s, adv)
        c = 2 * ((s - 10) % 5)
        return wchunk(slot, tag, c, nextpass if c == 0 else []) + wchunk(slot + 8192, tag, c + 1, [])
    def issue(gr):
        for t in gr[0]: e(t)
        g.vmem(gr[1], gr[2])
    NPRO = min(cfg.npro, LA)
    if cfg.xcold:
        e("s_mov_b64 s[32:33], s[14:15]"); e(f"s_mov_b32 s34, {WS_USED}"); e("s_mov_b32 s35, 0x00020000")
        e(f"s_lshl_b32 {sT2}, s2, 2"); e(f"s_add_u32 {sT2}, {sT2}, {sW}"); e(f"s_lshl_b32 {sT2}, {sT2}, 16"); e(f"s_add_u32 {sT2}, {sT2}, 0x4000000")
        e(f"v_lshlrev_b32 {vL16}, 4, {vL}")
        for i in range(cfg.xcold):
            e(f"buffer_load_dwordx4 v[80:83], {vL16}, {SWS}, {sT2} offen"); e(f"s_add_u32 {sT2}, {sT2}, 1024")
        e("s_waitcnt vmcnt(0)")
    if cfg.xhit:
        pass
    if cfg.p0first: p0_loads()
    for s in range(NPRO): [issue(gr) for gr in dma_groups(s)]
    for srd, p, n in ((40, 10, 2621440), (32, 14, WS_USED)):
        e(f"s_mov_b64 s[{srd}:{srd+1}], s[{p}:{p+1}]"); e(f"s_mov_b32 s{srd+2}, {n}"); e(f"s_mov_b32 s{srd+3}, 0x00020000")
    if cfg.cpf:
        e("s_getpc_b64 s[100:101]"); e(f"s_lshl_b32 {sT2}, {sT1}, 2"); e(f"s_add_u32 {sT2}, {sT2}, {sW}"); e(f"s_lshl_b32 {sT2}, {sT2}, 7")
        e(f"s_min_u32 {sT2}, {sT2}, CODE_END_PF"); e(f"s_add_u32 s100, s100, {sT2}"); e("s_addc_u32 s101, s101, 0"); e("s_load_dword s101, s[100:101], 0")
        g.label("Lpc")
    part(cfg.p2, sB2, sJ2)
    if not cfg.p0first: p0_loads()
    e(f"s_mov_b32 {sT0}, {sHST}"); e(f"s_mov_b32 {sT1}, {sPWA}"); e(f"s_mov_b32 {sT3}, {sFH}")
    e(f"s_mul_i32 {sT2}, {sT0}, 43"); e(f"s_lshr_b32 {sT2}, {sT2}, 8")
    e(f"s_lshl_b32 {sFW}, {sT1}, 2"); e(f"s_add_u32 {sFW}, {sFW}, {sT2}"); e(f"s_lshl_b32 {sFW}, {sFW}, 5")
    e(f"s_mul_i32 {sT2}, {sT2}, 6"); e(f"s_sub_u32 {sT2}, {sT0}, {sT2}"); e(f"s_add_u32 {sFW}, {sFW}, {sT2}"); e(f"s_lshl_b32 {sFW}, {sFW}, 2")
    e(f"s_sub_u32 {sT2}, {sT3}, 200"); e(f"s_lshl_b32 {sT2}, {sT2}, 7"); e(f"s_cmp_lt_u32 {sT3}, 240"); e(f"s_cselect_b32 {sFW}, {sFW}, {sT2}")
    e(f"s_add_u32 {sFW}, {sFW}, {FW_OFF}")
    e(f"s_lshl_b32 {sT1}, {sT1}, 2"); e(f"s_add_u32 {sT1}, {sT1}, {sW}")
    e(f"s_mul_i32 {sT2}, {sT1}, 52"); e(f"s_lshr_b32 {sT2}, {sT2}, 8")
    e(f"s_mul_i32 {sP0A}, {sT2}, 235"); e(f"s_add_u32 {sP0A}, {sP0A}, {sT1}")
    e(f"s_mul_i32 {sT2}, {sT0}, 10"); e(f"s_add_u32 {sP0A}, {sP0A}, {sT2}")
    e(f"s_lshl_b32 {sP0A}, {sP0A}, 10"); e(f"s_add_u32 {sP0A}, {sP0A}, {W2P_OFF}")
    e(f"s_lshr_b32 {sFH}, {sT3}, 1"); e(f"s_lshl_b32 {sFH}, {sFH}, 7"); e(f"s_and_b32 {sT2}, {sJ1}, 1"); e(f"s_lshl_b32 {sT2}, {sT2}, 3")
    e(f"s_add_u32 {sFH}, {sFH}, {sT2}"); e(f"s_add_u32 {sFH}, {sFH}, {FH_OFF}")
    e(f"v_lshlrev_b32 {vL16}, 4, {vL}")
    e(f"s_lshl_b32 {sOUT}, {sB2}, 2"); e(f"s_add_u32 {sOUT}, {sOUT}, {sW}"); e(f"s_mul_i32 {sOUT}, {sOUT}, {16*1280}")
    e(f"s_mul_i32 {sT2}, {sJ2}, 160"); e(f"s_add_u32 {sOUT}, {sOUT}, {sT2}")
    if cfg.warm:
        e("s_mov_b64 exec, 1")
        g.vmem(f"buffer_load_dword {vDUM}, off, {SOUT}, {sOUT}", "warm")
        e(f"s_lshl_b32 {sT2}, {sB1}, 18"); e(f"s_add_u32 {sT2}, {sT2}, {200<<10}")
        g.vmem(f"buffer_load_dword {vDUM}, off, {SWS}, {sT2}", "warm")
        e(f"s_mov_b32 {sT2}, {FH_OFF + 32768}")
        g.vmem(f"buffer_load_dword {vDUM}, off, {SWS}, {sT2}", "warm")
        if cfg.p1 != cfg.p2:
            e(f"s_lshl_b32 {sT2}, {sB2}, 18"); e(f"s_add_u32 {sT2}, {sT2}, {200<<10}")
            g.vmem(f"buffer_load_dword {vDUM}, off, {SWS}, {sT2}", "warm")
        e("s_mov_b64 exec, -1")
    e(f"s_and_b32 {sT0}, {sW}, 1"); e(f"s_lshr_b32 {sT1}, {sW}, 1")
    e(f"v_and_b32 {vT0}, 31, {vL}"); e(f"s_lshl_b32 {sT2}, {sT0}, 5"); e(f"v_add_u32 {vT0}, {sT2}, {vT0}"); e(f"v_lshlrev_b32 {vT0}, 7, {vT0}")
    e(f"v_bfe_u32 {vT1}, {vL}, 1, 3"); e(f"v_lshrrev_b32 {vT2}, 5, {vL}"); e(f"v_xor_b32 {vT1}, {vT1}, {vT2}")
    e(f"v_lshl_add_u32 v{vRX[0][0]}, {vT1}, 4, {vT0}")
    for q in range(1, 4): e(f"v_xor_b32 v{vRX[0][q]}, {32*q}, v{vRX[0][0]}")
    for q in range(4): e(f"v_add_u32 v{vRX[1][q]}, 0x10000, v{vRX[0][q]}")
    e(f"v_lshrrev_b32 {vT0}, 5, {vL}"); e(f"v_lshlrev_b32 {vT0}, 3, {vT0}"); e(f"v_bfe_u32 {vT1}, {vL}, 2, 2"); e(f"v_add_u32 {vT0}, {vT0}, {vT1}")
    e(f"v_lshlrev_b32 {vT0}, 7, {vT0}")
    e(f"v_bfe_u32 {vT1}, {vL}, 4, 1"); e(f"v_lshl_add_u32 {vT0}, {vT1}, 5, {vT0}")
    e(f"v_and_b32 {vT1}, 1, {vL}"); e(f"v_lshl_add_u32 {vT0}, {vT1}, 4, {vT0}")
    e(f"v_bfe_u32 {vT1}, {vL}, 1, 1"); e(f"v_lshl_add_u32 {vT0}, {vT1}, 3, {vT0}")
    e(f"v_bfe_u32 {vT1}, {vL}, 3, 1"); e(f"v_xor_b32 {vT1}, {sT1}, {vT1}"); e(f"v_lshl_add_u32 v{vRW[0]}, {vT1}, 6, {vT0}")
    e(f"v_add_u32 v{vRW[1]}, 0x10000, v{vRW[0]}")
    e(f"v_bfe_u32 {vT0}, {vL}, 4, 1"); e(f"v_mul_u32_u24 {vT0}, 49152, {vT0}"); e(f"v_and_b32 {vT1}, 15, {vL}"); e(f"v_lshl_add_u32 {vT0}, {vT1}, 4, {vT0}")
    e(f"v_lshrrev_b32 {vT1}, 5, {vL}"); e(f"v_lshl_add_u32 {vHST}, {vT1}, 8, {vT0}")
    e(f"s_lshl_b32 {sHST}, {sB1}, 8"); e(f"s_mul_i32 {sT2}, {sT0}, 96"); e(f"s_add_u32 {sHST}, {sHST}, {sT2}")
    e(f"s_mul_i32 {sT2}, {sJ1}, 6"); e(f"s_add_u32 {sHST}, {sHST}, {sT2}"); e(f"s_add_u32 {sHST}, {sHST}, {sT1}")
    e(f"s_lshl_b32 {sHST}, {sHST}, 10")
    e(f"v_lshrrev_b32 {vT0}, 4, {vL}"); e(f"v_lshlrev_b32 {vT0}, 3, {vT0}"); e(f"v_bfe_u32 {vT1}, {vL}, 2, 2"); e(f"v_add_u32 {vT0}, {vT0}, {vT1}")
    e(f"v_lshlrev_b32 {vT0}, 7, {vT0}"); e(f"v_and_b32 {vT1}, 3, {vL}"); e(f"v_lshl_add_u32 {vT0}, {vT1}, 3, {vT0}")
    e(f"s_lshl_b32 {sT2}, {sW}, 5"); e(f"s_add_u32 {sT2}, {sT2}, {LDS_P0}"); e(f"v_add_u32 {vP0R}, {sT2}, {vT0}")
    for s in range(NPRO, min(LA, cfg.npro2)): [issue(gr) for gr in dma_groups(s)]
    e(f"s_mul_i32 {sPWA}, {sJ2}, 5"); e(f"s_lshr_b32 {sPWA}, {sPWA}, 2"); e(f"s_lshl_b32 {sPWA}, {sPWA}, 2"); e(f"s_add_u32 {sPWA}, {sPWA}, {sW}")
    e(f"s_lshl_b32 {sPWA}, {sPWA}, 7"); e(f"s_add_u32 {sPWA}, {sPWA}, {FW_OFF}")
    e(f"s_lshl_b32 {sPH}, {sB2}, 2"); e(f"s_add_u32 {sPH}, {sPH}, {sW}"); e(f"s_lshl_b32 {sPH}, {sPH}, 7"); e(f"s_add_u32 {sPH}, {sPH}, {FH_OFF}")
    for i in range(4):
        e(f"s_add_u32 {sT0}, {sW}, {1+i}"); e(f"s_and_b32 {sT0}, {sT0}, 3")
        if i < 3:
            e(f"s_mul_i32 {sT2}, {sT0}, {3*5120}"); e(f"s_add_u32 {sT2}, {sT2}, {i*5120}"); e(f"v_add_u32 {vRDW[i]}, {sT2}, {vL16}")
        e(f"s_lshl_b32 {sT1}, {sB2}, 8"); e(f"s_mul_i32 {sT2}, {sT0}, 48"); e(f"s_add_u32 {sT1}, {sT1}, {sT2}")
        e(f"s_mul_i32 {sT2}, {sW}, 12"); e(f"s_add_u32 {sT1}, {sT1}, {sT2}"); e(f"s_lshl_b32 {sT1}, {sT1}, 10")
        e(f"v_add_u32 {vH[i]}, {sT1}, {vL16}")
    e(f"s_mul_i32 {sT2}, {sW}, {3*5120}"); e(f"v_add_u32 {vRDR}, {sT2}, {vL16}")
    e(f"s_mul_i32 {sT2}, {sW}, 2816"); e(f"s_add_u32 {sT2}, {sT2}, {LDS_T}")
    e(f"v_and_b32 {vT0}, 15, {vL}"); e(f"v_mul_u32_u24 {vT0}, 176, {vT0}"); e(f"v_lshrrev_b32 {vT1}, 4, {vL}"); e(f"v_lshl_add_u32 {vT0}, {vT1}, 3, {vT0}")
    e(f"v_add_u32 {vTW}, {sT2}, {vT0}")
    vTRs = [vTR, vOUT, vDUM]
    for i in range(3):
        e(f"v_add_u32 {vT0}, {64*i}, {vL}"); e(f"v_mul_u32_u24 {vT1}, 205, {vT0}"); e(f"v_lshrrev_b32 {vT1}, 11, {vT1}")
        e(f"v_mul_u32_u24 {vT2}, 10, {vT1}"); e(f"v_sub_u32 {vT0}, {vT0}, {vT2}"); e(f"v_lshlrev_b32 {vT0}, 4, {vT0}")
        e(f"v_mul_u32_u24 {vT2}, 1280, {vT1}"); e(f"v_add_u32 {vOUT2[i]}, {vT2}, {vT0}")
        e(f"v_mul_u32_u24 {vT2}, 176, {vT1}"); e(f"v_add3_u32 v{42+i}, {vT2}, {vT0}, {sT2}")
    e(f"s_lshl_b32 {sT0}, {sJ2}, 2"); e(f"s_add_u32 {sT0}, {sT0}, {sW}"); e(f"s_mul_i32 {sT0}, {sT0}, {60*1024}"); e(f"s_add_u32 {sT0}, {sT0}, {W2P_OFF}")
    e(f"v_add_u32 {vW2A}, {sT0}, {vL16}"); e(f"v_add_u32 {vW2B}, 4096, {vW2A}")
    t0_of(sT0, sB2)
    if cfg.rk == 0: e(f"s_mov_b32 {sT1}, 0")
    elif cfg.rk == 1: e(f"s_and_b32 {sT1}, {sB2}, 1"); e(f"s_lshl_b32 {sT1}, {sT1}, 1")
    elif cfg.rk == 2: e(f"s_and_b32 {sT1}, {sB2}, 1"); e(f"s_lshl_b32 {sT1}, {sT1}, 1"); e(f"s_add_u32 {sT1}, {sT1}, {sJ2}")
    elif cfg.rk == 3: e(f"s_add_u32 {sT1}, {sB2}, {sJ2}"); e(f"s_lshl_b32 {sT1}, {sT1}, 1")
    for kk in range(4):
        e(f"s_add_u32 {sT2}, {sT1}, {kk}"); e(f"s_and_b32 {sCNT}, {sT2}, 1"); e(f"s_bfe_u32 {sT2}, {sT2}, 0x10001"); e(f"s_mul_i32 {sT2}, {sT2}, 6")
        e(f"s_add_u32 {sT2}, {sT2}, {sCNT}"); e(f"s_lshl_b32 s{4+kk}, {sT2}, 10")
    for p in (2, 1, 0):
        e(f"s_add_u32 {sT2}, {sT0}, {p}"); e(f"s_sub_u32 {sCNT}, {sT2}, 3"); e(f"s_cmp_ge_u32 {sT2}, 3"); e(f"s_cselect_b32 {sT2}, {sCNT}, {sT2}"); e(f"s_lshl_b32 {sT2}, {sT2}, 11")
        for kk in range(4): e(f"s_add_u32 s{4+4*p+kk}, s{4+kk}, {sT2}")
    pend = []
    for s in range(max(NPRO, min(LA, cfg.npro2)), LA): pend.extend(dma_groups(s))

    def flag_store(name, sreg, off, wide):
        e(f"s_cmp_lg_u32 {sW}, 0"); e(f"s_cbranch_scc1 L{name}")
        e("s_mov_b64 exec, 1")
        if wide: e(f"buffer_store_dwordx2 {vr(NON,2)}, off, {SWS}, {sreg} offset:{off} sc1")
        else: e(f"buffer_store_dword v{NON}, off, {SWS}, {sreg} sc1")
        e("s_mov_b64 exec, -1")
        g.label(f"L{name}")
    ld_non = f"buffer_load_dwordx2 {vr(NON,2)}, off, {SDBG}, 0 sc1"; cmp_non = f"v_cmp_eq_u32 vcc, 0, v{NON+1}"
    def spin_non():
        e(cmp_non); e(f"s_mov_b32 {sCNT}, 0"); e("s_nop 0"); e(f"s_cbranch_vccz Lnon_ok")
        g.label("Lnon")
        e(f"s_sleep {cfg.sleep}"); e(ld_non); e("s_waitcnt vmcnt(0)"); e(cmp_non)
        e(f"s_add_u32 {sCNT}, {sCNT}, 1"); e(f"s_cmp_gt_u32 {sCNT}, 200000"); e(f"s_cbranch_scc1 Lnon_ok")
        e(f"s_cbranch_vccnz Lnon")
        g.label("Lnon_ok")
        e(f"v_readfirstlane_b32 s70, v{NON}"); e(f"v_readfirstlane_b32 s71, v{NON+1}")
    ld_pw = f"s_load_dwordx8 s[16:23], {WSB}, {sPWA} glc\n    s_load_dwordx8 s[24:31], {WSB}, {sPWA} offset:512 glc"
    def s_check(name, reload, test):
        g.wait_lg0(); e(f"s_mov_b32 {sCNT}, 0")
        g.label(f"L{name}")
        test(); e(f"s_cbranch_scc1 L{name}_ok")
        e(f"s_sleep {cfg.sleep}"); e(reload); e("s_waitcnt lgkmcnt(0)")
        e(f"s_add_u32 {sCNT}, {sCNT}, 1"); e(f"s_cmp_lt_u32 {sCNT}, 400000"); e(f"s_cbranch_scc1 L{name}")
        g.label(f"L{name}_ok")
    def test_pw():
        e("s_xor_b64 s[16:17], s[16:17], s[18:19]"); e("s_xor_b64 s[18:19], s[18:19], s[20:21]"); e("s_xor_b64 s[22:23], s[20:21], s[24:25]")
        e("s_xor_b64 s[24:25], s[24:25], s[26:27]"); e("s_xor_b64 s[26:27], s[26:27], s[28:29]"); e("s_xor_b32 s30, s28, s29"); e("s_xor_b32 s31, s28, s70")
        e("s_or_b64 s[16:17], s[16:17], s[18:19]"); e("s_or_b64 s[22:23], s[22:23], s[24:25]"); e("s_or_b64 s[26:27], s[26:27], s[30:31]")
        e("s_or_b64 s[16:17], s[16:17], s[22:23]"); e("s_or_b64 s[16:17], s[16:17], s[26:27]"); e("s_cmp_eq_u64 s[16:17], 0")
    def test_ph():
        e(f"s_xor_b64 s[16:17], s[16:17], {sNON}"); e(f"s_xor_b64 s[18:19], s[18:19], {sNON}"); e("s_or_b64 s[16:17], s[16:17], s[18:19]"); e("s_cmp_eq_u64 s[16:17], 0")
    ld_ph = f"s_load_dwordx4 s[16:19], {WSB}, {sPH} glc"

    def wblk(s):
        out = []
        for t in range(5):
            a = 4 * (5 * s + t)
            pre = [f"s_mul_i32 {sXB}, s{4+s}, 5"] if t == 0 else []
            if t < 4: out.append(("W", pre, f"buffer_load_dwordx4 a[{a}:{a+3}], {vW2A}, {SWS}, {sXB} offen offset:{1024*t} sc1", f"w{s}"))
            else: out.append(("W", pre, f"buffer_load_dwordx4 a[{a}:{a+3}], {vW2B}, {SWS}, {sXB} offen sc1", f"w{s}"))
        return out
    stream = []; groups = []
    for s in range(cfg.lead): stream += wblk(s)
    for s in range(8):
        for i in range(4): stream.append(("H", s, i)); groups.append((s, i))
        if s + cfg.lead < 12: stream += wblk(s + cfg.lead)
    for i in range(4):
        for s in range(8, 12): stream.append(("H", s, i)); groups.append((s, i))
    for p in (2, 1, 0):
        idx = stream.index(("H", 4 * p, 0))
        stream.insert(idx, ("C", p))
        stream.insert(max(0, idx - (cfg.pd if p else cfg.pd0)), ("P", p))
    hbuf = {}; hcount = [0]
    def stream_issue(allow_h=True):
        it = stream[0]
        if it[0] == "W":
            stream.pop(0)
            for t in it[1]: e(t)
            g.vmem(it[2], it[3]); return True
        if it[0] == "P" and not allow_h and cfg.holdp:
            if len(stream) > 1 and stream[1][0] == "W":
                stream[0], stream[1] = stream[1], stream[0]
                return stream_issue(allow_h)
            return False
        if it[0] == "P":
            stream.pop(0)
            if it[1]: e(f"s_add_u32 {sPH}, {sPH}, 16")
            e(ld_ph); g.lgmax = 13
            return stream_issue(allow_h)
        if not allow_h: return False
        if it[0] == "C":
            stream.pop(0); g.stamp(f"c{it[1]}a"); s_check(f"ph{it[1]}", ld_ph, test_ph); g.stamp(f"c{it[1]}b"); return stream_issue()
        _, s, i = stream.pop(0)
        while hcount[0] % NHB in hbuf.values(): hcount[0] += 1
        b = hcount[0] % NHB; hcount[0] += 1
        hbuf[(s, i)] = b
        g.vmem(f"buffer_load_dwordx4 {vr(HB+4*b,4)}, {vH[i]}, {SWS}, s{4+s} offen sc1", f"h{s}_{i}")
        return True

    NSTEP = 120
    def stage_of(n): return n // 4 if n < 40 else 10 + (n - 40) // 8
    def first_step(s): return 4 * s if s < 10 else 40 + 8 * (s - 10)
    def last_step(s): return first_step(s + 1) - 1
    def DD(n): return cfg.d0 if n < 40 else cfg.d1
    def reads(n):
        s = stage_of(n); slot = s % R; hi = slot >> 2; base = (slot & 3) * SLOT
        q = n % 4; out = []
        if n < 40:
            out.append(f"ds_read_b128 {xreg(n)}, v{vRX[hi][q]} offset:{base}"); wb = base + 8192
        else: wb = base + 8192 * (((n - 40) % 8) // 4)
        for half in range(2):
            out.append(f"ds_read_b64_tr_b16 {vr(WF+4*(n%8)+2*half,2)}, v{vRW[hi]} offset:{wb+(16*q+4*half)*128}")
        return out
    w2_ok = [False]; early = [cfg.n0]; done_step = [-1]; flagged = set(); issued_tags = set()
    def barrier(s):
        tags = [f"st{s}"]
        if s == cfg.p0s: tags.append("p0")
        if s == cfg.flagw: tags += ["p0st"]
        for p in (0, 1):
            if s == cfg.fh[p]: tags.append(f"hst{p}")
        while pend and int(pend[0][2][2:]) <= s: issue(pend.pop(0))
        g.wait_vm(*tags)
        e("s_barrier")
        g.stamp(f"b{s}")
        if s == cfg.p0s:
            for kk in range(2):
                for half in range(2): g.lds(f"ds_read_b64_tr_b16 {vr(ACC1+16+4*kk+2*half,2)}, {vP0R} offset:{half*512+kk*4096}", "p0r")
            e(f"s_add_u32 {sT0}, {sP0A}, 5120")
            g.wait_lg("p0r")
            if not cfg.xp0st:
                g.vmem(f"buffer_store_dwordx4 {vr(ACC1+16,4)}, {vL16}, {SWS}, {sP0A} offen sc1", "p0st")
                g.vmem(f"buffer_store_dwordx4 {vr(ACC1+20,4)}, {vL16}, {SWS}, {sT0} offen sc1", "p0st")
        if s == cfg.nons: e(f"s_load_dwordx2 {sNON}, s[24:25], 0"); g.lgmax = 13
        if s == cfg.nons + 2:
            s_check("non", f"s_load_dwordx2 {sNON}, s[24:25], 0 glc", lambda: e("s_cmp_lg_u32 s71, 0")); g.lgmax = 15
            e(f"v_mov_b32 v{NON}, s70"); e(f"v_mov_b32 v{NON+1}, s71")
        if s == cfg.flagw: assert cfg.nons + 2 <= s; flag_store("nf1", sFW, 0, False)
        if s == cfg.pollw: assert not any(int(x[2][2:]) < 10 for x in pend) and s + LA > 10 and s > cfg.flagw; e(ld_pw.replace(' glc', '') if cfg.pwc else ld_pw); g.lgmax = 11
        if s == cfg.pollw + cfg.pgap:
            g.stamp("pwa"); s_check("pw", ld_pw, test_pw); w2_ok[0] = True; g.lgmax = 15; g.stamp("pwb")
        for p in (0, 1):
            if s == cfg.fh[p]: assert f"hst{p}" in issued_tags; flag_store(f"nh{p}", sFH, 16 * p, True); flagged.add(p)
        ns = s + LA
        if ns < NST:
            old = ns - R
            assert old < 0 or last_step(old) <= done_step[0], (s, old, done_step[0])
            pend.extend(dma_groups(ns))
    def slot_issue():
        if pend: issue(pend.pop(0))
        elif w2_ok[0] and early[0] > 0 and stream_issue(allow_h=False): early[0] -= 1
    def epilogue_ops(p):
        a = ACC1 + 16 * (p & 1); ops = []
        for i in range(8): ops.append(("v", f"v_cvt_pk_bf16_f32 v{a+i}, v{a+2*i}, v{a+2*i+1}"))
        for i in range(8): ops.append(("v", f"v_pk_max_i16 v{a+i}, v{a+i}, 0"))
        ops.append(("v", f"s_lshl_b32 {sT1}, {sTP}, 11")); ops.append(("v", f"s_add_u32 {sT1}, {sT1}, {sHST}"))
        for c in range(2): ops.append(("m", f"buffer_store_dwordx4 {vr(a+4*c,4)}, {vHST}, {SWS}, {sT1} offen offset:{c*512} sc1", f"hst{p}"))
        ops += [("v", f"s_add_u32 {sTP}, {sTP}, 1"), ("v", f"s_cmp_eq_u32 {sTP}, 3\n    s_cselect_b32 {sTP}, 0, {sTP}")]
        return ops
    def run_ops(ops, k):
        for _ in range(k):
            if not ops: return
            o = ops.pop(0)
            if o[0] == "v": e(o[1])
            else: g.vmem(o[1], o[2]); issued_tags.add(o[2])
    nread = [0]
    def issue_reads_upto(m):
        while nread[0] <= min(m, NSTEP - 1):
            n = nread[0]
            assert n - 8 <= done_step[0]
            if n == first_step(stage_of(n)): barrier(stage_of(n))
            for t in reads(n): g.lds(t, f"r{n}")
            nread[0] += 1
    issue_reads_upto(cfg.d0 - 1)
    ep = []
    for n in range(NSTEP):
        p = n // 40
        if n < 40 or not cfg.w2: g.wait_lg(f"r{n}")
        elif n % 2 == 0: g.wait_lg(f"r{n}", f"r{n+1}")
        a = vr(ACC1 + 16 * (p & 1), 16)
        e(f"v_mfma_f32_32x32x16_bf16 {a}, {vr(WF+4*(n%8),4)}, {xreg(n%40)}, {'0' if n % 40 == 0 else a}")
        done_step[0] = n
        tgt = min(n + DD(n + 1), nread[0] + 1)
        while len(g.lg) + sum(len(reads(k)) for k in range(nread[0], min(tgt, NSTEP - 1) + 1)) > g.lgmax: tgt -= 1
        tgt = max(tgt, min(n + 2, NSTEP - 1))
        issue_reads_upto(tgt)
        if n < 40:
            slot_issue()
            if len(pend) > 4: slot_issue()
        elif n % 2 == 1 or len(pend) > 4: slot_issue()
        if n % 40 == 3 and p > 0: ep = epilogue_ops(p - 1)
        run_ops(ep, 2)
    g.stamp("p1end")
    assert not pend and w2_ok[0]
    if stream[0][0] == "P": stream_issue()
    for _ in range(2): stream_issue(allow_h=False)
    e("s_nop 7"); e("s_nop 3")
    ep = epilogue_ops(2); run_ops(ep, 100)
    pos = [0]; hpos = {}
    def emit_group(s, i, extra):
        acc = ACC2 + 20 * i; b = hbuf[(s, i)]
        g.wait_vm(f"h{s}_{i}", f"w{s}")
        for t in range(5):
            a = 4 * (5 * s + t)
            cc = "0" if s == 0 else vr(acc+4*t,4)
            e(f"v_mfma_f32_16x16x32_bf16 {vr(acc+4*t,4)}, a[{a}:{a+3}], {vr(HB+4*b,4)}, {cc}")
            for x in extra[t]: x()
    nafter = 0; first = True
    while stream or groups:
        if stream:
            stream_issue(); pos[0] += 1; nafter += 1
            if pos[0] % 6 == 0: g.stamp(f"q{pos[0]}")
            for k in hbuf:
                if k not in hpos: hpos[k] = pos[0]
            for p, nn in ((1, cfg.n1a), (2, cfg.n1)):
                if p not in flagged and nafter >= nn:
                    g.wait_vm(f"hst{p}"); g.stamp(f"hst{p}"); e("s_barrier"); flag_store(f"nh{p}", sFH, 16 * p, True); flagged.add(p)
        if groups and groups[0] in hpos and (not stream or hpos[groups[0]] <= pos[0] - cfg.depth):
            s, i = groups[0]
            extra = [[] for _ in range(5)]
            W = lambda t, ii: (lambda: g.lds(f"ds_write_b128 {vRDW[ii]}, {vr(ACC2+20*ii+4*t,4)} offset:{1024*t}", "rw"))
            Rd = lambda k, u: (lambda: g.lds(f"ds_read_b128 {vr(ACC2+20*k+4*u,4)}, {vRDR} offset:{5120*k+1024*u}", f"rr{k}"))
            A = lambda r, k: (lambda: e(f"v_add_f32 v{ACC2+r}, v{ACC2+r}, v{ACC2+20*k+r}"))
            if s == 9 and i in (1, 2):
                for t in range(5): extra[t].append(W(t, i - 1))
            if i == 2 and s == 11:
                extra[0].append(lambda: (g.wait_lg0(), e("s_barrier")))
                for q in range(10): extra[q // 2].append(Rd(q // 5, q % 5))
            if i == 3 and s == 8:
                for t in range(5): extra[min(4, t + 2)].append(W(t, 2))
            if i == 3 and s == 9:
                extra[0].append(lambda: g.wait_lg("rr1"))
                for r in range(20): extra[r // 5].append(A(r, 1))
                extra[4].append(lambda: (g.wait_lg0(), e("s_barrier")))
                for u in range(5): extra[4].append(Rd(2, u))
            if i == 3 and s == 11:
                extra[0].append(lambda: g.wait_lg0())
                for r in range(20): extra[r // 4].append(A(r, 2))
            emit_group(s, i, extra)
            groups.pop(0); del hbuf[(s, i)]
            if first: g.stamp("g0"); first = False
            if not stream and len(groups) % 3 == 0: g.stamp(f"G{len(groups)}")
    assert cfg.lead >= 4 and flagged == {0, 1, 2}
    g.stamp("mfend")
    acc = ACC2 + 60; PR = ACC2
    g.wait_lg0()
    for t in range(5):
        if True:
            if t == 0: e("s_nop 3")
            for r in (0, 2): e(f"v_pk_add_f32 {vr(PR+4*t+r,2)}, {vr(PR+4*t+r,2)}, {vr(acc+4*t+r,2)}")
        else:
            for r in range(4): e(f"v_add_f32 v{PR+40+4*t+r}, v{PR+40+4*t+r}, v{acc+4*t+r}"); e(f"v_add_f32 v{PR+4*t+r}, v{PR+4*t+r}, v{PR+40+4*t+r}")
        e(f"v_cvt_pk_bf16_f32 v{PR+20+2*t}, v{PR+4*t}, v{PR+4*t+1}"); e(f"v_cvt_pk_bf16_f32 v{PR+21+2*t}, v{PR+4*t+2}, v{PR+4*t+3}")
        e(f"ds_write_b64 {vTW}, {vr(PR+20+2*t,2)} offset:{32*t}")
    e("s_waitcnt lgkmcnt(0)")
    for i in range(3): e(f"ds_read_b128 {vr(PR+40+4*i,4)}, v{42+i}")
    for i in range(3):
        e(f"s_waitcnt lgkmcnt({2-i})")
        if i == 2: e("s_mov_b32 exec_hi, 0")
        e(f"buffer_store_dwordx4 {vr(PR+40+4*i,4)}, {vOUT2[i]}, {SOUT}, {sOUT} offen {cfg.outsc}")
    if cfg.prof:
        e("s_waitcnt vmcnt(0)"); g.stamp("end"); e("s_memrealtime s[74:75]"); e("s_waitcnt lgkmcnt(0)")
        e(f"s_lshl_b32 {sT0}, s2, 2"); e(f"s_add_u32 {sT0}, {sT0}, {sW}"); e(f"s_lshl_b32 {sT0}, {sT0}, 7"); e(f"s_add_u32 {sT0}, {sT0}, {PROF_OFF}")
        if cfg.prof == 2:
            for k in range(max(0, g.nstamp - 4), g.nstamp): e(f"v_writelane_b32 v47, s{76+2*(k%8)}, {k}")
            e("s_mov_b64 exec, -1"); e(f"s_lshl_b32 {sT1}, s2, 2"); e(f"s_add_u32 {sT1}, {sT1}, {sW}"); e(f"s_lshl_b32 {sT1}, {sT1}, 8"); e(f"s_add_u32 {sT1}, {sT1}, {PROF_OFF + 0x100000}")
            e(f"v_lshlrev_b32 v24, 2, {vL}"); e(f"buffer_store_dword v47, v24, {SWS}, {sT1} offen"); e("s_nop 1")
            g.L.append("; STAMPS " + " ".join(g.names)); g.nstamp = 0
        e("s_mov_b64 exec, 1")
        regs = ["s72", "s74"] + [f"s{76+2*i}" for i in range(g.nstamp)]
        for i, r in enumerate(regs):
            e(f"v_mov_b32 v24, {r}"); e(f"buffer_store_dword v24, off, {SWS}, {sT0} offset:{4*i}"); e("s_nop 1")
    if cfg.delay:
        e(f"s_mov_b32 {sCNT}, 0"); g.label("Ldel"); e("s_nop 15"); e("s_nop 15"); e("s_nop 15"); e("s_nop 15"); e(f"s_add_u32 {sCNT}, {sCNT}, 1"); e(f"s_cmp_lt_u32 {sCNT}, {cfg.delay}"); e("s_cbranch_scc1 Ldel")
    if cfg.xhit:
        e("s_mov_b64 exec, -1"); e(f"s_mov_b32 {sCNT}, 0"); g.label("Lxh")
        for i in range(12): e(f"buffer_load_dwordx4 v[80:83], {vW2A}, {SWS}, s{4+i} offen"); e(f"buffer_load_dwordx4 v[80:83], {vH[i%4]}, {SWS}, s{4+i} offen"); e(f"buffer_load_dwordx4 v[80:83], {vH[(i+1)%4]}, {SWS}, s{4+i} offen")
        e("s_waitcnt vmcnt(12)"); e(f"s_add_u32 {sCNT}, {sCNT}, 1"); e(f"s_cmp_lt_u32 {sCNT}, {cfg.xhit}"); e("s_cbranch_scc1 Lxh")
        e("s_waitcnt vmcnt(0)")
    g.label("Lend")
    body = "\n".join(g.L)
    pf = ".set CODE_END_PF, Lend - Lpc\n" if cfg.cpf else ""
    return f"""{HDR}; @launch grid=(256,1,1) block=(256,1,1) lds={lds_bytes}
.amdgcn_target "amdgcn-amd-amdhsa--gfx950"
.text
.globl {KN}
.p2align 8
.type {KN},@function
{KN}:
{body}
    s_endpgm
{pf}.section .rodata,"a"
.p2align 6
.amdhsa_kernel {KN}
  .amdhsa_next_free_vgpr 512
  .amdhsa_next_free_sgpr 102
  .amdhsa_accum_offset 256
  .amdhsa_group_segment_fixed_size 0
  .amdhsa_kernarg_size 48
  .amdhsa_user_sgpr_count 2
  .amdhsa_user_sgpr_kernarg_segment_ptr 1
  .amdhsa_system_sgpr_workgroup_id_x 1
.end_amdhsa_kernel
"""

def parser():
    ap = argparse.ArgumentParser()
    ap.add_argument("-o", default="k.s"); ap.add_argument("--prof", type=int, default=0)
    ap.add_argument("--p1", default="B"); ap.add_argument("--p2", default="B")
    for name, d in (("r1", 2), ("trot", 1), ("tsh", 1), ("rk", 1), ("LA", 4), ("npro", 2), ("npro2", 3), ("p0first", 0), ("p0s", 2), ("flagw", 6), ("pollw", 14), ("pgap", 2),
                    ("sleep", 2), ("n0", 20), ("n1a", 12), ("n1", 24), ("lead", 6), ("own0", 4), ("pd", 8), ("pd0", 12), ("depth", 12), ("d0", 3), ("d1", 6),
                    ("fh0", 16), ("fh1", 99), ("cpf", 0), ("warm", 1), ("w2", 1), ("both", 0), ("nons", 1), ("xcold", 0), ("xhit", 0), ("delay", 0), ("holdp", 1), ("pwc", 1), ("tail2", 1), ("nocomp", 0), ("xp0st", 0), ("xp0ld", 0)):
        ap.add_argument("--" + name, type=int, default=d)
    ap.add_argument("--outsc", default="")
    ap.add_argument("--stamps", default="start,b0,b5,b10,b15,p1end,c0b,g0,c1b,c2b,mfend,end")
    return ap
if __name__ == "__main__":
    cfg = parser().parse_args()
    cfg.fh = [cfg.fh0, cfg.fh1]; cfg.stamps = cfg.stamps.split(",")
    open(cfg.o, "w").write(gen(cfg))
```

```python
import sys, argparse

KN = "standalone__dense_activation_relu__prompt_kernel"
HDR = """; Kernarg layout for this problem (48 bytes, ptrs only, base s[0:1]):
"""
HBAND = 256 << 10
W2P_OFF = 8 << 20
FW_OFF = W2P_OFF + (1920 << 10)
FH_OFF = FW_OFF + 8192
PROF_OFF = 0x8000000
WS_USED = 0x10000000

class G:
    def __init__(s, cfg):
        s.L = []; s.vm = []; s.lg = []; s.cfg = cfg; s.nstamp = 0; s.lgmax = 15; s.names = []
    def e(s, t):
        if s.cfg.nocomp & 1 and t.startswith("v_mfma"): return
        if s.cfg.nocomp & 2 and (t.startswith("ds_read_b64_tr_b16 v[2") or t.startswith("ds_read_b128")): return
        if s.cfg.nocomp & 4 and t.startswith("v_mfma_f32_32x32x16"):
            import re
            m = re.match(r"v_mfma_f32_32x32x16_bf16 v\[(\d+):\d+\], (\S+), (\S+), ", t)
            d = int(m.group(1))
            s.flip = getattr(s, "flip", 0) ^ 1
            for h in range(2):
                dd = d + 8 * s.flip + 4 * h
                s.L.append(f"    v_mfma_f32_16x16x32_bf16 v[{dd}:{dd+3}], {m.group(2)}, {m.group(3)}, v[{dd}:{dd+3}]")
            return
        s.L.append("    " + t)
    def label(s, n): s.L.append(n + ":")
    def vmem(s, t, tag): s.e(t); s.vm.append(tag)
    def lds(s, t, tag): s.e(t); s.lg.append(tag); assert len(s.lg) <= 15, s.lg
    def wait_vm(s, *tags):
        idxs = [i for i, t in enumerate(s.vm) if t in tags]
        if not idxs: return
        idx = max(idxs); n = len(s.vm) - 1 - idx
        assert n <= 63, n
        s.e(f"s_waitcnt vmcnt({n})"); s.vm = s.vm[idx + 1:]
    def wait_lg(s, *tags):
        idxs = [i for i, t in enumerate(s.lg) if t in tags]
        if not idxs: return
        idx = max(idxs); n = len(s.lg) - 1 - idx
        s.e(f"s_waitcnt lgkmcnt({n})"); s.lg = s.lg[idx + 1:]
    def wait_lg0(s): s.e("s_waitcnt lgkmcnt(0)"); s.lg = []
    def stamp(s, name):
        if s.cfg.probe and name == "start": s.e("s_memrealtime s[76:77]")
        if s.cfg.probe == name: s.e("s_memrealtime s[78:79]")
        if s.cfg.prof == 2:
            k = s.nstamp; assert k < 64
            if k >= 4: s.e(f"v_writelane_b32 v47, s{76+2*((k-4)%8)}, {k-4}")
            r = 76 + 2 * (k % 8)
            if s.cfg.both:
                if name not in s.cfg.stamps: return
                s.e(f"s_memtime s[{r}:{r+1}] ; {name}"); s.nstamp += 1; s.names.append(name)
                k = s.nstamp
                if k >= 4: s.e(f"v_writelane_b32 v47, s{76+2*((k-4)%8)}, {k-4}")
                r = 76 + 2 * (k % 8)
                s.e(f"s_memrealtime s[{r}:{r+1}] ; {name}"); s.nstamp += 1; s.names.append(name + "_rt")
                return
            s.e(f"s_memtime s[{r}:{r+1}] ; {name}"); s.nstamp += 1; s.names.append(name)
        elif s.cfg.prof and name in s.cfg.stamps:
            r = 76 + 2 * s.nstamp; assert r + 1 < 100
            s.e(f"s_memtime s[{r}:{r+1}] ; {name}"); s.nstamp += 1

SX, SW2, SDBG, SWS, SW1, SOUT = "s[16:19]", "s[20:23]", "s[24:27]", "s[32:35]", "s[36:39]", "s[40:43]"
WSB = "s[32:33]"; sNON = "s[70:71]"
sW, sB1, sJ1, sB2, sJ2, sFW = "s44", "s28", "s29", "s30", "s31", "s45"
sXB, sFH, sKS, sT0, sT1, sT2, sM0 = "s46", "s47", "s48", "s49", "s50", "s51", "s52"
sHST, sTP, sCNT, sP0A, sPWA, sTD, sOUT = "s53", "s54", "s55", "s56", "s57", "s58", "s59"
sDA, sPH, sT3 = "s0", "s1", "s3"
KW = 60
vL = "v1"; vX = ["v2", "v3"]; vW = ["v4", "v5"]; vP0 = "v6"; vL16 = "v7"
vRX = [[8, 9, 10, 11], [12, 13, 14, 15]]; vRW = [16, 17]
vHST, vOUT, vTW, vTR, vT0, vT1, vT2 = "v18", "v19", "v20", "v21", "v22", "v23", "v24"
vRDW = ["v25", "v26", "v27"]; vRDR, vP0R, vW2A, vW2B = "v28", "v29", "v30", "v31"
vH = ["v32", "v33", "v34", "v35"]; NON = 36; vOUT2 = ["v38", "v39", "v40"]; vDUM = "v41"
ACC1 = 48; XR = 80; WF = 224; HB = 80; NHB = 24; ACC2 = 176
def vr(a, n): return f"v[{a}:{a+n-1}]"
def xreg(n): return vr(XR + 4 * n, 4) if n < 36 else f"a[{240+4*(n-36)}:{240+4*(n-36)+3}]"

def gen(cfg):
    g = G(cfg); e = g.e
    R = 8; LA = cfg.LA; NST = 20; SLOT = 16384
    LDS_P0 = R * SLOT
    lds_bytes = LDS_P0 + 8192
    LDS_T = 65536
    def mod3(dst, src, tmp):
        e(f"s_mul_i32 {tmp}, {src}, 86"); e(f"s_lshr_b32 {tmp}, {tmp}, 8"); e(f"s_mul_i32 {tmp}, {tmp}, 3"); e(f"s_sub_u32 {dst}, {src}, {tmp}")
    e("s_cmp_ge_u32 s2, 256"); e("s_cbranch_scc1 Lend")
    e("s_load_dwordx4 s[4:7], s[0:1], 0"); e("s_load_dwordx4 s[8:11], s[0:1], 16"); e("s_load_dwordx4 s[12:15], s[0:1], 32")
    e("s_memrealtime s[100:101]")
    g.stamp("start")
    if cfg.prof: e("s_memrealtime s[72:73]")
    e(f"v_lshrrev_b32 {vT0}, 6, v0"); e(f"v_and_b32 {vL}, 63, v0"); e(f"s_and_b32 {sT0}, s2, 7"); e(f"v_readfirstlane_b32 {sW}, {vT0}")
    e(f"s_lshr_b32 {sT1}, s2, 3")
    def part(kind, sb, sj):
        if kind == "A":
            e(f"s_lshl_b32 {sb}, {sT0}, 2"); e(f"s_lshr_b32 {sT2}, {sT1}, 3"); e(f"s_add_u32 {sb}, {sb}, {sT2}"); e(f"s_and_b32 {sj}, {sT1}, 7")
        else:
            e(f"s_lshr_b32 {sb}, {sT0}, 1"); e(f"s_lshl_b32 {sb}, {sb}, 3"); e(f"s_lshr_b32 {sT2}, {sT1}, 2"); e(f"s_add_u32 {sb}, {sb}, {sT2}")
            e(f"s_and_b32 {sj}, {sT0}, 1"); e(f"s_lshl_b32 {sj}, {sj}, 2"); e(f"s_and_b32 {sT2}, {sT1}, 3"); e(f"s_add_u32 {sj}, {sj}, {sT2}")
    part(cfg.p1, sB1, sJ1)
    def t0_of(dst, band):
        if cfg.trot: e(f"s_lshr_b32 {dst}, {band}, {cfg.tsh}"); mod3(dst, dst, sT2)
        else: e(f"s_mov_b32 {dst}, 0")
    t0_of(sTD, sB1)
    if cfg.r1 > 1:
        e(f"s_add_u32 {sKS}, {sB1}, {sJ1}"); e(f"s_and_b32 {sKS}, {sKS}, {cfg.r1-1}"); e(f"s_mul_i32 {sKS}, {sKS}, 10"); e(f"s_lshr_b32 {sKS}, {sKS}, {cfg.r1.bit_length()-1}")
    else: e(f"s_mov_b32 {sKS}, 0")
    e(f"s_mul_i32 {sXB}, {sB1}, {64*1280}"); e(f"s_mul_i32 {sT3}, {sJ1}, 384"); e(f"s_mov_b32 {sTP}, {sTD}")
    e(f"s_lshl_b32 {sT2}, {sTD}, 7"); e(f"s_add_u32 {sT3}, {sT3}, {sT2}")
    e(f"s_lshl_b32 {sM0}, {sW}, 11")
    e(f"v_lshrrev_b32 {vT0}, 3, {vL}"); e(f"s_lshl_b32 {sT2}, {sW}, 4"); e(f"v_add_u32 {vT0}, {sT2}, {vT0}")
    e(f"v_mul_u32_u24 {vP0}, 1280, {vT0}"); e(f"v_mul_u32_u24 {vW[1]}, 3072, {vT0}")
    e(f"v_and_b32 {vT1}, 7, {vL}"); e(f"v_lshrrev_b32 {vT2}, 4, {vL}"); e(f"v_xor_b32 {vT0}, {vT1}, {vT2}")
    e(f"v_lshl_add_u32 {vX[0]}, {vT0}, 4, {vP0}")
    e(f"v_xor_b32 {vT0}, 4, {vT0}"); e(f"v_lshl_add_u32 {vX[1]}, {vT0}, 4, {vP0}"); e(f"v_add_u32 {vX[1]}, {8*1280-1024}, {vX[1]}")
    e(f"v_lshl_add_u32 {vP0}, {vT1}, 4, {vP0}")
    e(f"v_and_b32 {vT2}, 1, {vT2}"); e(f"v_lshlrev_b32 {vT2}, 2, {vT2}"); e(f"v_xor_b32 {vT1}, {vT1}, {vT2}")
    e(f"v_add_u32 {vW[1]}, {sT3}, {vW[1]}")
    e(f"v_lshl_add_u32 {vW[0]}, {vT1}, 4, {vW[1]}"); e(f"v_add_u32 {vW[1]}, {8*3072-1024}, {vW[0]}")
    for srd, n in ((16, 2621440), (36, 1966080), (20, 1966080), (24, 256)):
        e(f"s_mov_b32 s{srd+2}, {n}"); e(f"s_mov_b32 s{srd+3}, 0x00020000")
    e(f"s_lshl_b32 {sFH}, {sB1}, 3"); e(f"s_add_u32 {sFH}, {sFH}, {sJ1}")
    e(f"s_sub_u32 {sHST}, {sFH}, 16"); e(f"s_cmp_lt_u32 {sFH}, 240"); e(f"s_cselect_b32 {sHST}, {sFH}, {sHST}")
    e(f"s_mul_i32 {sPWA}, {sHST}, 2731"); e(f"s_lshr_b32 {sPWA}, {sPWA}, 16")
    e(f"s_mul_i32 {sT2}, {sPWA}, 24"); e(f"s_sub_u32 {sHST}, {sHST}, {sT2}")
    e(f"s_mul_i32 {sT2}, {sHST}, {64*1280}"); e(f"s_lshl_b32 {sP0A}, {sPWA}, 7"); e(f"s_add_u32 {sP0A}, {sP0A}, {sT2}")
    def p0_loads():
        e(f"s_add_u32 m0, {sM0}, {LDS_P0}"); e(f"s_add_u32 {sT2}, {sP0A}, {8*1280-1024}")
        if cfg.xp0ld: return
        g.vmem(f"buffer_load_dwordx4 {vP0}, {SW2}, {sP0A} offen lds", "p0")
        g.vmem(f"buffer_load_dwordx4 {vP0}, {SW2}, {sT2} offen offset:1024 lds", "p0")
    e("s_waitcnt lgkmcnt(0)")
    for srd, p in ((16, 4), (36, 6), (20, 8)): e(f"s_mov_b64 s[{srd}:{srd+1}], s[{p}:{p+1}]")
    e("s_mov_b64 s[24:25], s[12:13]")
    e(f"s_or_b32 {sT2}, s2, {sW}"); e("s_cbranch_scc1 Lnn")
    e("s_bitset1_b32 s101, 31"); e(f"v_mov_b32 v{NON}, s100"); e(f"v_mov_b32 v{NON+1}, s101")
    e("s_mov_b64 exec, 1"); e(f"buffer_store_dwordx2 {vr(NON,2)}, off, {SDBG}, 0 sc1"); e("s_mov_b64 exec, -1")
    g.label("Lnn")
    g.stamp("srd")
    adv = [f"s_add_u32 {sKS}, {sKS}, 1", f"s_cmp_eq_u32 {sKS}, 10", f"s_cselect_b32 {sKS}, 0, {sKS}"]
    def wchunk(base, tag, c, pre):
        return [(pre + [f"s_add_u32 m0, {sM0}, {base}", "s_nop 0"], f"buffer_load_dwordx4 {vW[0]}, {SW1}, s{KW+c} offen lds", tag),
                ([], f"buffer_load_dwordx4 {vW[1]}, {SW1}, s{KW+c} offen offset:1024 lds", tag)]
    nextpass = [f"s_add_u32 {sTD}, {sTD}, 1", f"s_cmp_eq_u32 {sTD}, 3", f"s_cselect_b32 {sTD}, 0, {sTD}", f"s_cselect_b32 {sT3}, -2, 1", f"s_lshl_b32 {sT3}, {sT3}, 7",
                f"v_add_u32 {vW[0]}, {sT3}, {vW[0]}", f"v_add_u32 {vW[1]}, {sT3}, {vW[1]}"]
    def dma_groups(s):
        slot = (s % R) * SLOT; tag = f"st{s}"
        if s < 10:
            return [([f"s_lshl_b32 {sDA}, {sKS}, 7", f"s_add_u32 m0, {sM0}, {slot}", f"s_add_u32 {sDA}, {sDA}, {sXB}"], f"buffer_load_dwordx4 {vX[0]}, {SX}, {sDA} offen lds", tag),
                    ([f"s_mul_i32 s{KW+s}, {sKS}, {64*3072}"], f"buffer_load_dwordx4 {vX[1]}, {SX}, {sDA} offen offset:1024 lds", tag)] + wchunk(slot + 8192, tag, s, adv)
        c = 2 * ((s - 10) % 5)
        return wchunk(slot, tag, c, nextpass if c == 0 else []) + wchunk(slot + 8192, tag, c + 1, [])
    def issue(gr):
        for t in gr[0]: e(t)
        g.vmem(gr[1], gr[2])
    NPRO = min(cfg.npro, LA)
    if cfg.xcold:
        e("s_mov_b64 s[32:33], s[14:15]"); e(f"s_mov_b32 s34, {WS_USED}"); e("s_mov_b32 s35, 0x00020000")
        e(f"s_lshl_b32 {sT2}, s2, 2"); e(f"s_add_u32 {sT2}, {sT2}, {sW}"); e(f"s_lshl_b32 {sT2}, {sT2}, 16"); e(f"s_add_u32 {sT2}, {sT2}, 0x4000000")
        e(f"v_lshlrev_b32 {vL16}, 4, {vL}")
        for i in range(cfg.xcold):
            e(f"buffer_load_dwordx4 v[80:83], {vL16}, {SWS}, {sT2} offen"); e(f"s_add_u32 {sT2}, {sT2}, 1024")
        e("s_waitcnt vmcnt(0)")
    if cfg.xhit:
        pass
    if cfg.p0first: p0_loads()
    for s in range(NPRO): [issue(gr) for gr in dma_groups(s)]
    for srd, p, n in ((40, 10, 2621440), (32, 14, WS_USED)):
        e(f"s_mov_b64 s[{srd}:{srd+1}], s[{p}:{p+1}]"); e(f"s_mov_b32 s{srd+2}, {n}"); e(f"s_mov_b32 s{srd+3}, 0x00020000")
    if cfg.cpf:
        e("s_getpc_b64 s[100:101]"); e(f"s_lshl_b32 {sT2}, {sT1}, 2"); e(f"s_add_u32 {sT2}, {sT2}, {sW}"); e(f"s_lshl_b32 {sT2}, {sT2}, 7")
        e(f"s_min_u32 {sT2}, {sT2}, CODE_END_PF"); e(f"s_add_u32 s100, s100, {sT2}"); e("s_addc_u32 s101, s101, 0"); e("s_load_dword s101, s[100:101], 0")
        g.label("Lpc")
    part(cfg.p2, sB2, sJ2)
    if not cfg.p0first: p0_loads()
    e(f"s_mov_b32 {sT0}, {sHST}"); e(f"s_mov_b32 {sT1}, {sPWA}"); e(f"s_mov_b32 {sT3}, {sFH}")
    e(f"s_mul_i32 {sT2}, {sT0}, 43"); e(f"s_lshr_b32 {sT2}, {sT2}, 8")
    e(f"s_lshl_b32 {sFW}, {sT1}, 2"); e(f"s_add_u32 {sFW}, {sFW}, {sT2}"); e(f"s_lshl_b32 {sFW}, {sFW}, 5")
    e(f"s_mul_i32 {sT2}, {sT2}, 6"); e(f"s_sub_u32 {sT2}, {sT0}, {sT2}"); e(f"s_add_u32 {sFW}, {sFW}, {sT2}"); e(f"s_lshl_b32 {sFW}, {sFW}, 2")
    e(f"s_sub_u32 {sT2}, {sT3}, 200"); e(f"s_lshl_b32 {sT2}, {sT2}, 7"); e(f"s_cmp_lt_u32 {sT3}, 240"); e(f"s_cselect_b32 {sFW}, {sFW}, {sT2}")
    e(f"s_add_u32 {sFW}, {sFW}, {FW_OFF}")
    e(f"s_lshl_b32 {sT1}, {sT1}, 2"); e(f"s_add_u32 {sT1}, {sT1}, {sW}")
    e(f"s_mul_i32 {sT2}, {sT1}, 52"); e(f"s_lshr_b32 {sT2}, {sT2}, 8")
    e(f"s_mul_i32 {sP0A}, {sT2}, 235"); e(f"s_add_u32 {sP0A}, {sP0A}, {sT1}")
    e(f"s_mul_i32 {sT2}, {sT0}, 10"); e(f"s_add_u32 {sP0A}, {sP0A}, {sT2}")
    e(f"s_lshl_b32 {sP0A}, {sP0A}, 10"); e(f"s_add_u32 {sP0A}, {sP0A}, {W2P_OFF}")
    e(f"s_lshr_b32 {sFH}, {sT3}, 1"); e(f"s_lshl_b32 {sFH}, {sFH}, 7"); e(f"s_and_b32 {sT2}, {sJ1}, 1"); e(f"s_lshl_b32 {sT2}, {sT2}, 3")
    e(f"s_add_u32 {sFH}, {sFH}, {sT2}"); e(f"s_add_u32 {sFH}, {sFH}, {FH_OFF}")
    e(f"v_lshlrev_b32 {vL16}, 4, {vL}")
    e(f"s_lshl_b32 {sOUT}, {sB2}, 2"); e(f"s_add_u32 {sOUT}, {sOUT}, {sW}"); e(f"s_mul_i32 {sOUT}, {sOUT}, {16*1280}")
    e(f"s_mul_i32 {sT2}, {sJ2}, 160"); e(f"s_add_u32 {sOUT}, {sOUT}, {sT2}")
    if cfg.warm:
        e("s_mov_b64 exec, 1")
        g.vmem(f"buffer_load_dword {vDUM}, off, {SOUT}, {sOUT}", "warm")
        e(f"s_lshl_b32 {sT2}, {sB1}, 18"); e(f"s_add_u32 {sT2}, {sT2}, {200<<10}")
        g.vmem(f"buffer_load_dword {vDUM}, off, {SWS}, {sT2}", "warm")
        e(f"s_mov_b32 {sT2}, {FH_OFF + 32768}")
        g.vmem(f"buffer_load_dword {vDUM}, off, {SWS}, {sT2}", "warm")
        if cfg.p1 != cfg.p2:
            e(f"s_lshl_b32 {sT2}, {sB2}, 18"); e(f"s_add_u32 {sT2}, {sT2}, {200<<10}")
            g.vmem(f"buffer_load_dword {vDUM}, off, {SWS}, {sT2}", "warm")
        e("s_mov_b64 exec, -1")
    e(f"s_and_b32 {sT0}, {sW}, 1"); e(f"s_lshr_b32 {sT1}, {sW}, 1")
    e(f"v_and_b32 {vT0}, 31, {vL}"); e(f"s_lshl_b32 {sT2}, {sT0}, 5"); e(f"v_add_u32 {vT0}, {sT2}, {vT0}"); e(f"v_lshlrev_b32 {vT0}, 7, {vT0}")
    e(f"v_bfe_u32 {vT1}, {vL}, 1, 3"); e(f"v_lshrrev_b32 {vT2}, 5, {vL}"); e(f"v_xor_b32 {vT1}, {vT1}, {vT2}")
    e(f"v_lshl_add_u32 v{vRX[0][0]}, {vT1}, 4, {vT0}")
    for q in range(1, 4): e(f"v_xor_b32 v{vRX[0][q]}, {32*q}, v{vRX[0][0]}")
    for q in range(4): e(f"v_add_u32 v{vRX[1][q]}, 0x10000, v{vRX[0][q]}")
    e(f"v_lshrrev_b32 {vT0}, 5, {vL}"); e(f"v_lshlrev_b32 {vT0}, 3, {vT0}"); e(f"v_bfe_u32 {vT1}, {vL}, 2, 2"); e(f"v_add_u32 {vT0}, {vT0}, {vT1}")
    e(f"v_lshlrev_b32 {vT0}, 7, {vT0}")
    e(f"v_bfe_u32 {vT1}, {vL}, 4, 1"); e(f"v_lshl_add_u32 {vT0}, {vT1}, 5, {vT0}")
    e(f"v_and_b32 {vT1}, 1, {vL}"); e(f"v_lshl_add_u32 {vT0}, {vT1}, 4, {vT0}")
    e(f"v_bfe_u32 {vT1}, {vL}, 1, 1"); e(f"v_lshl_add_u32 {vT0}, {vT1}, 3, {vT0}")
    e(f"v_bfe_u32 {vT1}, {vL}, 3, 1"); e(f"v_xor_b32 {vT1}, {sT1}, {vT1}"); e(f"v_lshl_add_u32 v{vRW[0]}, {vT1}, 6, {vT0}")
    e(f"v_add_u32 v{vRW[1]}, 0x10000, v{vRW[0]}")
    e(f"v_bfe_u32 {vT0}, {vL}, 4, 1"); e(f"v_mul_u32_u24 {vT0}, 49152, {vT0}"); e(f"v_and_b32 {vT1}, 15, {vL}"); e(f"v_lshl_add_u32 {vT0}, {vT1}, 4, {vT0}")
    e(f"v_lshrrev_b32 {vT1}, 5, {vL}"); e(f"v_lshl_add_u32 {vHST}, {vT1}, 8, {vT0}")
    e(f"s_lshl_b32 {sHST}, {sB1}, 8"); e(f"s_mul_i32 {sT2}, {sT0}, 96"); e(f"s_add_u32 {sHST}, {sHST}, {sT2}")
    e(f"s_mul_i32 {sT2}, {sJ1}, 6"); e(f"s_add_u32 {sHST}, {sHST}, {sT2}"); e(f"s_add_u32 {sHST}, {sHST}, {sT1}")
    e(f"s_lshl_b32 {sHST}, {sHST}, 10")
    e(f"v_lshrrev_b32 {vT0}, 4, {vL}"); e(f"v_lshlrev_b32 {vT0}, 3, {vT0}"); e(f"v_bfe_u32 {vT1}, {vL}, 2, 2"); e(f"v_add_u32 {vT0}, {vT0}, {vT1}")
    e(f"v_lshlrev_b32 {vT0}, 7, {vT0}"); e(f"v_and_b32 {vT1}, 3, {vL}"); e(f"v_lshl_add_u32 {vT0}, {vT1}, 3, {vT0}")
    e(f"s_lshl_b32 {sT2}, {sW}, 5"); e(f"s_add_u32 {sT2}, {sT2}, {LDS_P0}"); e(f"v_add_u32 {vP0R}, {sT2}, {vT0}")
    for s in range(NPRO, min(LA, cfg.npro2)): [issue(gr) for gr in dma_groups(s)]
    e(f"s_mul_i32 {sPWA}, {sJ2}, 5"); e(f"s_lshr_b32 {sPWA}, {sPWA}, 2"); e(f"s_lshl_b32 {sPWA}, {sPWA}, 2"); e(f"s_add_u32 {sPWA}, {sPWA}, {sW}")
    e(f"s_lshl_b32 {sPWA}, {sPWA}, 7"); e(f"s_add_u32 {sPWA}, {sPWA}, {FW_OFF}")
    e(f"s_lshl_b32 {sPH}, {sB2}, 2"); e(f"s_add_u32 {sPH}, {sPH}, {sW}"); e(f"s_lshl_b32 {sPH}, {sPH}, 7"); e(f"s_add_u32 {sPH}, {sPH}, {FH_OFF}")
    for i in range(4):
        e(f"s_add_u32 {sT0}, {sW}, {1+i}"); e(f"s_and_b32 {sT0}, {sT0}, 3")
        if i < 3:
            e(f"s_mul_i32 {sT2}, {sT0}, {3*5120}"); e(f"s_add_u32 {sT2}, {sT2}, {i*5120}"); e(f"v_add_u32 {vRDW[i]}, {sT2}, {vL16}")
        e(f"s_lshl_b32 {sT1}, {sB2}, 8"); e(f"s_mul_i32 {sT2}, {sT0}, 48"); e(f"s_add_u32 {sT1}, {sT1}, {sT2}")
        e(f"s_mul_i32 {sT2}, {sW}, 12"); e(f"s_add_u32 {sT1}, {sT1}, {sT2}"); e(f"s_lshl_b32 {sT1}, {sT1}, 10")
        e(f"v_add_u32 {vH[i]}, {sT1}, {vL16}")
    e(f"s_mul_i32 {sT2}, {sW}, {3*5120}"); e(f"v_add_u32 {vRDR}, {sT2}, {vL16}")
    e(f"s_mul_i32 {sT2}, {sW}, 2816"); e(f"s_add_u32 {sT2}, {sT2}, {LDS_T}")
    e(f"v_and_b32 {vT0}, 15, {vL}"); e(f"v_mul_u32_u24 {vT0}, 176, {vT0}"); e(f"v_lshrrev_b32 {vT1}, 4, {vL}"); e(f"v_lshl_add_u32 {vT0}, {vT1}, 3, {vT0}")
    e(f"v_add_u32 {vTW}, {sT2}, {vT0}")
    vTRs = [vTR, vOUT, vDUM]
    for i in range(3):
        e(f"v_add_u32 {vT0}, {64*i}, {vL}"); e(f"v_mul_u32_u24 {vT1}, 205, {vT0}"); e(f"v_lshrrev_b32 {vT1}, 11, {vT1}")
        e(f"v_mul_u32_u24 {vT2}, 10, {vT1}"); e(f"v_sub_u32 {vT0}, {vT0}, {vT2}"); e(f"v_lshlrev_b32 {vT0}, 4, {vT0}")
        e(f"v_mul_u32_u24 {vT2}, 1280, {vT1}"); e(f"v_add_u32 {vOUT2[i]}, {vT2}, {vT0}")
        e(f"v_mul_u32_u24 {vT2}, 176, {vT1}"); e(f"v_add3_u32 v{42+i}, {vT2}, {vT0}, {sT2}")
    e(f"s_lshl_b32 {sT0}, {sJ2}, 2"); e(f"s_add_u32 {sT0}, {sT0}, {sW}"); e(f"s_mul_i32 {sT0}, {sT0}, {60*1024}"); e(f"s_add_u32 {sT0}, {sT0}, {W2P_OFF}")
    e(f"v_add_u32 {vW2A}, {sT0}, {vL16}"); e(f"v_add_u32 {vW2B}, 4096, {vW2A}")
    t0_of(sT0, sB2)
    if cfg.rk == 0: e(f"s_mov_b32 {sT1}, 0")
    elif cfg.rk == 1: e(f"s_and_b32 {sT1}, {sB2}, 1"); e(f"s_lshl_b32 {sT1}, {sT1}, 1")
    elif cfg.rk == 2: e(f"s_and_b32 {sT1}, {sB2}, 1"); e(f"s_lshl_b32 {sT1}, {sT1}, 1"); e(f"s_add_u32 {sT1}, {sT1}, {sJ2}")
    elif cfg.rk == 3: e(f"s_add_u32 {sT1}, {sB2}, {sJ2}"); e(f"s_lshl_b32 {sT1}, {sT1}, 1")
    for kk in range(4):
        e(f"s_add_u32 {sT2}, {sT1}, {kk}"); e(f"s_and_b32 {sCNT}, {sT2}, 1"); e(f"s_bfe_u32 {sT2}, {sT2}, 0x10001"); e(f"s_mul_i32 {sT2}, {sT2}, 6")
        e(f"s_add_u32 {sT2}, {sT2}, {sCNT}"); e(f"s_lshl_b32 s{4+kk}, {sT2}, 10")
    for p in (2, 1, 0):
        e(f"s_add_u32 {sT2}, {sT0}, {p}"); e(f"s_sub_u32 {sCNT}, {sT2}, 3"); e(f"s_cmp_ge_u32 {sT2}, 3"); e(f"s_cselect_b32 {sT2}, {sCNT}, {sT2}"); e(f"s_lshl_b32 {sT2}, {sT2}, 11")
        for kk in range(4): e(f"s_add_u32 s{4+4*p+kk}, s{4+kk}, {sT2}")
    pend = []
    for s in range(max(NPRO, min(LA, cfg.npro2)), LA): pend.extend(dma_groups(s))

    def flag_store(name, sreg, off, wide):
        e(f"s_cmp_lg_u32 {sW}, 0"); e(f"s_cbranch_scc1 L{name}")
        e("s_mov_b64 exec, 1")
        if wide: e(f"buffer_store_dwordx2 {vr(NON,2)}, off, {SWS}, {sreg} offset:{off} sc1")
        else: e(f"buffer_store_dword v{NON}, off, {SWS}, {sreg} sc1")
        e("s_mov_b64 exec, -1")
        g.label(f"L{name}")
    ld_non = f"buffer_load_dwordx2 {vr(NON,2)}, off, {SDBG}, 0 sc1"; cmp_non = f"v_cmp_eq_u32 vcc, 0, v{NON+1}"
    def spin_non():
        e(cmp_non); e(f"s_mov_b32 {sCNT}, 0"); e("s_nop 0"); e(f"s_cbranch_vccz Lnon_ok")
        g.label("Lnon")
        e(f"s_sleep {cfg.sleep}"); e(ld_non); e("s_waitcnt vmcnt(0)"); e(cmp_non)
        e(f"s_add_u32 {sCNT}, {sCNT}, 1"); e(f"s_cmp_gt_u32 {sCNT}, 200000"); e(f"s_cbranch_scc1 Lnon_ok")
        e(f"s_cbranch_vccnz Lnon")
        g.label("Lnon_ok")
        e(f"v_readfirstlane_b32 s70, v{NON}"); e(f"v_readfirstlane_b32 s71, v{NON+1}")
    ld_pw = f"s_load_dwordx8 s[16:23], {WSB}, {sPWA} glc\n    s_load_dwordx8 s[24:31], {WSB}, {sPWA} offset:512 glc"
    def s_check(name, reload, test):
        g.wait_lg0(); e(f"s_mov_b32 {sCNT}, 0")
        g.label(f"L{name}")
        test(); e(f"s_cbranch_scc1 L{name}_ok")
        e(f"s_sleep {cfg.sleep}"); e(reload); e("s_waitcnt lgkmcnt(0)")
        e(f"s_add_u32 {sCNT}, {sCNT}, 1"); e(f"s_cmp_lt_u32 {sCNT}, 400000"); e(f"s_cbranch_scc1 L{name}")
        g.label(f"L{name}_ok")
    def test_pw():
        e("s_xor_b64 s[16:17], s[16:17], s[18:19]"); e("s_xor_b64 s[18:19], s[18:19], s[20:21]"); e("s_xor_b64 s[22:23], s[20:21], s[24:25]")
        e("s_xor_b64 s[24:25], s[24:25], s[26:27]"); e("s_xor_b64 s[26:27], s[26:27], s[28:29]"); e("s_xor_b32 s30, s28, s29"); e("s_xor_b32 s31, s28, s70")
        e("s_or_b64 s[16:17], s[16:17], s[18:19]"); e("s_or_b64 s[22:23], s[22:23], s[24:25]"); e("s_or_b64 s[26:27], s[26:27], s[30:31]")
        e("s_or_b64 s[16:17], s[16:17], s[22:23]"); e("s_or_b64 s[16:17], s[16:17], s[26:27]"); e("s_cmp_eq_u64 s[16:17], 0")
    def test_ph():
        e(f"s_xor_b64 s[16:17], s[16:17], {sNON}"); e(f"s_xor_b64 s[18:19], s[18:19], {sNON}"); e("s_or_b64 s[16:17], s[16:17], s[18:19]"); e("s_cmp_eq_u64 s[16:17], 0")
    ld_ph = f"s_load_dwordx4 s[16:19], {WSB}, {sPH} glc"

    def wblk(s):
        out = []
        for t in range(5):
            a = 4 * (5 * s + t)
            pre = [f"s_mul_i32 {sXB}, s{4+s}, 5"] if t == 0 else []
            if t < 4: out.append(("W", pre, f"buffer_load_dwordx4 a[{a}:{a+3}], {vW2A}, {SWS}, {sXB} offen offset:{1024*t} sc1", f"w{s}"))
            else: out.append(("W", pre, f"buffer_load_dwordx4 a[{a}:{a+3}], {vW2B}, {SWS}, {sXB} offen sc1", f"w{s}"))
        return out
    stream = []; groups = []
    for s in range(cfg.lead): stream += wblk(s)
    for s in range(8):
        for i in range(4): stream.append(("H", s, i)); groups.append((s, i))
        if s + cfg.lead < 12: stream += wblk(s + cfg.lead)
    for i in range(4):
        for s in range(8, 12): stream.append(("H", s, i)); groups.append((s, i))
    for p in (2, 1, 0):
        idx = stream.index(("H", 4 * p, 0))
        stream.insert(idx, ("C", p))
        stream.insert(max(0, idx - (cfg.pd if p else cfg.pd0)), ("P", p))
    hbuf = {}; hcount = [0]
    def stream_issue(allow_h=True):
        it = stream[0]
        if it[0] == "W":
            stream.pop(0)
            for t in it[1]: e(t)
            g.vmem(it[2], it[3]); return True
        if it[0] == "P" and not allow_h and cfg.holdp:
            if len(stream) > 1 and stream[1][0] == "W":
                stream[0], stream[1] = stream[1], stream[0]
                return stream_issue(allow_h)
            return False
        if it[0] == "P":
            stream.pop(0)
            if it[1]: e(f"s_add_u32 {sPH}, {sPH}, 16")
            e(ld_ph); g.lgmax = 13
            return stream_issue(allow_h)
        if not allow_h: return False
        if it[0] == "C":
            stream.pop(0); g.stamp(f"c{it[1]}a"); s_check(f"ph{it[1]}", ld_ph, test_ph); g.stamp(f"c{it[1]}b"); return stream_issue()
        _, s, i = stream.pop(0)
        while hcount[0] % NHB in hbuf.values(): hcount[0] += 1
        b = hcount[0] % NHB; hcount[0] += 1
        hbuf[(s, i)] = b
        g.vmem(f"buffer_load_dwordx4 {vr(HB+4*b,4)}, {vH[i]}, {SWS}, s{4+s} offen sc1", f"h{s}_{i}")
        return True

    NSTEP = 120
    def stage_of(n): return n // 4 if n < 40 else 10 + (n - 40) // 8
    def first_step(s): return 4 * s if s < 10 else 40 + 8 * (s - 10)
    def last_step(s): return first_step(s + 1) - 1
    def DD(n): return cfg.d0 if n < 40 else cfg.d1
    def reads(n):
        s = stage_of(n); slot = s % R; hi = slot >> 2; base = (slot & 3) * SLOT
        q = n % 4; out = []
        if n < 40:
            out.append(f"ds_read_b128 {xreg(n)}, v{vRX[hi][q]} offset:{base}"); wb = base + 8192
        else: wb = base + 8192 * (((n - 40) % 8) // 4)
        for half in range(2):
            out.append(f"ds_read_b64_tr_b16 {vr(WF+4*(n%8)+2*half,2)}, v{vRW[hi]} offset:{wb+(16*q+4*half)*128}")
        return out
    w2_ok = [False]; early = [cfg.n0]; done_step = [-1]; flagged = set(); issued_tags = set()
    def barrier(s):
        tags = [f"st{s}"]
        if s == cfg.p0s: tags.append("p0")
        if s == cfg.flagw: tags += ["p0st"]
        for p in (0, 1):
            if s == cfg.fh[p]: tags.append(f"hst{p}")
        while pend and int(pend[0][2][2:]) <= s: issue(pend.pop(0))
        g.wait_vm(*tags)
        e("s_barrier")
        g.stamp(f"b{s}")
        if s == cfg.p0s:
            for kk in range(2):
                for half in range(2): g.lds(f"ds_read_b64_tr_b16 {vr(ACC1+16+4*kk+2*half,2)}, {vP0R} offset:{half*512+kk*4096}", "p0r")
            e(f"s_add_u32 {sT0}, {sP0A}, 5120")
            g.wait_lg("p0r")
            if not cfg.xp0st:
                g.vmem(f"buffer_store_dwordx4 {vr(ACC1+16,4)}, {vL16}, {SWS}, {sP0A} offen sc1", "p0st")
                g.vmem(f"buffer_store_dwordx4 {vr(ACC1+20,4)}, {vL16}, {SWS}, {sT0} offen sc1", "p0st")
        if s == cfg.nons: e(f"s_load_dwordx2 {sNON}, s[24:25], 0"); g.lgmax = 13
        if s == cfg.nons + 2:
            s_check("non", f"s_load_dwordx2 {sNON}, s[24:25], 0 glc", lambda: e("s_cmp_lg_u32 s71, 0")); g.lgmax = 15
            e(f"v_mov_b32 v{NON}, s70"); e(f"v_mov_b32 v{NON+1}, s71")
        if s == cfg.flagw: assert cfg.nons + 2 <= s; flag_store("nf1", sFW, 0, False)
        if s == cfg.pollw: assert not any(int(x[2][2:]) < 10 for x in pend) and s + LA > 10 and s > cfg.flagw; e(ld_pw.replace(' glc', '') if cfg.pwc else ld_pw); g.lgmax = 11
        if s == cfg.pollw + cfg.pgap:
            g.stamp("pwa"); s_check("pw", ld_pw, test_pw); w2_ok[0] = True; g.lgmax = 15; g.stamp("pwb")
        for p in (0, 1):
            if s == cfg.fh[p]: assert f"hst{p}" in issued_tags; flag_store(f"nh{p}", sFH, 16 * p, True); flagged.add(p)
        ns = s + LA
        if ns < NST:
            old = ns - R
            assert old < 0 or last_step(old) <= done_step[0], (s, old, done_step[0])
            pend.extend(dma_groups(ns))
    def slot_issue():
        if pend: issue(pend.pop(0))
        elif w2_ok[0] and early[0] > 0 and stream_issue(allow_h=False): early[0] -= 1
    def epilogue_ops(p):
        a = ACC1 + 16 * (p & 1); ops = []
        for i in range(8): ops.append(("v", f"v_cvt_pk_bf16_f32 v{a+i}, v{a+2*i}, v{a+2*i+1}"))
        for i in range(8): ops.append(("v", f"v_pk_max_i16 v{a+i}, v{a+i}, 0"))
        ops.append(("v", f"s_lshl_b32 {sT1}, {sTP}, 11")); ops.append(("v", f"s_add_u32 {sT1}, {sT1}, {sHST}"))
        for c in range(2): ops.append(("m", f"buffer_store_dwordx4 {vr(a+4*c,4)}, {vHST}, {SWS}, {sT1} offen offset:{c*512} sc1", f"hst{p}"))
        ops += [("v", f"s_add_u32 {sTP}, {sTP}, 1"), ("v", f"s_cmp_eq_u32 {sTP}, 3\n    s_cselect_b32 {sTP}, 0, {sTP}")]
        return ops
    def run_ops(ops, k):
        for _ in range(k):
            if not ops: return
            o = ops.pop(0)
            if o[0] == "v": e(o[1])
            else: g.vmem(o[1], o[2]); issued_tags.add(o[2])
    nread = [0]
    def issue_reads_upto(m):
        while nread[0] <= min(m, NSTEP - 1):
            n = nread[0]
            assert n - 8 <= done_step[0]
            if n == first_step(stage_of(n)): barrier(stage_of(n))
            for t in reads(n): g.lds(t, f"r{n}")
            nread[0] += 1
    issue_reads_upto(cfg.d0 - 1)
    ep = []
    for n in range(NSTEP):
        p = n // 40
        if n < 40 or not cfg.w2: g.wait_lg(f"r{n}")
        elif n % 2 == 0: g.wait_lg(f"r{n}", f"r{n+1}")
        a = vr(ACC1 + 16 * (p & 1), 16)
        e(f"v_mfma_f32_32x32x16_bf16 {a}, {vr(WF+4*(n%8),4)}, {xreg(n%40)}, {'0' if n % 40 == 0 else a}")
        done_step[0] = n
        tgt = min(n + DD(n + 1), nread[0] + 1)
        while len(g.lg) + sum(len(reads(k)) for k in range(nread[0], min(tgt, NSTEP - 1) + 1)) > g.lgmax: tgt -= 1
        tgt = max(tgt, min(n + 2, NSTEP - 1))
        issue_reads_upto(tgt)
        if n < 40:
            slot_issue()
            if len(pend) > 4: slot_issue()
        elif n % 2 == 1 or len(pend) > 4: slot_issue()
        if n % 40 == 3 and p > 0: ep = epilogue_ops(p - 1)
        run_ops(ep, 2)
    g.stamp("p1end")
    assert not pend and w2_ok[0]
    if stream[0][0] == "P": stream_issue()
    for _ in range(2): stream_issue(allow_h=False)
    e("s_nop 7"); e("s_nop 3")
    ep = epilogue_ops(2); run_ops(ep, 100)
    pos = [0]; hpos = {}
    def emit_group(s, i, extra):
        acc = ACC2 + 20 * i; b = hbuf[(s, i)]
        g.wait_vm(f"h{s}_{i}", f"w{s}")
        for t in range(5):
            a = 4 * (5 * s + t)
            cc = "0" if s == 0 else vr(acc+4*t,4)
            e(f"v_mfma_f32_16x16x32_bf16 {vr(acc+4*t,4)}, a[{a}:{a+3}], {vr(HB+4*b,4)}, {cc}")
            for x in extra[t]: x()
    nafter = 0; first = True
    while stream or groups:
        if stream:
            stream_issue(); pos[0] += 1; nafter += 1
            if pos[0] % 6 == 0: g.stamp(f"q{pos[0]}")
            for k in hbuf:
                if k not in hpos: hpos[k] = pos[0]
            for p, nn in ((1, cfg.n1a), (2, cfg.n1)):
                if p not in flagged and nafter >= nn:
                    g.wait_vm(f"hst{p}"); g.stamp(f"hst{p}"); e("s_barrier"); flag_store(f"nh{p}", sFH, 16 * p, True); flagged.add(p)
        if groups and groups[0] in hpos and (not stream or hpos[groups[0]] <= pos[0] - cfg.depth):
            s, i = groups[0]
            extra = [[] for _ in range(5)]
            W = lambda t, ii: (lambda: g.lds(f"ds_write_b128 {vRDW[ii]}, {vr(ACC2+20*ii+4*t,4)} offset:{1024*t}", "rw"))
            Rd = lambda k, u: (lambda: g.lds(f"ds_read_b128 {vr(ACC2+20*k+4*u,4)}, {vRDR} offset:{5120*k+1024*u}", f"rr{k}"))
            A = lambda r, k: (lambda: e(f"v_add_f32 v{ACC2+r}, v{ACC2+r}, v{ACC2+20*k+r}"))
            if s == 9 and i in (1, 2):
                for t in range(5): extra[t].append(W(t, i - 1))
            if i == 2 and s == 11:
                extra[0].append(lambda: (g.wait_lg0(), e("s_barrier")))
                for q in range(10): extra[q // 2].append(Rd(q // 5, q % 5))
            if i == 3 and s == 8:
                for t in range(5): extra[min(4, t + 2)].append(W(t, 2))
            if i == 3 and s == 9:
                extra[0].append(lambda: g.wait_lg("rr1"))
                for r in range(20): extra[r // 5].append(A(r, 1))
                extra[4].append(lambda: (g.wait_lg0(), e("s_barrier")))
                for u in range(5): extra[4].append(Rd(2, u))
            if i == 3 and s == 11:
                extra[0].append(lambda: g.wait_lg0())
                for r in range(20): extra[r // 4].append(A(r, 2))
            emit_group(s, i, extra)
            groups.pop(0); del hbuf[(s, i)]
            if first: g.stamp("g0"); first = False
            if not stream and len(groups) % 3 == 0: g.stamp(f"G{len(groups)}")
    assert cfg.lead >= 4 and flagged == {0, 1, 2}
    g.stamp("mfend")
    acc = ACC2 + 60; PR = ACC2
    g.wait_lg0()
    for t in range(5):
        if True:
            if t == 0: e("s_nop 3")
            for r in (0, 2): e(f"v_pk_add_f32 {vr(PR+4*t+r,2)}, {vr(PR+4*t+r,2)}, {vr(acc+4*t+r,2)}")
        else:
            for r in range(4): e(f"v_add_f32 v{PR+40+4*t+r}, v{PR+40+4*t+r}, v{acc+4*t+r}"); e(f"v_add_f32 v{PR+4*t+r}, v{PR+4*t+r}, v{PR+40+4*t+r}")
        e(f"v_cvt_pk_bf16_f32 v{PR+20+2*t}, v{PR+4*t}, v{PR+4*t+1}"); e(f"v_cvt_pk_bf16_f32 v{PR+21+2*t}, v{PR+4*t+2}, v{PR+4*t+3}")
        e(f"ds_write_b64 {vTW}, {vr(PR+20+2*t,2)} offset:{32*t}")
    e("s_waitcnt lgkmcnt(0)")
    for i in range(3): e(f"ds_read_b128 {vr(PR+40+4*i,4)}, v{42+i}")
    for i in range(3):
        e(f"s_waitcnt lgkmcnt({2-i})")
        if i == 2: e("s_mov_b32 exec_hi, 0")
        e(f"buffer_store_dwordx4 {vr(PR+40+4*i,4)}, {vOUT2[i]}, {SOUT}, {sOUT} offen {cfg.outsc}")
    if cfg.prof:
        e("s_waitcnt vmcnt(0)"); g.stamp("end"); e("s_memrealtime s[74:75]"); e("s_waitcnt lgkmcnt(0)")
        e(f"s_lshl_b32 {sT0}, s2, 2"); e(f"s_add_u32 {sT0}, {sT0}, {sW}"); e(f"s_lshl_b32 {sT0}, {sT0}, 7"); e(f"s_add_u32 {sT0}, {sT0}, {PROF_OFF}")
        if cfg.prof == 2:
            for k in range(max(0, g.nstamp - 4), g.nstamp): e(f"v_writelane_b32 v47, s{76+2*(k%8)}, {k}")
            e("s_mov_b64 exec, -1"); e(f"s_lshl_b32 {sT1}, s2, 2"); e(f"s_add_u32 {sT1}, {sT1}, {sW}"); e(f"s_lshl_b32 {sT1}, {sT1}, 8"); e(f"s_add_u32 {sT1}, {sT1}, {PROF_OFF + 0x100000}")
            e(f"v_lshlrev_b32 v24, 2, {vL}"); e(f"buffer_store_dword v47, v24, {SWS}, {sT1} offen"); e("s_nop 1")
            g.L.append("; STAMPS " + " ".join(g.names)); g.nstamp = 0
        e("s_mov_b64 exec, 1")
        regs = ["s72", "s74"] + [f"s{76+2*i}" for i in range(g.nstamp)]
        for i, r in enumerate(regs):
            e(f"v_mov_b32 v24, {r}"); e(f"buffer_store_dword v24, off, {SWS}, {sT0} offset:{4*i}"); e("s_nop 1")
    if cfg.probe:
        e("s_waitcnt vmcnt(0)"); g.stamp("end"); e("s_mov_b64 exec, -1"); e("s_waitcnt lgkmcnt(0)")
        e("s_add_u32 s80, s70, 3000" if cfg.probe == "non" else "s_add_u32 s80, s78, 3000")
        g.label("Lpr")
        for i in range(4): e(f"buffer_load_dwordx4 v[80:83], {vW2A}, {SWS}, s{4+i} offen")
        e("s_memrealtime s[82:83]"); e("s_waitcnt vmcnt(0) lgkmcnt(0)"); e("s_sub_u32 s84, s80, s82"); e("s_cmp_gt_i32 s84, 0"); e("s_cbranch_scc1 Lpr")
    if cfg.delay:
        e(f"s_mov_b32 {sCNT}, 0"); g.label("Ldel"); e("s_nop 15"); e("s_nop 15"); e("s_nop 15"); e("s_nop 15"); e(f"s_add_u32 {sCNT}, {sCNT}, 1"); e(f"s_cmp_lt_u32 {sCNT}, {cfg.delay}"); e("s_cbranch_scc1 Ldel")
    if cfg.xhit:
        e("s_mov_b64 exec, -1"); e(f"s_mov_b32 {sCNT}, 0"); g.label("Lxh")
        for i in range(12): e(f"buffer_load_dwordx4 v[80:83], {vW2A}, {SWS}, s{4+i} offen"); e(f"buffer_load_dwordx4 v[80:83], {vH[i%4]}, {SWS}, s{4+i} offen"); e(f"buffer_load_dwordx4 v[80:83], {vH[(i+1)%4]}, {SWS}, s{4+i} offen")
        e("s_waitcnt vmcnt(12)"); e(f"s_add_u32 {sCNT}, {sCNT}, 1"); e(f"s_cmp_lt_u32 {sCNT}, {cfg.xhit}"); e("s_cbranch_scc1 Lxh")
        e("s_waitcnt vmcnt(0)")
    g.label("Lend")
    body = "\n".join(g.L)
    pf = ".set CODE_END_PF, Lend - Lpc\n" if cfg.cpf else ""
    return f"""{HDR}; @launch grid=(256,1,1) block=(256,1,1) lds={lds_bytes}
.amdgcn_target "amdgcn-amd-amdhsa--gfx950"
.text
.globl {KN}
.p2align 8
.type {KN},@function
{KN}:
{body}
    s_endpgm
{pf}.section .rodata,"a"
.p2align 6
.amdhsa_kernel {KN}
  .amdhsa_next_free_vgpr 512
  .amdhsa_next_free_sgpr 102
  .amdhsa_accum_offset 256
  .amdhsa_group_segment_fixed_size 0
  .amdhsa_kernarg_size 48
  .amdhsa_user_sgpr_count 2
  .amdhsa_user_sgpr_kernarg_segment_ptr 1
  .amdhsa_system_sgpr_workgroup_id_x 1
.end_amdhsa_kernel
"""

def parser():
    ap = argparse.ArgumentParser()
    ap.add_argument("-o", default="k.s"); ap.add_argument("--prof", type=int, default=0)
    ap.add_argument("--p1", default="B"); ap.add_argument("--p2", default="B")
    for name, d in (("r1", 2), ("trot", 1), ("tsh", 1), ("rk", 1), ("LA", 4), ("npro", 2), ("npro2", 3), ("p0first", 0), ("p0s", 2), ("flagw", 6), ("pollw", 14), ("pgap", 2),
                    ("sleep", 2), ("n0", 20), ("n1a", 12), ("n1", 24), ("lead", 6), ("own0", 4), ("pd", 8), ("pd0", 12), ("depth", 12), ("d0", 3), ("d1", 6),
                    ("fh0", 16), ("fh1", 99), ("cpf", 0), ("warm", 1), ("w2", 1), ("both", 0), ("nons", 1), ("xcold", 0), ("xhit", 0), ("delay", 0), ("holdp", 1), ("pwc", 1), ("tail2", 1), ("nocomp", 0), ("xp0st", 0), ("xp0ld", 0)):
        ap.add_argument("--" + name, type=int, default=d)
    ap.add_argument("--outsc", default=""); ap.add_argument("--probe", default="")
    ap.add_argument("--stamps", default="start,b0,b5,b10,b15,p1end,c0b,g0,c1b,c2b,mfend,end")
    return ap
if __name__ == "__main__":
    cfg = parser().parse_args()
    cfg.fh = [cfg.fh0, cfg.fh1]; cfg.stamps = cfg.stamps.split(",")
    open(cfg.o, "w").write(gen(cfg))
```

```python
import sys, argparse

KN = "standalone__dense_activation_relu__prompt_kernel"
HDR = """; Kernarg layout for this problem (48 bytes, ptrs only, base s[0:1]):
"""
HBAND = 256 << 10
W2P_OFF = 8 << 20
FW_OFF = W2P_OFF + (1920 << 10)
FH_OFF = FW_OFF + 8192
PROF_OFF = 0x8000000
WS_USED = 0x10000000

class G:
    def __init__(s, cfg):
        s.L = []; s.vm = []; s.lg = []; s.cfg = cfg; s.nstamp = 0; s.lgmax = 15; s.names = []
    def e(s, t):
        if s.cfg.nocomp & 1 and t.startswith("v_mfma"): return
        if s.cfg.nocomp & 2 and (t.startswith("ds_read_b64_tr_b16 v[2") or t.startswith("ds_read_b128")): return
        if s.cfg.nocomp & 4 and t.startswith("v_mfma_f32_32x32x16"):
            import re
            m = re.match(r"v_mfma_f32_32x32x16_bf16 v\[(\d+):\d+\], (\S+), (\S+), ", t)
            d = int(m.group(1))
            s.flip = getattr(s, "flip", 0) ^ 1
            for h in range(2):
                dd = d + 8 * s.flip + 4 * h
                s.L.append(f"    v_mfma_f32_16x16x32_bf16 v[{dd}:{dd+3}], {m.group(2)}, {m.group(3)}, v[{dd}:{dd+3}]")
            return
        s.L.append("    " + t)
    def label(s, n): s.L.append(n + ":")
    def vmem(s, t, tag): s.e(t); s.vm.append(tag)
    def lds(s, t, tag): s.e(t); s.lg.append(tag); assert len(s.lg) <= 15, s.lg
    def wait_vm(s, *tags):
        idxs = [i for i, t in enumerate(s.vm) if t in tags]
        if not idxs: return
        idx = max(idxs); n = len(s.vm) - 1 - idx
        assert n <= 63, n
        s.e(f"s_waitcnt vmcnt({n})"); s.vm = s.vm[idx + 1:]
    def wait_lg(s, *tags):
        idxs = [i for i, t in enumerate(s.lg) if t in tags]
        if not idxs: return
        idx = max(idxs); n = len(s.lg) - 1 - idx
        s.e(f"s_waitcnt lgkmcnt({n})"); s.lg = s.lg[idx + 1:]
    def wait_lg0(s): s.e("s_waitcnt lgkmcnt(0)"); s.lg = []
    def stamp(s, name):
        if s.cfg.probe and name == "start": s.e("s_memrealtime s[76:77]")
        if s.cfg.probe == name: s.e("s_memrealtime s[78:79]")
        if s.cfg.prof == 2:
            k = s.nstamp; assert k < 64
            if k >= 4: s.e(f"v_writelane_b32 v47, s{76+2*((k-4)%8)}, {k-4}")
            r = 76 + 2 * (k % 8)
            if s.cfg.both:
                if name not in s.cfg.stamps: return
                s.e(f"s_memtime s[{r}:{r+1}] ; {name}"); s.nstamp += 1; s.names.append(name)
                k = s.nstamp
                if k >= 4: s.e(f"v_writelane_b32 v47, s{76+2*((k-4)%8)}, {k-4}")
                r = 76 + 2 * (k % 8)
                s.e(f"s_memrealtime s[{r}:{r+1}] ; {name}"); s.nstamp += 1; s.names.append(name + "_rt")
                return
            s.e(f"s_memtime s[{r}:{r+1}] ; {name}"); s.nstamp += 1; s.names.append(name)
        elif s.cfg.prof and name in s.cfg.stamps:
            r = 76 + 2 * s.nstamp; assert r + 1 < 100
            s.e(f"s_memtime s[{r}:{r+1}] ; {name}"); s.nstamp += 1

SX, SW2, SDBG, SWS, SW1, SOUT = "s[16:19]", "s[20:23]", "s[24:27]", "s[32:35]", "s[36:39]", "s[40:43]"
WSB = "s[32:33]"; sNON = "s[70:71]"
sW, sB1, sJ1, sB2, sJ2, sFW = "s44", "s28", "s29", "s30", "s31", "s45"
sXB, sFH, sKS, sT0, sT1, sT2, sM0 = "s46", "s47", "s48", "s49", "s50", "s51", "s52"
sHST, sTP, sCNT, sP0A, sPWA, sTD, sOUT = "s53", "s54", "s55", "s56", "s57", "s58", "s59"
sDA, sPH, sT3 = "s0", "s1", "s3"
KW = 60
vL = "v1"; vX = ["v2", "v3"]; vW = ["v4", "v5"]; vP0 = "v6"; vL16 = "v7"
vRX = [[8, 9, 10, 11], [12, 13, 14, 15]]; vRW = [16, 17]
vHST, vOUT, vTW, vTR, vT0, vT1, vT2 = "v18", "v19", "v20", "v21", "v22", "v23", "v24"
vRDW = ["v25", "v26", "v27"]; vRDR, vP0R, vW2A, vW2B = "v28", "v29", "v30", "v31"
vH = ["v32", "v33", "v34", "v35"]; NON = 36; vOUT2 = ["v38", "v39", "v40"]; vDUM = "v41"
ACC1 = 48; XR = 80; WF = 224; HB = 80; NHB = 24; ACC2 = 176
def vr(a, n): return f"v[{a}:{a+n-1}]"
def xreg(n): return vr(XR + 4 * n, 4) if n < 36 else f"a[{240+4*(n-36)}:{240+4*(n-36)+3}]"

def gen(cfg):
    g = G(cfg); e = g.e
    R = 8; LA = cfg.LA; NST = 20; SLOT = 16384
    LDS_P0 = R * SLOT
    lds_bytes = LDS_P0 + 8192
    LDS_T = 65536
    def mod3(dst, src, tmp):
        e(f"s_mul_i32 {tmp}, {src}, 86"); e(f"s_lshr_b32 {tmp}, {tmp}, 8"); e(f"s_mul_i32 {tmp}, {tmp}, 3"); e(f"s_sub_u32 {dst}, {src}, {tmp}")
    e("s_cmp_ge_u32 s2, 256"); e("s_cbranch_scc1 Lend")
    e("s_load_dwordx4 s[4:7], s[0:1], 0"); e("s_load_dwordx4 s[8:11], s[0:1], 16"); e("s_load_dwordx4 s[12:15], s[0:1], 32")
    e("s_memrealtime s[100:101]")
    g.stamp("start")
    if cfg.probe == "karg": e("s_waitcnt lgkmcnt(0)"); g.stamp("karg")
    if cfg.prof: e("s_memrealtime s[72:73]")
    e(f"v_lshrrev_b32 {vT0}, 6, v0"); e(f"v_and_b32 {vL}, 63, v0"); e(f"s_and_b32 {sT0}, s2, 7"); e(f"v_readfirstlane_b32 {sW}, {vT0}")
    e(f"s_lshr_b32 {sT1}, s2, 3")
    def part(kind, sb, sj):
        if kind == "A":
            e(f"s_lshl_b32 {sb}, {sT0}, 2"); e(f"s_lshr_b32 {sT2}, {sT1}, 3"); e(f"s_add_u32 {sb}, {sb}, {sT2}"); e(f"s_and_b32 {sj}, {sT1}, 7")
        else:
            e(f"s_lshr_b32 {sb}, {sT0}, 1"); e(f"s_lshl_b32 {sb}, {sb}, 3"); e(f"s_lshr_b32 {sT2}, {sT1}, 2"); e(f"s_add_u32 {sb}, {sb}, {sT2}")
            e(f"s_and_b32 {sj}, {sT0}, 1"); e(f"s_lshl_b32 {sj}, {sj}, 2"); e(f"s_and_b32 {sT2}, {sT1}, 3"); e(f"s_add_u32 {sj}, {sj}, {sT2}")
    part(cfg.p1, sB1, sJ1)
    def t0_of(dst, band):
        if cfg.trot: e(f"s_lshr_b32 {dst}, {band}, {cfg.tsh}"); mod3(dst, dst, sT2)
        else: e(f"s_mov_b32 {dst}, 0")
    t0_of(sTD, sB1)
    if cfg.r1 > 1:
        e(f"s_add_u32 {sKS}, {sB1}, {sJ1}"); e(f"s_and_b32 {sKS}, {sKS}, {cfg.r1-1}"); e(f"s_mul_i32 {sKS}, {sKS}, 10"); e(f"s_lshr_b32 {sKS}, {sKS}, {cfg.r1.bit_length()-1}")
    else: e(f"s_mov_b32 {sKS}, 0")
    e(f"s_mul_i32 {sXB}, {sB1}, {64*1280}"); e(f"s_mul_i32 {sT3}, {sJ1}, 384"); e(f"s_mov_b32 {sTP}, {sTD}")
    e(f"s_lshl_b32 {sT2}, {sTD}, 7"); e(f"s_add_u32 {sT3}, {sT3}, {sT2}")
    e(f"s_lshl_b32 {sM0}, {sW}, 11")
    e(f"v_lshrrev_b32 {vT0}, 3, {vL}"); e(f"s_lshl_b32 {sT2}, {sW}, 4"); e(f"v_add_u32 {vT0}, {sT2}, {vT0}")
    e(f"v_mul_u32_u24 {vP0}, 1280, {vT0}"); e(f"v_mul_u32_u24 {vW[1]}, 3072, {vT0}")
    e(f"v_and_b32 {vT1}, 7, {vL}"); e(f"v_lshrrev_b32 {vT2}, 4, {vL}"); e(f"v_xor_b32 {vT0}, {vT1}, {vT2}")
    e(f"v_lshl_add_u32 {vX[0]}, {vT0}, 4, {vP0}")
    e(f"v_xor_b32 {vT0}, 4, {vT0}"); e(f"v_lshl_add_u32 {vX[1]}, {vT0}, 4, {vP0}"); e(f"v_add_u32 {vX[1]}, {8*1280-1024}, {vX[1]}")
    e(f"v_lshl_add_u32 {vP0}, {vT1}, 4, {vP0}")
    e(f"v_and_b32 {vT2}, 1, {vT2}"); e(f"v_lshlrev_b32 {vT2}, 2, {vT2}"); e(f"v_xor_b32 {vT1}, {vT1}, {vT2}")
    e(f"v_add_u32 {vW[1]}, {sT3}, {vW[1]}")
    e(f"v_lshl_add_u32 {vW[0]}, {vT1}, 4, {vW[1]}"); e(f"v_add_u32 {vW[1]}, {8*3072-1024}, {vW[0]}")
    for srd, n in ((16, 2621440), (36, 1966080), (20, 1966080), (24, 256)):
        e(f"s_mov_b32 s{srd+2}, {n}"); e(f"s_mov_b32 s{srd+3}, 0x00020000")
    e(f"s_lshl_b32 {sFH}, {sB1}, 3"); e(f"s_add_u32 {sFH}, {sFH}, {sJ1}")
    e(f"s_sub_u32 {sHST}, {sFH}, 16"); e(f"s_cmp_lt_u32 {sFH}, 240"); e(f"s_cselect_b32 {sHST}, {sFH}, {sHST}")
    e(f"s_mul_i32 {sPWA}, {sHST}, 2731"); e(f"s_lshr_b32 {sPWA}, {sPWA}, 16")
    e(f"s_mul_i32 {sT2}, {sPWA}, 24"); e(f"s_sub_u32 {sHST}, {sHST}, {sT2}")
    e(f"s_mul_i32 {sT2}, {sHST}, {64*1280}"); e(f"s_lshl_b32 {sP0A}, {sPWA}, 7"); e(f"s_add_u32 {sP0A}, {sP0A}, {sT2}")
    def p0_loads():
        e(f"s_add_u32 m0, {sM0}, {LDS_P0}"); e(f"s_add_u32 {sT2}, {sP0A}, {8*1280-1024}")
        if cfg.xp0ld: return
        g.vmem(f"buffer_load_dwordx4 {vP0}, {SW2}, {sP0A} offen lds", "p0")
        g.vmem(f"buffer_load_dwordx4 {vP0}, {SW2}, {sT2} offen offset:1024 lds", "p0")
    g.stamp("prew")
    e("s_waitcnt lgkmcnt(0)")
    for srd, p in ((16, 4), (36, 6), (20, 8)): e(f"s_mov_b64 s[{srd}:{srd+1}], s[{p}:{p+1}]")
    e("s_mov_b64 s[24:25], s[12:13]")
    e(f"s_or_b32 {sT2}, s2, {sW}"); e("s_cbranch_scc1 Lnn")
    e("s_bitset1_b32 s101, 31"); e(f"v_mov_b32 v{NON}, s100"); e(f"v_mov_b32 v{NON+1}, s101")
    e("s_mov_b64 exec, 1"); e(f"buffer_store_dwordx2 {vr(NON,2)}, off, {SDBG}, 0 sc1"); e("s_mov_b64 exec, -1")
    g.label("Lnn")
    g.stamp("srd")
    adv = [f"s_add_u32 {sKS}, {sKS}, 1", f"s_cmp_eq_u32 {sKS}, 10", f"s_cselect_b32 {sKS}, 0, {sKS}"]
    def wchunk(base, tag, c, pre):
        return [(pre + [f"s_add_u32 m0, {sM0}, {base}", "s_nop 0"], f"buffer_load_dwordx4 {vW[0]}, {SW1}, s{KW+c} offen lds", tag),
                ([], f"buffer_load_dwordx4 {vW[1]}, {SW1}, s{KW+c} offen offset:1024 lds", tag)]
    nextpass = [f"s_add_u32 {sTD}, {sTD}, 1", f"s_cmp_eq_u32 {sTD}, 3", f"s_cselect_b32 {sTD}, 0, {sTD}", f"s_cselect_b32 {sT3}, -2, 1", f"s_lshl_b32 {sT3}, {sT3}, 7",
                f"v_add_u32 {vW[0]}, {sT3}, {vW[0]}", f"v_add_u32 {vW[1]}, {sT3}, {vW[1]}"]
    def dma_groups(s):
        slot = (s % R) * SLOT; tag = f"st{s}"
        if s < 10:
            return [([f"s_lshl_b32 {sDA}, {sKS}, 7", f"s_add_u32 m0, {sM0}, {slot}", f"s_add_u32 {sDA}, {sDA}, {sXB}"], f"buffer_load_dwordx4 {vX[0]}, {SX}, {sDA} offen lds", tag),
                    ([f"s_mul_i32 s{KW+s}, {sKS}, {64*3072}"], f"buffer_load_dwordx4 {vX[1]}, {SX}, {sDA} offen offset:1024 lds", tag)] + wchunk(slot + 8192, tag, s, adv)
        c = 2 * ((s - 10) % 5)
        return wchunk(slot, tag, c, nextpass if c == 0 else []) + wchunk(slot + 8192, tag, c + 1, [])
    def issue(gr):
        for t in gr[0]: e(t)
        g.vmem(gr[1], gr[2])
    NPRO = min(cfg.npro, LA)
    if cfg.xcold:
        e("s_mov_b64 s[32:33], s[14:15]"); e(f"s_mov_b32 s34, {WS_USED}"); e("s_mov_b32 s35, 0x00020000")
        e(f"s_lshl_b32 {sT2}, s2, 2"); e(f"s_add_u32 {sT2}, {sT2}, {sW}"); e(f"s_lshl_b32 {sT2}, {sT2}, 16"); e(f"s_add_u32 {sT2}, {sT2}, 0x4000000")
        e(f"v_lshlrev_b32 {vL16}, 4, {vL}")
        for i in range(cfg.xcold):
            e(f"buffer_load_dwordx4 v[80:83], {vL16}, {SWS}, {sT2} offen"); e(f"s_add_u32 {sT2}, {sT2}, 1024")
        e("s_waitcnt vmcnt(0)")
    if cfg.xhit:
        pass
    if cfg.p0first: p0_loads()
    for s in range(NPRO): [issue(gr) for gr in dma_groups(s)]
    g.stamp("iss")
    for srd, p, n in ((40, 10, 2621440), (32, 14, WS_USED)):
        e(f"s_mov_b64 s[{srd}:{srd+1}], s[{p}:{p+1}]"); e(f"s_mov_b32 s{srd+2}, {n}"); e(f"s_mov_b32 s{srd+3}, 0x00020000")
    if cfg.cpf:
        e("s_getpc_b64 s[100:101]"); e(f"s_lshl_b32 {sT2}, {sT1}, 2"); e(f"s_add_u32 {sT2}, {sT2}, {sW}"); e(f"s_lshl_b32 {sT2}, {sT2}, 7")
        e(f"s_min_u32 {sT2}, {sT2}, CODE_END_PF"); e(f"s_add_u32 s100, s100, {sT2}"); e("s_addc_u32 s101, s101, 0"); e("s_load_dword s101, s[100:101], 0")
        g.label("Lpc")
    part(cfg.p2, sB2, sJ2)
    if not cfg.p0first: p0_loads()
    e(f"s_mov_b32 {sT0}, {sHST}"); e(f"s_mov_b32 {sT1}, {sPWA}"); e(f"s_mov_b32 {sT3}, {sFH}")
    e(f"s_mul_i32 {sT2}, {sT0}, 43"); e(f"s_lshr_b32 {sT2}, {sT2}, 8")
    e(f"s_lshl_b32 {sFW}, {sT1}, 2"); e(f"s_add_u32 {sFW}, {sFW}, {sT2}"); e(f"s_lshl_b32 {sFW}, {sFW}, 5")
    e(f"s_mul_i32 {sT2}, {sT2}, 6"); e(f"s_sub_u32 {sT2}, {sT0}, {sT2}"); e(f"s_add_u32 {sFW}, {sFW}, {sT2}"); e(f"s_lshl_b32 {sFW}, {sFW}, 2")
    e(f"s_sub_u32 {sT2}, {sT3}, 200"); e(f"s_lshl_b32 {sT2}, {sT2}, 7"); e(f"s_cmp_lt_u32 {sT3}, 240"); e(f"s_cselect_b32 {sFW}, {sFW}, {sT2}")
    e(f"s_add_u32 {sFW}, {sFW}, {FW_OFF}")
    e(f"s_lshl_b32 {sT1}, {sT1}, 2"); e(f"s_add_u32 {sT1}, {sT1}, {sW}")
    e(f"s_mul_i32 {sT2}, {sT1}, 52"); e(f"s_lshr_b32 {sT2}, {sT2}, 8")
    e(f"s_mul_i32 {sP0A}, {sT2}, 235"); e(f"s_add_u32 {sP0A}, {sP0A}, {sT1}")
    e(f"s_mul_i32 {sT2}, {sT0}, 10"); e(f"s_add_u32 {sP0A}, {sP0A}, {sT2}")
    e(f"s_lshl_b32 {sP0A}, {sP0A}, 10"); e(f"s_add_u32 {sP0A}, {sP0A}, {W2P_OFF}")
    e(f"s_lshr_b32 {sFH}, {sT3}, 1"); e(f"s_lshl_b32 {sFH}, {sFH}, 7"); e(f"s_and_b32 {sT2}, {sJ1}, 1"); e(f"s_lshl_b32 {sT2}, {sT2}, 3")
    e(f"s_add_u32 {sFH}, {sFH}, {sT2}"); e(f"s_add_u32 {sFH}, {sFH}, {FH_OFF}")
    e(f"v_lshlrev_b32 {vL16}, 4, {vL}")
    e(f"s_lshl_b32 {sOUT}, {sB2}, 2"); e(f"s_add_u32 {sOUT}, {sOUT}, {sW}"); e(f"s_mul_i32 {sOUT}, {sOUT}, {16*1280}")
    e(f"s_mul_i32 {sT2}, {sJ2}, 160"); e(f"s_add_u32 {sOUT}, {sOUT}, {sT2}")
    if cfg.warm:
        e("s_mov_b64 exec, 1")
        g.vmem(f"buffer_load_dword {vDUM}, off, {SOUT}, {sOUT}", "warm")
        e(f"s_lshl_b32 {sT2}, {sB1}, 18"); e(f"s_add_u32 {sT2}, {sT2}, {200<<10}")
        g.vmem(f"buffer_load_dword {vDUM}, off, {SWS}, {sT2}", "warm")
        e(f"s_mov_b32 {sT2}, {FH_OFF + 32768}")
        g.vmem(f"buffer_load_dword {vDUM}, off, {SWS}, {sT2}", "warm")
        if cfg.p1 != cfg.p2:
            e(f"s_lshl_b32 {sT2}, {sB2}, 18"); e(f"s_add_u32 {sT2}, {sT2}, {200<<10}")
            g.vmem(f"buffer_load_dword {vDUM}, off, {SWS}, {sT2}", "warm")
        e("s_mov_b64 exec, -1")
    e(f"s_and_b32 {sT0}, {sW}, 1"); e(f"s_lshr_b32 {sT1}, {sW}, 1")
    e(f"v_and_b32 {vT0}, 31, {vL}"); e(f"s_lshl_b32 {sT2}, {sT0}, 5"); e(f"v_add_u32 {vT0}, {sT2}, {vT0}"); e(f"v_lshlrev_b32 {vT0}, 7, {vT0}")
    e(f"v_bfe_u32 {vT1}, {vL}, 1, 3"); e(f"v_lshrrev_b32 {vT2}, 5, {vL}"); e(f"v_xor_b32 {vT1}, {vT1}, {vT2}")
    e(f"v_lshl_add_u32 v{vRX[0][0]}, {vT1}, 4, {vT0}")
    for q in range(1, 4): e(f"v_xor_b32 v{vRX[0][q]}, {32*q}, v{vRX[0][0]}")
    for q in range(4): e(f"v_add_u32 v{vRX[1][q]}, 0x10000, v{vRX[0][q]}")
    e(f"v_lshrrev_b32 {vT0}, 5, {vL}"); e(f"v_lshlrev_b32 {vT0}, 3, {vT0}"); e(f"v_bfe_u32 {vT1}, {vL}, 2, 2"); e(f"v_add_u32 {vT0}, {vT0}, {vT1}")
    e(f"v_lshlrev_b32 {vT0}, 7, {vT0}")
    e(f"v_bfe_u32 {vT1}, {vL}, 4, 1"); e(f"v_lshl_add_u32 {vT0}, {vT1}, 5, {vT0}")
    e(f"v_and_b32 {vT1}, 1, {vL}"); e(f"v_lshl_add_u32 {vT0}, {vT1}, 4, {vT0}")
    e(f"v_bfe_u32 {vT1}, {vL}, 1, 1"); e(f"v_lshl_add_u32 {vT0}, {vT1}, 3, {vT0}")
    e(f"v_bfe_u32 {vT1}, {vL}, 3, 1"); e(f"v_xor_b32 {vT1}, {sT1}, {vT1}"); e(f"v_lshl_add_u32 v{vRW[0]}, {vT1}, 6, {vT0}")
    e(f"v_add_u32 v{vRW[1]}, 0x10000, v{vRW[0]}")
    e(f"v_bfe_u32 {vT0}, {vL}, 4, 1"); e(f"v_mul_u32_u24 {vT0}, 49152, {vT0}"); e(f"v_and_b32 {vT1}, 15, {vL}"); e(f"v_lshl_add_u32 {vT0}, {vT1}, 4, {vT0}")
    e(f"v_lshrrev_b32 {vT1}, 5, {vL}"); e(f"v_lshl_add_u32 {vHST}, {vT1}, 8, {vT0}")
    e(f"s_lshl_b32 {sHST}, {sB1}, 8"); e(f"s_mul_i32 {sT2}, {sT0}, 96"); e(f"s_add_u32 {sHST}, {sHST}, {sT2}")
    e(f"s_mul_i32 {sT2}, {sJ1}, 6"); e(f"s_add_u32 {sHST}, {sHST}, {sT2}"); e(f"s_add_u32 {sHST}, {sHST}, {sT1}")
    e(f"s_lshl_b32 {sHST}, {sHST}, 10")
    e(f"v_lshrrev_b32 {vT0}, 4, {vL}"); e(f"v_lshlrev_b32 {vT0}, 3, {vT0}"); e(f"v_bfe_u32 {vT1}, {vL}, 2, 2"); e(f"v_add_u32 {vT0}, {vT0}, {vT1}")
    e(f"v_lshlrev_b32 {vT0}, 7, {vT0}"); e(f"v_and_b32 {vT1}, 3, {vL}"); e(f"v_lshl_add_u32 {vT0}, {vT1}, 3, {vT0}")
    e(f"s_lshl_b32 {sT2}, {sW}, 5"); e(f"s_add_u32 {sT2}, {sT2}, {LDS_P0}"); e(f"v_add_u32 {vP0R}, {sT2}, {vT0}")
    for s in range(NPRO, min(LA, cfg.npro2)): [issue(gr) for gr in dma_groups(s)]
    e(f"s_mul_i32 {sPWA}, {sJ2}, 5"); e(f"s_lshr_b32 {sPWA}, {sPWA}, 2"); e(f"s_lshl_b32 {sPWA}, {sPWA}, 2"); e(f"s_add_u32 {sPWA}, {sPWA}, {sW}")
    e(f"s_lshl_b32 {sPWA}, {sPWA}, 7"); e(f"s_add_u32 {sPWA}, {sPWA}, {FW_OFF}")
    e(f"s_lshl_b32 {sPH}, {sB2}, 2"); e(f"s_add_u32 {sPH}, {sPH}, {sW}"); e(f"s_lshl_b32 {sPH}, {sPH}, 7"); e(f"s_add_u32 {sPH}, {sPH}, {FH_OFF}")
    for i in range(4):
        e(f"s_add_u32 {sT0}, {sW}, {1+i}"); e(f"s_and_b32 {sT0}, {sT0}, 3")
        if i < 3:
            e(f"s_mul_i32 {sT2}, {sT0}, {3*5120}"); e(f"s_add_u32 {sT2}, {sT2}, {i*5120}"); e(f"v_add_u32 {vRDW[i]}, {sT2}, {vL16}")
        e(f"s_lshl_b32 {sT1}, {sB2}, 8"); e(f"s_mul_i32 {sT2}, {sT0}, 48"); e(f"s_add_u32 {sT1}, {sT1}, {sT2}")
        e(f"s_mul_i32 {sT2}, {sW}, 12"); e(f"s_add_u32 {sT1}, {sT1}, {sT2}"); e(f"s_lshl_b32 {sT1}, {sT1}, 10")
        e(f"v_add_u32 {vH[i]}, {sT1}, {vL16}")
    e(f"s_mul_i32 {sT2}, {sW}, {3*5120}"); e(f"v_add_u32 {vRDR}, {sT2}, {vL16}")
    e(f"s_mul_i32 {sT2}, {sW}, 2816"); e(f"s_add_u32 {sT2}, {sT2}, {LDS_T}")
    e(f"v_and_b32 {vT0}, 15, {vL}"); e(f"v_mul_u32_u24 {vT0}, 176, {vT0}"); e(f"v_lshrrev_b32 {vT1}, 4, {vL}"); e(f"v_lshl_add_u32 {vT0}, {vT1}, 3, {vT0}")
    e(f"v_add_u32 {vTW}, {sT2}, {vT0}")
    vTRs = [vTR, vOUT, vDUM]
    for i in range(3):
        e(f"v_add_u32 {vT0}, {64*i}, {vL}"); e(f"v_mul_u32_u24 {vT1}, 205, {vT0}"); e(f"v_lshrrev_b32 {vT1}, 11, {vT1}")
        e(f"v_mul_u32_u24 {vT2}, 10, {vT1}"); e(f"v_sub_u32 {vT0}, {vT0}, {vT2}"); e(f"v_lshlrev_b32 {vT0}, 4, {vT0}")
        e(f"v_mul_u32_u24 {vT2}, 1280, {vT1}"); e(f"v_add_u32 {vOUT2[i]}, {vT2}, {vT0}")
        e(f"v_mul_u32_u24 {vT2}, 176, {vT1}"); e(f"v_add3_u32 v{42+i}, {vT2}, {vT0}, {sT2}")
    e(f"s_lshl_b32 {sT0}, {sJ2}, 2"); e(f"s_add_u32 {sT0}, {sT0}, {sW}"); e(f"s_mul_i32 {sT0}, {sT0}, {60*1024}"); e(f"s_add_u32 {sT0}, {sT0}, {W2P_OFF}")
    e(f"v_add_u32 {vW2A}, {sT0}, {vL16}"); e(f"v_add_u32 {vW2B}, 4096, {vW2A}")
    t0_of(sT0, sB2)
    if cfg.rk == 0: e(f"s_mov_b32 {sT1}, 0")
    elif cfg.rk == 1: e(f"s_and_b32 {sT1}, {sB2}, 1"); e(f"s_lshl_b32 {sT1}, {sT1}, 1")
    elif cfg.rk == 2: e(f"s_and_b32 {sT1}, {sB2}, 1"); e(f"s_lshl_b32 {sT1}, {sT1}, 1"); e(f"s_add_u32 {sT1}, {sT1}, {sJ2}")
    elif cfg.rk == 3: e(f"s_add_u32 {sT1}, {sB2}, {sJ2}"); e(f"s_lshl_b32 {sT1}, {sT1}, 1")
    for kk in range(4):
        e(f"s_add_u32 {sT2}, {sT1}, {kk}"); e(f"s_and_b32 {sCNT}, {sT2}, 1"); e(f"s_bfe_u32 {sT2}, {sT2}, 0x10001"); e(f"s_mul_i32 {sT2}, {sT2}, 6")
        e(f"s_add_u32 {sT2}, {sT2}, {sCNT}"); e(f"s_lshl_b32 s{4+kk}, {sT2}, 10")
    for p in (2, 1, 0):
        e(f"s_add_u32 {sT2}, {sT0}, {p}"); e(f"s_sub_u32 {sCNT}, {sT2}, 3"); e(f"s_cmp_ge_u32 {sT2}, 3"); e(f"s_cselect_b32 {sT2}, {sCNT}, {sT2}"); e(f"s_lshl_b32 {sT2}, {sT2}, 11")
        for kk in range(4): e(f"s_add_u32 s{4+4*p+kk}, s{4+kk}, {sT2}")
    pend = []
    for s in range(max(NPRO, min(LA, cfg.npro2)), LA): pend.extend(dma_groups(s))

    g.stamp("setup")
    def flag_store(name, sreg, off, wide):
        e(f"s_cmp_lg_u32 {sW}, 0"); e(f"s_cbranch_scc1 L{name}")
        e("s_mov_b64 exec, 1")
        if wide: e(f"buffer_store_dwordx2 {vr(NON,2)}, off, {SWS}, {sreg} offset:{off} sc1")
        else: e(f"buffer_store_dword v{NON}, off, {SWS}, {sreg} sc1")
        e("s_mov_b64 exec, -1")
        g.label(f"L{name}")
    ld_non = f"buffer_load_dwordx2 {vr(NON,2)}, off, {SDBG}, 0 sc1"; cmp_non = f"v_cmp_eq_u32 vcc, 0, v{NON+1}"
    def spin_non():
        e(cmp_non); e(f"s_mov_b32 {sCNT}, 0"); e("s_nop 0"); e(f"s_cbranch_vccz Lnon_ok")
        g.label("Lnon")
        e(f"s_sleep {cfg.sleep}"); e(ld_non); e("s_waitcnt vmcnt(0)"); e(cmp_non)
        e(f"s_add_u32 {sCNT}, {sCNT}, 1"); e(f"s_cmp_gt_u32 {sCNT}, 200000"); e(f"s_cbranch_scc1 Lnon_ok")
        e(f"s_cbranch_vccnz Lnon")
        g.label("Lnon_ok")
        e(f"v_readfirstlane_b32 s70, v{NON}"); e(f"v_readfirstlane_b32 s71, v{NON+1}")
    ld_pw = f"s_load_dwordx8 s[16:23], {WSB}, {sPWA} glc\n    s_load_dwordx8 s[24:31], {WSB}, {sPWA} offset:512 glc"
    def s_check(name, reload, test):
        g.wait_lg0(); e(f"s_mov_b32 {sCNT}, 0")
        g.label(f"L{name}")
        test(); e(f"s_cbranch_scc1 L{name}_ok")
        e(f"s_sleep {cfg.sleep}"); e(reload); e("s_waitcnt lgkmcnt(0)")
        e(f"s_add_u32 {sCNT}, {sCNT}, 1"); e(f"s_cmp_lt_u32 {sCNT}, 400000"); e(f"s_cbranch_scc1 L{name}")
        g.label(f"L{name}_ok")
    def test_pw():
        e("s_xor_b64 s[16:17], s[16:17], s[18:19]"); e("s_xor_b64 s[18:19], s[18:19], s[20:21]"); e("s_xor_b64 s[22:23], s[20:21], s[24:25]")
        e("s_xor_b64 s[24:25], s[24:25], s[26:27]"); e("s_xor_b64 s[26:27], s[26:27], s[28:29]"); e("s_xor_b32 s30, s28, s29"); e("s_xor_b32 s31, s28, s70")
        e("s_or_b64 s[16:17], s[16:17], s[18:19]"); e("s_or_b64 s[22:23], s[22:23], s[24:25]"); e("s_or_b64 s[26:27], s[26:27], s[30:31]")
        e("s_or_b64 s[16:17], s[16:17], s[22:23]"); e("s_or_b64 s[16:17], s[16:17], s[26:27]"); e("s_cmp_eq_u64 s[16:17], 0")
    def test_ph():
        e(f"s_xor_b64 s[16:17], s[16:17], {sNON}"); e(f"s_xor_b64 s[18:19], s[18:19], {sNON}"); e("s_or_b64 s[16:17], s[16:17], s[18:19]"); e("s_cmp_eq_u64 s[16:17], 0")
    ld_ph = f"s_load_dwordx4 s[16:19], {WSB}, {sPH} glc"

    def wblk(s):
        out = []
        for t in range(5):
            a = 4 * (5 * s + t)
            pre = [f"s_mul_i32 {sXB}, s{4+s}, 5"] if t == 0 else []
            if t < 4: out.append(("W", pre, f"buffer_load_dwordx4 a[{a}:{a+3}], {vW2A}, {SWS}, {sXB} offen offset:{1024*t} sc1", f"w{s}"))
            else: out.append(("W", pre, f"buffer_load_dwordx4 a[{a}:{a+3}], {vW2B}, {SWS}, {sXB} offen sc1", f"w{s}"))
        return out
    stream = []; groups = []
    for s in range(cfg.lead): stream += wblk(s)
    for s in range(8):
        for i in range(4): stream.append(("H", s, i)); groups.append((s, i))
        if s + cfg.lead < 12: stream += wblk(s + cfg.lead)
    for i in range(4):
        for s in range(8, 12): stream.append(("H", s, i)); groups.append((s, i))
    for p in (2, 1, 0):
        idx = stream.index(("H", 4 * p, 0))
        stream.insert(idx, ("C", p))
        stream.insert(max(0, idx - (cfg.pd if p else cfg.pd0)), ("P", p))
    hbuf = {}; hcount = [0]
    def stream_issue(allow_h=True):
        it = stream[0]
        if it[0] == "W":
            stream.pop(0)
            for t in it[1]: e(t)
            g.vmem(it[2], it[3]); return True
        if it[0] == "P" and not allow_h and cfg.holdp:
            if len(stream) > 1 and stream[1][0] == "W":
                stream[0], stream[1] = stream[1], stream[0]
                return stream_issue(allow_h)
            return False
        if it[0] == "P":
            stream.pop(0)
            if it[1]: e(f"s_add_u32 {sPH}, {sPH}, 16")
            e(ld_ph); g.lgmax = 13
            return stream_issue(allow_h)
        if not allow_h: return False
        if it[0] == "C":
            stream.pop(0); g.stamp(f"c{it[1]}a"); s_check(f"ph{it[1]}", ld_ph, test_ph); g.stamp(f"c{it[1]}b"); return stream_issue()
        _, s, i = stream.pop(0)
        while hcount[0] % NHB in hbuf.values(): hcount[0] += 1
        b = hcount[0] % NHB; hcount[0] += 1
        hbuf[(s, i)] = b
        g.vmem(f"buffer_load_dwordx4 {vr(HB+4*b,4)}, {vH[i]}, {SWS}, s{4+s} offen sc1", f"h{s}_{i}")
        return True

    NSTEP = 120
    def stage_of(n): return n // 4 if n < 40 else 10 + (n - 40) // 8
    def first_step(s): return 4 * s if s < 10 else 40 + 8 * (s - 10)
    def last_step(s): return first_step(s + 1) - 1
    def DD(n): return cfg.d0 if n < 40 else cfg.d1
    def reads(n):
        s = stage_of(n); slot = s % R; hi = slot >> 2; base = (slot & 3) * SLOT
        q = n % 4; out = []
        if n < 40:
            out.append(f"ds_read_b128 {xreg(n)}, v{vRX[hi][q]} offset:{base}"); wb = base + 8192
        else: wb = base + 8192 * (((n - 40) % 8) // 4)
        for half in range(2):
            out.append(f"ds_read_b64_tr_b16 {vr(WF+4*(n%8)+2*half,2)}, v{vRW[hi]} offset:{wb+(16*q+4*half)*128}")
        return out
    w2_ok = [False]; early = [cfg.n0]; done_step = [-1]; flagged = set(); issued_tags = set()
    def barrier(s):
        tags = [f"st{s}"]
        if s == cfg.p0s: tags.append("p0")
        if s == cfg.flagw: tags += ["p0st"]
        for p in (0, 1):
            if s == cfg.fh[p]: tags.append(f"hst{p}")
        while pend and int(pend[0][2][2:]) <= s: issue(pend.pop(0))
        g.wait_vm(*tags)
        e("s_barrier")
        g.stamp(f"b{s}")
        if s == cfg.p0s:
            for kk in range(2):
                for half in range(2): g.lds(f"ds_read_b64_tr_b16 {vr(ACC1+16+4*kk+2*half,2)}, {vP0R} offset:{half*512+kk*4096}", "p0r")
            e(f"s_add_u32 {sT0}, {sP0A}, 5120")
            g.wait_lg("p0r")
            if not cfg.xp0st:
                g.vmem(f"buffer_store_dwordx4 {vr(ACC1+16,4)}, {vL16}, {SWS}, {sP0A} offen sc1", "p0st")
                g.vmem(f"buffer_store_dwordx4 {vr(ACC1+20,4)}, {vL16}, {SWS}, {sT0} offen sc1", "p0st")
        if s == cfg.nons: e(f"s_load_dwordx2 {sNON}, s[24:25], 0"); g.lgmax = 13
        if s == cfg.nons + 2:
            s_check("non", f"s_load_dwordx2 {sNON}, s[24:25], 0 glc", lambda: e("s_cmp_lg_u32 s71, 0")); g.lgmax = 15
            e(f"v_mov_b32 v{NON}, s70"); e(f"v_mov_b32 v{NON+1}, s71")
        if s == cfg.flagw: assert cfg.nons + 2 <= s; flag_store("nf1", sFW, 0, False)
        if s == cfg.pollw: assert not any(int(x[2][2:]) < 10 for x in pend) and s + LA > 10 and s > cfg.flagw; e(ld_pw.replace(' glc', '') if cfg.pwc else ld_pw); g.lgmax = 11
        if s == cfg.pollw + cfg.pgap:
            g.stamp("pwa"); s_check("pw", ld_pw, test_pw); w2_ok[0] = True; g.lgmax = 15; g.stamp("pwb")
        for p in (0, 1):
            if s == cfg.fh[p]: assert f"hst{p}" in issued_tags; flag_store(f"nh{p}", sFH, 16 * p, True); flagged.add(p)
        ns = s + LA
        if ns < NST:
            old = ns - R
            assert old < 0 or last_step(old) <= done_step[0], (s, old, done_step[0])
            pend.extend(dma_groups(ns))
    def slot_issue():
        if pend: issue(pend.pop(0))
        elif w2_ok[0] and early[0] > 0 and stream_issue(allow_h=False): early[0] -= 1
    def epilogue_ops(p):
        a = ACC1 + 16 * (p & 1); ops = []
        for i in range(8): ops.append(("v", f"v_cvt_pk_bf16_f32 v{a+i}, v{a+2*i}, v{a+2*i+1}"))
        for i in range(8): ops.append(("v", f"v_pk_max_i16 v{a+i}, v{a+i}, 0"))
        ops.append(("v", f"s_lshl_b32 {sT1}, {sTP}, 11")); ops.append(("v", f"s_add_u32 {sT1}, {sT1}, {sHST}"))
        for c in range(2): ops.append(("m", f"buffer_store_dwordx4 {vr(a+4*c,4)}, {vHST}, {SWS}, {sT1} offen offset:{c*512} sc1", f"hst{p}"))
        ops += [("v", f"s_add_u32 {sTP}, {sTP}, 1"), ("v", f"s_cmp_eq_u32 {sTP}, 3\n    s_cselect_b32 {sTP}, 0, {sTP}")]
        return ops
    def run_ops(ops, k):
        for _ in range(k):
            if not ops: return
            o = ops.pop(0)
            if o[0] == "v": e(o[1])
            else: g.vmem(o[1], o[2]); issued_tags.add(o[2])
    nread = [0]
    def issue_reads_upto(m):
        while nread[0] <= min(m, NSTEP - 1):
            n = nread[0]
            assert n - 8 <= done_step[0]
            if n == first_step(stage_of(n)): barrier(stage_of(n))
            for t in reads(n): g.lds(t, f"r{n}")
            nread[0] += 1
    issue_reads_upto(cfg.d0 - 1)
    ep = []
    for n in range(NSTEP):
        p = n // 40
        if n < 40 or not cfg.w2: g.wait_lg(f"r{n}")
        elif n % 2 == 0: g.wait_lg(f"r{n}", f"r{n+1}")
        a = vr(ACC1 + 16 * (p & 1), 16)
        e(f"v_mfma_f32_32x32x16_bf16 {a}, {vr(WF+4*(n%8),4)}, {xreg(n%40)}, {'0' if n % 40 == 0 else a}")
        done_step[0] = n
        tgt = min(n + DD(n + 1), nread[0] + 1)
        while len(g.lg) + sum(len(reads(k)) for k in range(nread[0], min(tgt, NSTEP - 1) + 1)) > g.lgmax: tgt -= 1
        tgt = max(tgt, min(n + 2, NSTEP - 1))
        issue_reads_upto(tgt)
        if n < 40:
            slot_issue()
            if len(pend) > 4: slot_issue()
        elif n % 2 == 1 or len(pend) > 4: slot_issue()
        if n % 40 == 3 and p > 0: ep = epilogue_ops(p - 1)
        run_ops(ep, 2)
    g.stamp("p1end")
    assert not pend and w2_ok[0]
    if stream[0][0] == "P": stream_issue()
    for _ in range(2): stream_issue(allow_h=False)
    e("s_nop 7"); e("s_nop 3")
    ep = epilogue_ops(2); run_ops(ep, 100)
    pos = [0]; hpos = {}
    def emit_group(s, i, extra):
        acc = ACC2 + 20 * i; b = hbuf[(s, i)]
        g.wait_vm(f"h{s}_{i}", f"w{s}")
        for t in range(5):
            a = 4 * (5 * s + t)
            cc = "0" if s == 0 else vr(acc+4*t,4)
            e(f"v_mfma_f32_16x16x32_bf16 {vr(acc+4*t,4)}, a[{a}:{a+3}], {vr(HB+4*b,4)}, {cc}")
            for x in extra[t]: x()
    nafter = 0; first = True
    while stream or groups:
        if stream:
            stream_issue(); pos[0] += 1; nafter += 1
            if pos[0] % 6 == 0: g.stamp(f"q{pos[0]}")
            for k in hbuf:
                if k not in hpos: hpos[k] = pos[0]
            for p, nn in ((1, cfg.n1a), (2, cfg.n1)):
                if p not in flagged and nafter >= nn:
                    g.wait_vm(f"hst{p}"); g.stamp(f"hst{p}"); e("s_barrier"); flag_store(f"nh{p}", sFH, 16 * p, True); flagged.add(p)
        if groups and groups[0] in hpos and (not stream or hpos[groups[0]] <= pos[0] - cfg.depth):
            s, i = groups[0]
            extra = [[] for _ in range(5)]
            W = lambda t, ii: (lambda: g.lds(f"ds_write_b128 {vRDW[ii]}, {vr(ACC2+20*ii+4*t,4)} offset:{1024*t}", "rw"))
            Rd = lambda k, u: (lambda: g.lds(f"ds_read_b128 {vr(ACC2+20*k+4*u,4)}, {vRDR} offset:{5120*k+1024*u}", f"rr{k}"))
            A = lambda r, k: (lambda: e(f"v_add_f32 v{ACC2+r}, v{ACC2+r}, v{ACC2+20*k+r}"))
            if s == 9 and i in (1, 2):
                for t in range(5): extra[t].append(W(t, i - 1))
            if i == 2 and s == 11:
                extra[0].append(lambda: (g.wait_lg0(), e("s_barrier")))
                for q in range(10): extra[q // 2].append(Rd(q // 5, q % 5))
            if i == 3 and s == 8:
                for t in range(5): extra[min(4, t + 2)].append(W(t, 2))
            if i == 3 and s == 9:
                extra[0].append(lambda: g.wait_lg("rr1"))
                for r in range(20): extra[r // 5].append(A(r, 1))
                extra[4].append(lambda: (g.wait_lg0(), e("s_barrier")))
                for u in range(5): extra[4].append(Rd(2, u))
            if i == 3 and s == 11:
                extra[0].append(lambda: g.wait_lg0())
                for r in range(20): extra[r // 4].append(A(r, 2))
            emit_group(s, i, extra)
            groups.pop(0); del hbuf[(s, i)]
            if first: g.stamp("g0"); first = False
            if not stream and len(groups) % 3 == 0: g.stamp(f"G{len(groups)}")
    assert cfg.lead >= 4 and flagged == {0, 1, 2}
    g.stamp("mfend")
    acc = ACC2 + 60; PR = ACC2
    g.wait_lg0()
    for t in range(5):
        if True:
            if t == 0: e("s_nop 3")
            for r in (0, 2): e(f"v_pk_add_f32 {vr(PR+4*t+r,2)}, {vr(PR+4*t+r,2)}, {vr(acc+4*t+r,2)}")
        else:
            for r in range(4): e(f"v_add_f32 v{PR+40+4*t+r}, v{PR+40+4*t+r}, v{acc+4*t+r}"); e(f"v_add_f32 v{PR+4*t+r}, v{PR+4*t+r}, v{PR+40+4*t+r}")
        e(f"v_cvt_pk_bf16_f32 v{PR+20+2*t}, v{PR+4*t}, v{PR+4*t+1}"); e(f"v_cvt_pk_bf16_f32 v{PR+21+2*t}, v{PR+4*t+2}, v{PR+4*t+3}")
        e(f"ds_write_b64 {vTW}, {vr(PR+20+2*t,2)} offset:{32*t}")
    e("s_waitcnt lgkmcnt(0)")
    for i in range(3): e(f"ds_read_b128 {vr(PR+40+4*i,4)}, v{42+i}")
    for i in range(3):
        e(f"s_waitcnt lgkmcnt({2-i})")
        if i == 2: e("s_mov_b32 exec_hi, 0")
        e(f"buffer_store_dwordx4 {vr(PR+40+4*i,4)}, {vOUT2[i]}, {SOUT}, {sOUT} offen {cfg.outsc}")
    if cfg.prof:
        e("s_waitcnt vmcnt(0)"); g.stamp("end"); e("s_memrealtime s[74:75]"); e("s_waitcnt lgkmcnt(0)")
        e(f"s_lshl_b32 {sT0}, s2, 2"); e(f"s_add_u32 {sT0}, {sT0}, {sW}"); e(f"s_lshl_b32 {sT0}, {sT0}, 7"); e(f"s_add_u32 {sT0}, {sT0}, {PROF_OFF}")
        if cfg.prof == 2:
            for k in range(max(0, g.nstamp - 4), g.nstamp): e(f"v_writelane_b32 v47, s{76+2*(k%8)}, {k}")
            e("s_mov_b64 exec, -1"); e(f"s_lshl_b32 {sT1}, s2, 2"); e(f"s_add_u32 {sT1}, {sT1}, {sW}"); e(f"s_lshl_b32 {sT1}, {sT1}, 8"); e(f"s_add_u32 {sT1}, {sT1}, {PROF_OFF + 0x100000}")
            e(f"v_lshlrev_b32 v24, 2, {vL}"); e(f"buffer_store_dword v47, v24, {SWS}, {sT1} offen"); e("s_nop 1")
            g.L.append("; STAMPS " + " ".join(g.names)); g.nstamp = 0
        e("s_mov_b64 exec, 1")
        regs = ["s72", "s74"] + [f"s{76+2*i}" for i in range(g.nstamp)]
        for i, r in enumerate(regs):
            e(f"v_mov_b32 v24, {r}"); e(f"buffer_store_dword v24, off, {SWS}, {sT0} offset:{4*i}"); e("s_nop 1")
    if cfg.probe:
        e("s_waitcnt vmcnt(0)"); g.stamp("end"); e("s_mov_b64 exec, -1"); e("s_waitcnt lgkmcnt(0)")
        e("s_add_u32 s80, s70, 3000" if cfg.probe == "non" else "s_add_u32 s80, s78, 3000")
        g.label("Lpr")
        for i in range(4): e(f"buffer_load_dwordx4 v[80:83], {vW2A}, {SWS}, s{4+i} offen")
        e("s_memrealtime s[82:83]"); e("s_waitcnt vmcnt(0) lgkmcnt(0)"); e("s_sub_u32 s84, s80, s82"); e("s_cmp_gt_i32 s84, 0"); e("s_cbranch_scc1 Lpr")
    if cfg.delay:
        e(f"s_mov_b32 {sCNT}, 0"); g.label("Ldel"); e("s_nop 15"); e("s_nop 15"); e("s_nop 15"); e("s_nop 15"); e(f"s_add_u32 {sCNT}, {sCNT}, 1"); e(f"s_cmp_lt_u32 {sCNT}, {cfg.delay}"); e("s_cbranch_scc1 Ldel")
    if cfg.xhit:
        e("s_mov_b64 exec, -1"); e(f"s_mov_b32 {sCNT}, 0"); g.label("Lxh")
        for i in range(12): e(f"buffer_load_dwordx4 v[80:83], {vW2A}, {SWS}, s{4+i} offen"); e(f"buffer_load_dwordx4 v[80:83], {vH[i%4]}, {SWS}, s{4+i} offen"); e(f"buffer_load_dwordx4 v[80:83], {vH[(i+1)%4]}, {SWS}, s{4+i} offen")
        e("s_waitcnt vmcnt(12)"); e(f"s_add_u32 {sCNT}, {sCNT}, 1"); e(f"s_cmp_lt_u32 {sCNT}, {cfg.xhit}"); e("s_cbranch_scc1 Lxh")
        e("s_waitcnt vmcnt(0)")
    g.label("Lend")
    body = "\n".join(g.L)
    pf = ".set CODE_END_PF, Lend - Lpc\n" if cfg.cpf else ""
    return f"""{HDR}; @launch grid=(256,1,1) block=(256,1,1) lds={lds_bytes}
.amdgcn_target "amdgcn-amd-amdhsa--gfx950"
.text
.globl {KN}
.p2align 8
.type {KN},@function
{KN}:
{body}
    s_endpgm
{pf}.section .rodata,"a"
.p2align 6
.amdhsa_kernel {KN}
  .amdhsa_next_free_vgpr 512
  .amdhsa_next_free_sgpr 102
  .amdhsa_accum_offset 256
  .amdhsa_group_segment_fixed_size 0
  .amdhsa_kernarg_size 48
  .amdhsa_user_sgpr_count 2
  .amdhsa_user_sgpr_kernarg_segment_ptr 1
  .amdhsa_system_sgpr_workgroup_id_x 1
.end_amdhsa_kernel
"""

def parser():
    ap = argparse.ArgumentParser()
    ap.add_argument("-o", default="k.s"); ap.add_argument("--prof", type=int, default=0)
    ap.add_argument("--p1", default="B"); ap.add_argument("--p2", default="B")
    for name, d in (("r1", 2), ("trot", 1), ("tsh", 1), ("rk", 1), ("LA", 4), ("npro", 2), ("npro2", 3), ("p0first", 0), ("p0s", 2), ("flagw", 6), ("pollw", 14), ("pgap", 2),
                    ("sleep", 2), ("n0", 20), ("n1a", 12), ("n1", 24), ("lead", 6), ("own0", 4), ("pd", 8), ("pd0", 12), ("depth", 12), ("d0", 3), ("d1", 6),
                    ("fh0", 16), ("fh1", 99), ("cpf", 0), ("warm", 1), ("w2", 1), ("both", 0), ("nons", 1), ("xcold", 0), ("xhit", 0), ("delay", 0), ("holdp", 1), ("pwc", 1), ("tail2", 1), ("nocomp", 0), ("xp0st", 0), ("xp0ld", 0)):
        ap.add_argument("--" + name, type=int, default=d)
    ap.add_argument("--outsc", default=""); ap.add_argument("--probe", default="")
    ap.add_argument("--stamps", default="start,b0,b5,b10,b15,p1end,c0b,g0,c1b,c2b,mfend,end")
    return ap
if __name__ == "__main__":
    cfg = parser().parse_args()
    cfg.fh = [cfg.fh0, cfg.fh1]; cfg.stamps = cfg.stamps.split(",")
    open(cfg.o, "w").write(gen(cfg))
```

```python
import sys, argparse

KN = "standalone__dense_activation_relu__prompt_kernel"
HDR = """; Kernarg layout for this problem (48 bytes, ptrs only, base s[0:1]):
"""
HBAND = 256 << 10
W2P_OFF = 8 << 20
FW_OFF = W2P_OFF + (1920 << 10)
FH_OFF = FW_OFF + 8192
PROF_OFF = 0x8000000
WS_USED = 0x10000000

class G:
    def __init__(s, cfg):
        s.L = []; s.vm = []; s.lg = []; s.cfg = cfg; s.nstamp = 0; s.lgmax = 15; s.names = []
    def e(s, t):
        if s.cfg.nocomp & 1 and t.startswith("v_mfma"): return
        if s.cfg.nocomp & 2 and (t.startswith("ds_read_b64_tr_b16 v[2") or t.startswith("ds_read_b128")): return
        if s.cfg.nocomp & 4 and t.startswith("v_mfma_f32_32x32x16"):
            import re
            m = re.match(r"v_mfma_f32_32x32x16_bf16 v\[(\d+):\d+\], (\S+), (\S+), ", t)
            d = int(m.group(1))
            s.flip = getattr(s, "flip", 0) ^ 1
            for h in range(2):
                dd = d + 8 * s.flip + 4 * h
                s.L.append(f"    v_mfma_f32_16x16x32_bf16 v[{dd}:{dd+3}], {m.group(2)}, {m.group(3)}, v[{dd}:{dd+3}]")
            return
        s.L.append("    " + t)
    def label(s, n): s.L.append(n + ":")
    def vmem(s, t, tag): s.e(t); s.vm.append(tag)
    def lds(s, t, tag): s.e(t); s.lg.append(tag); assert len(s.lg) <= 15, s.lg
    def wait_vm(s, *tags):
        idxs = [i for i, t in enumerate(s.vm) if t in tags]
        if not idxs: return
        idx = max(idxs); n = len(s.vm) - 1 - idx
        assert n <= 63, n
        s.e(f"s_waitcnt vmcnt({n})"); s.vm = s.vm[idx + 1:]
    def wait_lg(s, *tags):
        idxs = [i for i, t in enumerate(s.lg) if t in tags]
        if not idxs: return
        idx = max(idxs); n = len(s.lg) - 1 - idx
        s.e(f"s_waitcnt lgkmcnt({n})"); s.lg = s.lg[idx + 1:]
    def wait_lg0(s): s.e("s_waitcnt lgkmcnt(0)"); s.lg = []
    def stamp(s, name):
        if s.cfg.probe and name == "start": s.e("s_memrealtime s[76:77]")
        if s.cfg.probe == name: s.e("s_memrealtime s[78:79]")
        if s.cfg.prof == 2:
            k = s.nstamp; assert k < 64
            if k >= 4: s.e(f"v_writelane_b32 v47, s{76+2*((k-4)%8)}, {k-4}")
            r = 76 + 2 * (k % 8)
            if s.cfg.both:
                if name not in s.cfg.stamps: return
                s.e(f"s_memtime s[{r}:{r+1}] ; {name}"); s.nstamp += 1; s.names.append(name)
                k = s.nstamp
                if k >= 4: s.e(f"v_writelane_b32 v47, s{76+2*((k-4)%8)}, {k-4}")
                r = 76 + 2 * (k % 8)
                s.e(f"s_memrealtime s[{r}:{r+1}] ; {name}"); s.nstamp += 1; s.names.append(name + "_rt")
                return
            s.e(f"s_memtime s[{r}:{r+1}] ; {name}"); s.nstamp += 1; s.names.append(name)
        elif s.cfg.prof and name in s.cfg.stamps:
            r = 76 + 2 * s.nstamp; assert r + 1 < 100
            s.e(f"s_memtime s[{r}:{r+1}] ; {name}"); s.nstamp += 1

SX, SW2, SDBG, SWS, SW1, SOUT = "s[16:19]", "s[20:23]", "s[24:27]", "s[32:35]", "s[36:39]", "s[40:43]"
WSB = "s[32:33]"; sNON = "s[70:71]"
sW, sB1, sJ1, sB2, sJ2, sFW = "s44", "s28", "s29", "s30", "s31", "s45"
sXB, sFH, sKS, sT0, sT1, sT2, sM0 = "s46", "s47", "s48", "s49", "s50", "s51", "s52"
sHST, sTP, sCNT, sP0A, sPWA, sTD, sOUT = "s53", "s54", "s55", "s56", "s57", "s58", "s59"
sDA, sPH, sT3 = "s0", "s1", "s3"
KW = 60
vL = "v1"; vX = ["v2", "v3"]; vW = ["v4", "v5"]; vP0 = "v6"; vL16 = "v7"
vRX = [[8, 9, 10, 11], [12, 13, 14, 15]]; vRW = [16, 17]
vHST, vOUT, vTW, vTR, vT0, vT1, vT2 = "v18", "v19", "v20", "v21", "v22", "v23", "v24"
vRDW = ["v25", "v26", "v27"]; vRDR, vP0R, vW2A, vW2B = "v28", "v29", "v30", "v31"
vH = ["v32", "v33", "v34", "v35"]; NON = 36; vOUT2 = ["v38", "v39", "v40"]; vDUM = "v41"
ACC1 = 48; XR = 80; WF = 224; HB = 80; NHB = 24; ACC2 = 176
def vr(a, n): return f"v[{a}:{a+n-1}]"
def xreg(n): return vr(XR + 4 * n, 4) if n < 36 else f"a[{240+4*(n-36)}:{240+4*(n-36)+3}]"

def gen(cfg):
    g = G(cfg); e = g.e
    R = 8; LA = cfg.LA; NST = 20; SLOT = 16384
    LDS_P0 = R * SLOT
    lds_bytes = LDS_P0 + 8192
    LDS_T = 65536
    def mod3(dst, src, tmp):
        e(f"s_mul_i32 {tmp}, {src}, 86"); e(f"s_lshr_b32 {tmp}, {tmp}, 8"); e(f"s_mul_i32 {tmp}, {tmp}, 3"); e(f"s_sub_u32 {dst}, {src}, {tmp}")
    e("s_cmp_ge_u32 s2, 256"); e("s_cbranch_scc1 Lend")
    e("s_load_dwordx4 s[4:7], s[0:1], 0"); e("s_load_dwordx4 s[8:11], s[0:1], 16"); e("s_load_dwordx4 s[12:15], s[0:1], 32")
    e("s_memrealtime s[100:101]")
    g.stamp("start")
    if cfg.probe == "karg": e("s_waitcnt lgkmcnt(0)"); g.stamp("karg")
    if cfg.prof: e("s_memrealtime s[72:73]")
    e(f"v_lshrrev_b32 {vT0}, 6, v0"); e(f"v_and_b32 {vL}, 63, v0"); e(f"s_and_b32 {sT0}, s2, 7"); e(f"v_readfirstlane_b32 {sW}, {vT0}")
    e(f"s_lshr_b32 {sT1}, s2, 3")
    def part(kind, sb, sj):
        if kind == "A":
            e(f"s_lshl_b32 {sb}, {sT0}, 2"); e(f"s_lshr_b32 {sT2}, {sT1}, 3"); e(f"s_add_u32 {sb}, {sb}, {sT2}"); e(f"s_and_b32 {sj}, {sT1}, 7")
        else:
            e(f"s_lshr_b32 {sb}, {sT0}, 1"); e(f"s_lshl_b32 {sb}, {sb}, 3"); e(f"s_lshr_b32 {sT2}, {sT1}, 2"); e(f"s_add_u32 {sb}, {sb}, {sT2}")
            e(f"s_and_b32 {sj}, {sT0}, 1"); e(f"s_lshl_b32 {sj}, {sj}, 2"); e(f"s_and_b32 {sT2}, {sT1}, 3"); e(f"s_add_u32 {sj}, {sj}, {sT2}")
    part(cfg.p1, sB1, sJ1)
    def t0_of(dst, band):
        if cfg.trot == 2: e(f"s_and_b32 {dst}, {band}, 1")
        elif cfg.trot: e(f"s_lshr_b32 {dst}, {band}, {cfg.tsh}"); mod3(dst, dst, sT2)
        else: e(f"s_mov_b32 {dst}, 0")
    t0_of(sTD, sB1)
    if cfg.trot == 2:
        e(f"s_lshr_b32 {sKS}, {sB1}, 1"); e(f"s_add_u32 {sKS}, {sKS}, {sJ1}"); e(f"s_and_b32 {sKS}, {sKS}, {cfg.r1-1}"); e(f"s_lshl_b32 {sKS}, {sKS}, 1"); e(f"s_add_u32 {sKS}, {sKS}, {sTD}")
        e(f"s_mul_i32 {sKS}, {sKS}, 10"); e(f"s_lshr_b32 {sKS}, {sKS}, {cfg.r1.bit_length()}")
    elif cfg.r1 == 9:
        e(f"s_lshl_b32 {sKS}, {sJ1}, 1"); e(f"s_add_u32 {sKS}, {sKS}, {sB1}"); e(f"s_and_b32 {sKS}, {sKS}, 7"); e(f"s_mul_i32 {sKS}, {sKS}, 10"); e(f"s_lshr_b32 {sKS}, {sKS}, 3")
    elif cfg.r1 > 1:
        e(f"s_add_u32 {sKS}, {sB1}, {sJ1}"); e(f"s_and_b32 {sKS}, {sKS}, {cfg.r1-1}"); e(f"s_mul_i32 {sKS}, {sKS}, 10"); e(f"s_lshr_b32 {sKS}, {sKS}, {cfg.r1.bit_length()-1}")
    else: e(f"s_mov_b32 {sKS}, 0")
    e(f"s_mul_i32 {sXB}, {sB1}, {64*1280}"); e(f"s_mul_i32 {sT3}, {sJ1}, 384"); e(f"s_mov_b32 {sTP}, {sTD}")
    e(f"s_lshl_b32 {sT2}, {sTD}, 7"); e(f"s_add_u32 {sT3}, {sT3}, {sT2}")
    e(f"s_lshl_b32 {sM0}, {sW}, 11")
    e(f"v_lshrrev_b32 {vT0}, 3, {vL}"); e(f"s_lshl_b32 {sT2}, {sW}, 4"); e(f"v_add_u32 {vT0}, {sT2}, {vT0}")
    e(f"v_mul_u32_u24 {vP0}, 1280, {vT0}"); e(f"v_mul_u32_u24 {vW[1]}, 3072, {vT0}")
    e(f"v_and_b32 {vT1}, 7, {vL}"); e(f"v_lshrrev_b32 {vT2}, 4, {vL}"); e(f"v_xor_b32 {vT0}, {vT1}, {vT2}")
    e(f"v_lshl_add_u32 {vX[0]}, {vT0}, 4, {vP0}")
    e(f"v_xor_b32 {vT0}, 4, {vT0}"); e(f"v_lshl_add_u32 {vX[1]}, {vT0}, 4, {vP0}"); e(f"v_add_u32 {vX[1]}, {8*1280-1024}, {vX[1]}")
    e(f"v_lshl_add_u32 {vP0}, {vT1}, 4, {vP0}")
    e(f"v_and_b32 {vT2}, 1, {vT2}"); e(f"v_lshlrev_b32 {vT2}, 2, {vT2}"); e(f"v_xor_b32 {vT1}, {vT1}, {vT2}")
    e(f"v_add_u32 {vW[1]}, {sT3}, {vW[1]}")
    e(f"v_lshl_add_u32 {vW[0]}, {vT1}, 4, {vW[1]}"); e(f"v_add_u32 {vW[1]}, {8*3072-1024}, {vW[0]}")
    for srd, n in ((16, 2621440), (36, 1966080), (20, 1966080), (24, 256)):
        e(f"s_mov_b32 s{srd+2}, {n}"); e(f"s_mov_b32 s{srd+3}, 0x00020000")
    e(f"s_lshl_b32 {sFH}, {sB1}, 3"); e(f"s_add_u32 {sFH}, {sFH}, {sJ1}")
    e(f"s_sub_u32 {sHST}, {sFH}, 16"); e(f"s_cmp_lt_u32 {sFH}, 240"); e(f"s_cselect_b32 {sHST}, {sFH}, {sHST}")
    e(f"s_mul_i32 {sPWA}, {sHST}, 2731"); e(f"s_lshr_b32 {sPWA}, {sPWA}, 16")
    e(f"s_mul_i32 {sT2}, {sPWA}, 24"); e(f"s_sub_u32 {sHST}, {sHST}, {sT2}")
    e(f"s_mul_i32 {sT2}, {sHST}, {64*1280}"); e(f"s_lshl_b32 {sP0A}, {sPWA}, 7"); e(f"s_add_u32 {sP0A}, {sP0A}, {sT2}")
    def p0_loads():
        e(f"s_add_u32 m0, {sM0}, {LDS_P0}"); e(f"s_add_u32 {sT2}, {sP0A}, {8*1280-1024}")
        if cfg.xp0ld: return
        g.vmem(f"buffer_load_dwordx4 {vP0}, {SW2}, {sP0A} offen lds", "p0")
        g.vmem(f"buffer_load_dwordx4 {vP0}, {SW2}, {sT2} offen offset:1024 lds", "p0")
    g.stamp("prew")
    e("s_waitcnt lgkmcnt(0)")
    for srd, p in ((16, 4), (36, 6), (20, 8)): e(f"s_mov_b64 s[{srd}:{srd+1}], s[{p}:{p+1}]")
    e("s_mov_b64 s[24:25], s[12:13]")
    e(f"s_or_b32 {sT2}, s2, {sW}"); e("s_cbranch_scc1 Lnn")
    e("s_bitset1_b32 s101, 31"); e(f"v_mov_b32 v{NON}, s100"); e(f"v_mov_b32 v{NON+1}, s101")
    e("s_mov_b64 exec, 1"); e(f"buffer_store_dwordx2 {vr(NON,2)}, off, {SDBG}, 0 sc1"); e("s_mov_b64 exec, -1")
    g.label("Lnn")
    g.stamp("srd")
    adv = [f"s_add_u32 {sKS}, {sKS}, 1", f"s_cmp_eq_u32 {sKS}, 10", f"s_cselect_b32 {sKS}, 0, {sKS}"]
    def wchunk(base, tag, c, pre):
        return [(pre + [f"s_add_u32 m0, {sM0}, {base}", "s_nop 0"], f"buffer_load_dwordx4 {vW[0]}, {SW1}, s{KW+c} offen lds", tag),
                ([], f"buffer_load_dwordx4 {vW[1]}, {SW1}, s{KW+c} offen offset:1024 lds", tag)]
    nextpass = [f"s_add_u32 {sTD}, {sTD}, 1", f"s_cmp_eq_u32 {sTD}, 3", f"s_cselect_b32 {sTD}, 0, {sTD}", f"s_cselect_b32 {sT3}, -2, 1", f"s_lshl_b32 {sT3}, {sT3}, 7",
                f"v_add_u32 {vW[0]}, {sT3}, {vW[0]}", f"v_add_u32 {vW[1]}, {sT3}, {vW[1]}"]
    def dma_groups(s):
        slot = (s % R) * SLOT; tag = f"st{s}"
        if s < 10:
            return [([f"s_lshl_b32 {sDA}, {sKS}, 7", f"s_add_u32 m0, {sM0}, {slot}", f"s_add_u32 {sDA}, {sDA}, {sXB}"], f"buffer_load_dwordx4 {vX[0]}, {SX}, {sDA} offen lds", tag),
                    ([f"s_mul_i32 s{KW+s}, {sKS}, {64*3072}"], f"buffer_load_dwordx4 {vX[1]}, {SX}, {sDA} offen offset:1024 lds", tag)] + wchunk(slot + 8192, tag, s, adv)
        c = 2 * ((s - 10) % 5)
        np_ = nextpass
        if cfg.trot == 2:
            new = f"s_xor_b32 {sT3}, {sTD}, 1" if s == 10 else f"s_mov_b32 {sT3}, 2"
            np_ = [new, f"s_sub_u32 {sTD}, {sT3}, {sTD}", f"s_lshl_b32 {sTD}, {sTD}, 7", f"v_add_u32 {vW[0]}, {sTD}, {vW[0]}", f"v_add_u32 {vW[1]}, {sTD}, {vW[1]}", f"s_mov_b32 {sTD}, {sT3}"]
        return wchunk(slot, tag, c, np_ if c == 0 else []) + wchunk(slot + 8192, tag, c + 1, [])
    def issue(gr):
        for t in gr[0]: e(t)
        g.vmem(gr[1], gr[2])
    NPRO = min(cfg.npro, LA)
    if cfg.xcold:
        e("s_mov_b64 s[32:33], s[14:15]"); e(f"s_mov_b32 s34, {WS_USED}"); e("s_mov_b32 s35, 0x00020000")
        e(f"s_lshl_b32 {sT2}, s2, 2"); e(f"s_add_u32 {sT2}, {sT2}, {sW}"); e(f"s_lshl_b32 {sT2}, {sT2}, 16"); e(f"s_add_u32 {sT2}, {sT2}, 0x4000000")
        e(f"v_lshlrev_b32 {vL16}, 4, {vL}")
        for i in range(cfg.xcold):
            e(f"buffer_load_dwordx4 v[80:83], {vL16}, {SWS}, {sT2} offen"); e(f"s_add_u32 {sT2}, {sT2}, 1024")
        e("s_waitcnt vmcnt(0)")
    if cfg.xhit:
        pass
    if cfg.p0first: p0_loads()
    for s in range(NPRO): [issue(gr) for gr in dma_groups(s)]
    g.stamp("iss")
    for srd, p, n in ((40, 10, 2621440), (32, 14, WS_USED)):
        e(f"s_mov_b64 s[{srd}:{srd+1}], s[{p}:{p+1}]"); e(f"s_mov_b32 s{srd+2}, {n}"); e(f"s_mov_b32 s{srd+3}, 0x00020000")
    if cfg.cpf:
        e("s_getpc_b64 s[100:101]"); e(f"s_lshl_b32 {sT2}, {sT1}, 2"); e(f"s_add_u32 {sT2}, {sT2}, {sW}"); e(f"s_lshl_b32 {sT2}, {sT2}, 7")
        e(f"s_min_u32 {sT2}, {sT2}, CODE_END_PF"); e(f"s_add_u32 s100, s100, {sT2}"); e("s_addc_u32 s101, s101, 0"); e("s_load_dword s101, s[100:101], 0")
        g.label("Lpc")
    part(cfg.p2, sB2, sJ2)
    if not cfg.p0first: p0_loads()
    e(f"s_mov_b32 {sT0}, {sHST}"); e(f"s_mov_b32 {sT1}, {sPWA}"); e(f"s_mov_b32 {sT3}, {sFH}")
    e(f"s_mul_i32 {sT2}, {sT0}, 43"); e(f"s_lshr_b32 {sT2}, {sT2}, 8")
    e(f"s_lshl_b32 {sFW}, {sT1}, 2"); e(f"s_add_u32 {sFW}, {sFW}, {sT2}"); e(f"s_lshl_b32 {sFW}, {sFW}, 5")
    e(f"s_mul_i32 {sT2}, {sT2}, 6"); e(f"s_sub_u32 {sT2}, {sT0}, {sT2}"); e(f"s_add_u32 {sFW}, {sFW}, {sT2}"); e(f"s_lshl_b32 {sFW}, {sFW}, 2")
    e(f"s_sub_u32 {sT2}, {sT3}, 200"); e(f"s_lshl_b32 {sT2}, {sT2}, 7"); e(f"s_cmp_lt_u32 {sT3}, 240"); e(f"s_cselect_b32 {sFW}, {sFW}, {sT2}")
    e(f"s_add_u32 {sFW}, {sFW}, {FW_OFF}")
    e(f"s_lshl_b32 {sT1}, {sT1}, 2"); e(f"s_add_u32 {sT1}, {sT1}, {sW}")
    e(f"s_mul_i32 {sT2}, {sT1}, 52"); e(f"s_lshr_b32 {sT2}, {sT2}, 8")
    e(f"s_mul_i32 {sP0A}, {sT2}, 235"); e(f"s_add_u32 {sP0A}, {sP0A}, {sT1}")
    e(f"s_mul_i32 {sT2}, {sT0}, 10"); e(f"s_add_u32 {sP0A}, {sP0A}, {sT2}")
    e(f"s_lshl_b32 {sP0A}, {sP0A}, 10"); e(f"s_add_u32 {sP0A}, {sP0A}, {W2P_OFF}")
    e(f"s_lshr_b32 {sFH}, {sT3}, 1"); e(f"s_lshl_b32 {sFH}, {sFH}, 7"); e(f"s_and_b32 {sT2}, {sJ1}, 1"); e(f"s_lshl_b32 {sT2}, {sT2}, 3")
    e(f"s_add_u32 {sFH}, {sFH}, {sT2}"); e(f"s_add_u32 {sFH}, {sFH}, {FH_OFF}")
    e(f"v_lshlrev_b32 {vL16}, 4, {vL}")
    e(f"s_lshl_b32 {sOUT}, {sB2}, 2"); e(f"s_add_u32 {sOUT}, {sOUT}, {sW}"); e(f"s_mul_i32 {sOUT}, {sOUT}, {16*1280}")
    e(f"s_mul_i32 {sT2}, {sJ2}, 160"); e(f"s_add_u32 {sOUT}, {sOUT}, {sT2}")
    if cfg.warm:
        e("s_mov_b64 exec, 1")
        g.vmem(f"buffer_load_dword {vDUM}, off, {SOUT}, {sOUT}", "warm")
        e(f"s_lshl_b32 {sT2}, {sB1}, 18"); e(f"s_add_u32 {sT2}, {sT2}, {200<<10}")
        g.vmem(f"buffer_load_dword {vDUM}, off, {SWS}, {sT2}", "warm")
        e(f"s_mov_b32 {sT2}, {FH_OFF + 32768}")
        g.vmem(f"buffer_load_dword {vDUM}, off, {SWS}, {sT2}", "warm")
        if cfg.p1 != cfg.p2:
            e(f"s_lshl_b32 {sT2}, {sB2}, 18"); e(f"s_add_u32 {sT2}, {sT2}, {200<<10}")
            g.vmem(f"buffer_load_dword {vDUM}, off, {SWS}, {sT2}", "warm")
        e("s_mov_b64 exec, -1")
    e(f"s_and_b32 {sT0}, {sW}, 1"); e(f"s_lshr_b32 {sT1}, {sW}, 1")
    e(f"v_and_b32 {vT0}, 31, {vL}"); e(f"s_lshl_b32 {sT2}, {sT0}, 5"); e(f"v_add_u32 {vT0}, {sT2}, {vT0}"); e(f"v_lshlrev_b32 {vT0}, 7, {vT0}")
    e(f"v_bfe_u32 {vT1}, {vL}, 1, 3"); e(f"v_lshrrev_b32 {vT2}, 5, {vL}"); e(f"v_xor_b32 {vT1}, {vT1}, {vT2}")
    e(f"v_lshl_add_u32 v{vRX[0][0]}, {vT1}, 4, {vT0}")
    for q in range(1, 4): e(f"v_xor_b32 v{vRX[0][q]}, {32*q}, v{vRX[0][0]}")
    for q in range(4): e(f"v_add_u32 v{vRX[1][q]}, 0x10000, v{vRX[0][q]}")
    e(f"v_lshrrev_b32 {vT0}, 5, {vL}"); e(f"v_lshlrev_b32 {vT0}, 3, {vT0}"); e(f"v_bfe_u32 {vT1}, {vL}, 2, 2"); e(f"v_add_u32 {vT0}, {vT0}, {vT1}")
    e(f"v_lshlrev_b32 {vT0}, 7, {vT0}")
    e(f"v_bfe_u32 {vT1}, {vL}, 4, 1"); e(f"v_lshl_add_u32 {vT0}, {vT1}, 5, {vT0}")
    e(f"v_and_b32 {vT1}, 1, {vL}"); e(f"v_lshl_add_u32 {vT0}, {vT1}, 4, {vT0}")
    e(f"v_bfe_u32 {vT1}, {vL}, 1, 1"); e(f"v_lshl_add_u32 {vT0}, {vT1}, 3, {vT0}")
    e(f"v_bfe_u32 {vT1}, {vL}, 3, 1"); e(f"v_xor_b32 {vT1}, {sT1}, {vT1}"); e(f"v_lshl_add_u32 v{vRW[0]}, {vT1}, 6, {vT0}")
    e(f"v_add_u32 v{vRW[1]}, 0x10000, v{vRW[0]}")
    e(f"v_bfe_u32 {vT0}, {vL}, 4, 1"); e(f"v_mul_u32_u24 {vT0}, 49152, {vT0}"); e(f"v_and_b32 {vT1}, 15, {vL}"); e(f"v_lshl_add_u32 {vT0}, {vT1}, 4, {vT0}")
    e(f"v_lshrrev_b32 {vT1}, 5, {vL}"); e(f"v_lshl_add_u32 {vHST}, {vT1}, 8, {vT0}")
    e(f"s_lshl_b32 {sHST}, {sB1}, 8"); e(f"s_mul_i32 {sT2}, {sT0}, 96"); e(f"s_add_u32 {sHST}, {sHST}, {sT2}")
    e(f"s_mul_i32 {sT2}, {sJ1}, 6"); e(f"s_add_u32 {sHST}, {sHST}, {sT2}"); e(f"s_add_u32 {sHST}, {sHST}, {sT1}")
    e(f"s_lshl_b32 {sHST}, {sHST}, 10")
    e(f"v_lshrrev_b32 {vT0}, 4, {vL}"); e(f"v_lshlrev_b32 {vT0}, 3, {vT0}"); e(f"v_bfe_u32 {vT1}, {vL}, 2, 2"); e(f"v_add_u32 {vT0}, {vT0}, {vT1}")
    e(f"v_lshlrev_b32 {vT0}, 7, {vT0}"); e(f"v_and_b32 {vT1}, 3, {vL}"); e(f"v_lshl_add_u32 {vT0}, {vT1}, 3, {vT0}")
    e(f"s_lshl_b32 {sT2}, {sW}, 5"); e(f"s_add_u32 {sT2}, {sT2}, {LDS_P0}"); e(f"v_add_u32 {vP0R}, {sT2}, {vT0}")
    for s in range(NPRO, min(LA, cfg.npro2)): [issue(gr) for gr in dma_groups(s)]
    e(f"s_mul_i32 {sPWA}, {sJ2}, 5"); e(f"s_lshr_b32 {sPWA}, {sPWA}, 2"); e(f"s_lshl_b32 {sPWA}, {sPWA}, 2"); e(f"s_add_u32 {sPWA}, {sPWA}, {sW}")
    e(f"s_lshl_b32 {sPWA}, {sPWA}, 7"); e(f"s_add_u32 {sPWA}, {sPWA}, {FW_OFF}")
    e(f"s_lshl_b32 {sPH}, {sB2}, 2"); e(f"s_add_u32 {sPH}, {sPH}, {sW}"); e(f"s_lshl_b32 {sPH}, {sPH}, 7"); e(f"s_add_u32 {sPH}, {sPH}, {FH_OFF}")
    for i in range(4):
        e(f"s_add_u32 {sT0}, {sW}, {1+i}"); e(f"s_and_b32 {sT0}, {sT0}, 3")
        if i < 3:
            e(f"s_mul_i32 {sT2}, {sT0}, {3*5120}"); e(f"s_add_u32 {sT2}, {sT2}, {i*5120}"); e(f"v_add_u32 {vRDW[i]}, {sT2}, {vL16}")
        e(f"s_lshl_b32 {sT1}, {sB2}, 8"); e(f"s_mul_i32 {sT2}, {sT0}, 48"); e(f"s_add_u32 {sT1}, {sT1}, {sT2}")
        e(f"s_mul_i32 {sT2}, {sW}, 12"); e(f"s_add_u32 {sT1}, {sT1}, {sT2}"); e(f"s_lshl_b32 {sT1}, {sT1}, 10")
        e(f"v_add_u32 {vH[i]}, {sT1}, {vL16}")
    e(f"s_mul_i32 {sT2}, {sW}, {3*5120}"); e(f"v_add_u32 {vRDR}, {sT2}, {vL16}")
    e(f"s_mul_i32 {sT2}, {sW}, 2816"); e(f"s_add_u32 {sT2}, {sT2}, {LDS_T}")
    e(f"v_and_b32 {vT0}, 15, {vL}"); e(f"v_mul_u32_u24 {vT0}, 176, {vT0}"); e(f"v_lshrrev_b32 {vT1}, 4, {vL}"); e(f"v_lshl_add_u32 {vT0}, {vT1}, 3, {vT0}")
    e(f"v_add_u32 {vTW}, {sT2}, {vT0}")
    vTRs = [vTR, vOUT, vDUM]
    for i in range(3):
        e(f"v_add_u32 {vT0}, {64*i}, {vL}"); e(f"v_mul_u32_u24 {vT1}, 205, {vT0}"); e(f"v_lshrrev_b32 {vT1}, 11, {vT1}")
        e(f"v_mul_u32_u24 {vT2}, 10, {vT1}"); e(f"v_sub_u32 {vT0}, {vT0}, {vT2}"); e(f"v_lshlrev_b32 {vT0}, 4, {vT0}")
        e(f"v_mul_u32_u24 {vT2}, 1280, {vT1}"); e(f"v_add_u32 {vOUT2[i]}, {vT2}, {vT0}")
        e(f"v_mul_u32_u24 {vT2}, 176, {vT1}"); e(f"v_add3_u32 v{42+i}, {vT2}, {vT0}, {sT2}")
    e(f"s_lshl_b32 {sT0}, {sJ2}, 2"); e(f"s_add_u32 {sT0}, {sT0}, {sW}"); e(f"s_mul_i32 {sT0}, {sT0}, {60*1024}"); e(f"s_add_u32 {sT0}, {sT0}, {W2P_OFF}")
    e(f"v_add_u32 {vW2A}, {sT0}, {vL16}"); e(f"v_add_u32 {vW2B}, 4096, {vW2A}")
    t0_of(sT0, sB2)
    if cfg.rk == 0: e(f"s_mov_b32 {sT1}, 0")
    elif cfg.rk == 1: e(f"s_and_b32 {sT1}, {sB2}, 1"); e(f"s_lshl_b32 {sT1}, {sT1}, 1")
    elif cfg.rk == 2: e(f"s_and_b32 {sT1}, {sB2}, 1"); e(f"s_lshl_b32 {sT1}, {sT1}, 1"); e(f"s_add_u32 {sT1}, {sT1}, {sJ2}")
    elif cfg.rk == 4: e(f"s_lshr_b32 {sT1}, {sB2}, 1")
    elif cfg.rk == 5: e(f"s_and_b32 {sT1}, {sB2}, 2")
    elif cfg.rk == 6: e(f"s_mov_b32 {sT1}, {sB2}")
    elif cfg.rk == 3: e(f"s_add_u32 {sT1}, {sB2}, {sJ2}"); e(f"s_lshl_b32 {sT1}, {sT1}, 1")
    for kk in range(4):
        e(f"s_add_u32 {sT2}, {sT1}, {kk}"); e(f"s_and_b32 {sCNT}, {sT2}, 1"); e(f"s_bfe_u32 {sT2}, {sT2}, 0x10001"); e(f"s_mul_i32 {sT2}, {sT2}, 6")
        e(f"s_add_u32 {sT2}, {sT2}, {sCNT}"); e(f"s_lshl_b32 s{4+kk}, {sT2}, 10")
    for p in (2, 1, 0):
        if cfg.trot == 2:
            e(f"s_mov_b32 {sT2}, 2" if p == 2 else f"s_xor_b32 {sT2}, {sT0}, {p}"); e(f"s_lshl_b32 {sT2}, {sT2}, 11")
        else:
            e(f"s_add_u32 {sT2}, {sT0}, {p}"); e(f"s_sub_u32 {sCNT}, {sT2}, 3"); e(f"s_cmp_ge_u32 {sT2}, 3"); e(f"s_cselect_b32 {sT2}, {sCNT}, {sT2}"); e(f"s_lshl_b32 {sT2}, {sT2}, 11")
        for kk in range(4): e(f"s_add_u32 s{4+4*p+kk}, s{4+kk}, {sT2}")
    pend = []
    for s in range(max(NPRO, min(LA, cfg.npro2)), LA): pend.extend(dma_groups(s))

    g.stamp("setup")
    def flag_store(name, sreg, off, wide):
        e(f"s_cmp_lg_u32 {sW}, 0"); e(f"s_cbranch_scc1 L{name}")
        e("s_mov_b64 exec, 1")
        if wide: e(f"buffer_store_dwordx2 {vr(NON,2)}, off, {SWS}, {sreg} offset:{off} sc1")
        else: e(f"buffer_store_dword v{NON}, off, {SWS}, {sreg} sc1")
        e("s_mov_b64 exec, -1")
        g.label(f"L{name}")
    ld_non = f"buffer_load_dwordx2 {vr(NON,2)}, off, {SDBG}, 0 sc1"; cmp_non = f"v_cmp_eq_u32 vcc, 0, v{NON+1}"
    def spin_non():
        e(cmp_non); e(f"s_mov_b32 {sCNT}, 0"); e("s_nop 0"); e(f"s_cbranch_vccz Lnon_ok")
        g.label("Lnon")
        e(f"s_sleep {cfg.sleep}"); e(ld_non); e("s_waitcnt vmcnt(0)"); e(cmp_non)
        e(f"s_add_u32 {sCNT}, {sCNT}, 1"); e(f"s_cmp_gt_u32 {sCNT}, 200000"); e(f"s_cbranch_scc1 Lnon_ok")
        e(f"s_cbranch_vccnz Lnon")
        g.label("Lnon_ok")
        e(f"v_readfirstlane_b32 s70, v{NON}"); e(f"v_readfirstlane_b32 s71, v{NON+1}")
    ld_pw = f"s_load_dwordx8 s[16:23], {WSB}, {sPWA} glc\n    s_load_dwordx8 s[24:31], {WSB}, {sPWA} offset:512 glc"
    def s_check(name, reload, test):
        g.wait_lg0(); e(f"s_mov_b32 {sCNT}, 0")
        g.label(f"L{name}")
        test(); e(f"s_cbranch_scc1 L{name}_ok")
        e(f"s_sleep {cfg.sleep}"); e(reload); e("s_waitcnt lgkmcnt(0)")
        e(f"s_add_u32 {sCNT}, {sCNT}, 1"); e(f"s_cmp_lt_u32 {sCNT}, 400000"); e(f"s_cbranch_scc1 L{name}")
        g.label(f"L{name}_ok")
    def test_pw():
        e("s_xor_b64 s[16:17], s[16:17], s[18:19]"); e("s_xor_b64 s[18:19], s[18:19], s[20:21]"); e("s_xor_b64 s[22:23], s[20:21], s[24:25]")
        e("s_xor_b64 s[24:25], s[24:25], s[26:27]"); e("s_xor_b64 s[26:27], s[26:27], s[28:29]"); e("s_xor_b32 s30, s28, s29"); e("s_xor_b32 s31, s28, s70")
        e("s_or_b64 s[16:17], s[16:17], s[18:19]"); e("s_or_b64 s[22:23], s[22:23], s[24:25]"); e("s_or_b64 s[26:27], s[26:27], s[30:31]")
        e("s_or_b64 s[16:17], s[16:17], s[22:23]"); e("s_or_b64 s[16:17], s[16:17], s[26:27]"); e("s_cmp_eq_u64 s[16:17], 0")
    def test_ph():
        e(f"s_xor_b64 s[16:17], s[16:17], {sNON}"); e(f"s_xor_b64 s[18:19], s[18:19], {sNON}"); e("s_or_b64 s[16:17], s[16:17], s[18:19]"); e("s_cmp_eq_u64 s[16:17], 0")
    ld_ph = f"s_load_dwordx4 s[16:19], {WSB}, {sPH} glc"

    def wblk(s):
        out = []
        for t in range(5):
            a = 4 * (5 * s + t)
            pre = [f"s_mul_i32 {sXB}, s{4+s}, 5"] if t == 0 else []
            if t < 4: out.append(("W", pre, f"buffer_load_dwordx4 a[{a}:{a+3}], {vW2A}, {SWS}, {sXB} offen offset:{1024*t} sc1", f"w{s}"))
            else: out.append(("W", pre, f"buffer_load_dwordx4 a[{a}:{a+3}], {vW2B}, {SWS}, {sXB} offen sc1", f"w{s}"))
        return out
    stream = []; groups = []
    for s in range(cfg.lead): stream += wblk(s)
    for s in range(8):
        for i in range(4): stream.append(("H", s, i)); groups.append((s, i))
        if s + cfg.lead < 12: stream += wblk(s + cfg.lead)
    for i in range(4):
        for s in range(8, 12): stream.append(("H", s, i)); groups.append((s, i))
    for p in (2, 1, 0):
        idx = stream.index(("H", 4 * p, 0))
        stream.insert(idx, ("C", p))
        stream.insert(max(0, idx - (cfg.pd if p else cfg.pd0)), ("P", p))
    hbuf = {}; hcount = [0]
    def stream_issue(allow_h=True):
        it = stream[0]
        if it[0] == "W":
            stream.pop(0)
            for t in it[1]: e(t)
            g.vmem(it[2], it[3]); return True
        if it[0] == "P" and not allow_h and cfg.holdp:
            if len(stream) > 1 and stream[1][0] == "W":
                stream[0], stream[1] = stream[1], stream[0]
                return stream_issue(allow_h)
            return False
        if it[0] == "P":
            stream.pop(0)
            if it[1]: e(f"s_add_u32 {sPH}, {sPH}, 16")
            e(ld_ph); g.lgmax = 13
            return stream_issue(allow_h)
        if not allow_h: return False
        if it[0] == "C":
            stream.pop(0); g.stamp(f"c{it[1]}a"); s_check(f"ph{it[1]}", ld_ph, test_ph); g.stamp(f"c{it[1]}b"); return stream_issue()
        _, s, i = stream.pop(0)
        while hcount[0] % NHB in hbuf.values(): hcount[0] += 1
        b = hcount[0] % NHB; hcount[0] += 1
        hbuf[(s, i)] = b
        g.vmem(f"buffer_load_dwordx4 {vr(HB+4*b,4)}, {vH[i]}, {SWS}, s{4+s} offen sc1", f"h{s}_{i}")
        return True

    NSTEP = 120
    def stage_of(n): return n // 4 if n < 40 else 10 + (n - 40) // 8
    def first_step(s): return 4 * s if s < 10 else 40 + 8 * (s - 10)
    def last_step(s): return first_step(s + 1) - 1
    def DD(n): return cfg.d0 if n < 40 else cfg.d1
    def reads(n):
        s = stage_of(n); slot = s % R; hi = slot >> 2; base = (slot & 3) * SLOT
        q = n % 4; out = []
        if n < 40:
            out.append(f"ds_read_b128 {xreg(n)}, v{vRX[hi][q]} offset:{base}"); wb = base + 8192
        else: wb = base + 8192 * (((n - 40) % 8) // 4)
        for half in range(2):
            out.append(f"ds_read_b64_tr_b16 {vr(WF+4*(n%8)+2*half,2)}, v{vRW[hi]} offset:{wb+(16*q+4*half)*128}")
        return out
    w2_ok = [False]; early = [cfg.n0]; done_step = [-1]; flagged = set(); issued_tags = set()
    def barrier(s):
        tags = [f"st{s}"]
        if s == cfg.p0s: tags.append("p0")
        if s == cfg.flagw: tags += ["p0st"]
        for p in (0, 1):
            if s == cfg.fh[p]: tags.append(f"hst{p}")
        while pend and int(pend[0][2][2:]) <= s: issue(pend.pop(0))
        g.wait_vm(*tags)
        e("s_barrier")
        g.stamp(f"b{s}")
        if s == cfg.p0s:
            for kk in range(2):
                for half in range(2): g.lds(f"ds_read_b64_tr_b16 {vr(ACC1+16+4*kk+2*half,2)}, {vP0R} offset:{half*512+kk*4096}", "p0r")
            e(f"s_add_u32 {sT0}, {sP0A}, 5120")
            g.wait_lg("p0r")
            if not cfg.xp0st:
                g.vmem(f"buffer_store_dwordx4 {vr(ACC1+16,4)}, {vL16}, {SWS}, {sP0A} offen sc1", "p0st")
                g.vmem(f"buffer_store_dwordx4 {vr(ACC1+20,4)}, {vL16}, {SWS}, {sT0} offen sc1", "p0st")
        if s == cfg.nons: e(f"s_load_dwordx2 {sNON}, s[24:25], 0"); g.lgmax = 13
        if s == cfg.nons + 2:
            s_check("non", f"s_load_dwordx2 {sNON}, s[24:25], 0 glc", lambda: e("s_cmp_lg_u32 s71, 0")); g.lgmax = 15
            e(f"v_mov_b32 v{NON}, s70"); e(f"v_mov_b32 v{NON+1}, s71")
        if s == cfg.flagw: assert cfg.nons + 2 <= s; flag_store("nf1", sFW, 0, False)
        if s == cfg.pollw: assert not any(int(x[2][2:]) < 10 for x in pend) and s + LA > 10 and s > cfg.flagw; e(ld_pw.replace(' glc', '') if cfg.pwc else ld_pw); g.lgmax = 11
        if s == cfg.pollw + cfg.pgap:
            g.stamp("pwa"); s_check("pw", ld_pw, test_pw); w2_ok[0] = True; g.lgmax = 15; g.stamp("pwb")
        for p in (0, 1):
            if s == cfg.fh[p]: assert f"hst{p}" in issued_tags; flag_store(f"nh{p}", sFH, 16 * p, True); flagged.add(p)
        ns = s + LA
        if ns < NST:
            old = ns - R
            assert old < 0 or last_step(old) <= done_step[0], (s, old, done_step[0])
            pend.extend(dma_groups(ns))
    def slot_issue():
        if pend: issue(pend.pop(0))
        elif w2_ok[0] and early[0] > 0 and stream_issue(allow_h=False): early[0] -= 1
    def epilogue_ops(p):
        a = ACC1 + 16 * (p & 1); ops = []
        for i in range(8): ops.append(("v", f"v_cvt_pk_bf16_f32 v{a+i}, v{a+2*i}, v{a+2*i+1}"))
        for i in range(8): ops.append(("v", f"v_pk_max_i16 v{a+i}, v{a+i}, 0"))
        ops.append(("v", f"s_lshl_b32 {sT1}, {sTP}, 11")); ops.append(("v", f"s_add_u32 {sT1}, {sT1}, {sHST}"))
        for c in range(2): ops.append(("m", f"buffer_store_dwordx4 {vr(a+4*c,4)}, {vHST}, {SWS}, {sT1} offen offset:{c*512} sc1", f"hst{p}"))
        if cfg.trot == 2: ops += [("v", f"s_xor_b32 {sTP}, {sTP}, 1" if p == 0 else f"s_mov_b32 {sTP}, 2")]
        else: ops += [("v", f"s_add_u32 {sTP}, {sTP}, 1"), ("v", f"s_cmp_eq_u32 {sTP}, 3\n    s_cselect_b32 {sTP}, 0, {sTP}")]
        return ops
    def run_ops(ops, k):
        for _ in range(k):
            if not ops: return
            o = ops.pop(0)
            if o[0] == "v": e(o[1])
            else: g.vmem(o[1], o[2]); issued_tags.add(o[2])
    nread = [0]
    def issue_reads_upto(m):
        while nread[0] <= min(m, NSTEP - 1):
            n = nread[0]
            assert n - 8 <= done_step[0]
            if n == first_step(stage_of(n)): barrier(stage_of(n))
            for t in reads(n): g.lds(t, f"r{n}")
            nread[0] += 1
    issue_reads_upto(cfg.d0 - 1)
    ep = []
    for n in range(NSTEP):
        p = n // 40
        if n < 40 or not cfg.w2: g.wait_lg(f"r{n}")
        elif n % 2 == 0: g.wait_lg(f"r{n}", f"r{n+1}")
        a = vr(ACC1 + 16 * (p & 1), 16)
        if cfg.fake16:
            ab = ACC1 + 16 * (p & 1) + 8 * (n & 1)
            z = n % 40 < 2
            e(f"v_mfma_f32_16x16x32_bf16 {vr(ab,4)}, {vr(WF+4*(n%8),4)}, {xreg((n&~1)%40)}, {'0' if z else vr(ab,4)}")
            mid16 = f"v_mfma_f32_16x16x32_bf16 {vr(ab+4,4)}, {vr(WF+4*(n%8),4)}, {xreg((n|1)%40)}, {'0' if z else vr(ab+4,4)}"
        else:
            e(f"v_mfma_f32_32x32x16_bf16 {a}, {vr(WF+4*(n%8),4)}, {xreg(n%40)}, {'0' if n % 40 == 0 else a}")
        done_step[0] = n
        tgt = min(n + DD(n + 1), nread[0] + 1)
        while len(g.lg) + sum(len(reads(k)) for k in range(nread[0], min(tgt, NSTEP - 1) + 1)) > g.lgmax: tgt -= 1
        tgt = max(tgt, min(n + 2, NSTEP - 1))
        issue_reads_upto(tgt)
        if cfg.fake16: e(mid16)
        if n < 40:
            slot_issue()
            if len(pend) > 4: slot_issue()
        elif n % 2 == 1 or len(pend) > 4: slot_issue()
        if n % 40 == 3 and p > 0: ep = epilogue_ops(p - 1)
        run_ops(ep, 2)
    g.stamp("p1end")
    assert not pend and w2_ok[0]
    if stream[0][0] == "P": stream_issue()
    for _ in range(2): stream_issue(allow_h=False)
    e("s_nop 7"); e("s_nop 3")
    ep = epilogue_ops(2); run_ops(ep, 100)
    pos = [0]; hpos = {}
    def emit_group(s, i, extra):
        acc = ACC2 + 20 * i; b = hbuf[(s, i)]
        g.wait_vm(f"h{s}_{i}", f"w{s}")
        for t in range(5):
            a = 4 * (5 * s + t)
            cc = "0" if s == 0 else vr(acc+4*t,4)
            e(f"v_mfma_f32_16x16x32_bf16 {vr(acc+4*t,4)}, a[{a}:{a+3}], {vr(HB+4*b,4)}, {cc}")
            for x in extra[t]: x()
    nafter = 0; first = True
    while stream or groups:
        if stream:
            stream_issue(); pos[0] += 1; nafter += 1
            if pos[0] % 6 == 0: g.stamp(f"q{pos[0]}")
            for k in hbuf:
                if k not in hpos: hpos[k] = pos[0]
            for p, nn in ((1, cfg.n1a), (2, cfg.n1)):
                if p not in flagged and nafter >= nn:
                    g.wait_vm(f"hst{p}"); g.stamp(f"hst{p}"); e("s_barrier"); flag_store(f"nh{p}", sFH, 16 * p, True); flagged.add(p)
        if groups and groups[0] in hpos and (not stream or hpos[groups[0]] <= pos[0] - cfg.depth):
            s, i = groups[0]
            extra = [[] for _ in range(5)]
            W = lambda t, ii: (lambda: g.lds(f"ds_write_b128 {vRDW[ii]}, {vr(ACC2+20*ii+4*t,4)} offset:{1024*t}", "rw"))
            Rd = lambda k, u: (lambda: g.lds(f"ds_read_b128 {vr(ACC2+20*k+4*u,4)}, {vRDR} offset:{5120*k+1024*u}", f"rr{k}"))
            A = lambda r, k: (lambda: e(f"v_add_f32 v{ACC2+r}, v{ACC2+r}, v{ACC2+20*k+r}"))
            if s == 9 and i in (1, 2):
                for t in range(5): extra[t].append(W(t, i - 1))
            if i == 2 and s == 11:
                extra[0].append(lambda: (g.wait_lg0(), e("s_barrier")))
                for q in range(10): extra[q // 2].append(Rd(q // 5, q % 5))
            if i == 3 and s == 8:
                for t in range(5): extra[min(4, t + 2)].append(W(t, 2))
            if i == 3 and s == 9:
                extra[0].append(lambda: g.wait_lg("rr1"))
                for r in range(20): extra[r // 5].append(A(r, 1))
                extra[4].append(lambda: (g.wait_lg0(), e("s_barrier")))
                for u in range(5): extra[4].append(Rd(2, u))
            if i == 3 and s == 11:
                extra[0].append(lambda: g.wait_lg0())
                for r in range(20): extra[r // 4].append(A(r, 2))
            emit_group(s, i, extra)
            groups.pop(0); del hbuf[(s, i)]
            if first: g.stamp("g0"); first = False
            if not stream and len(groups) % 3 == 0: g.stamp(f"G{len(groups)}")
    assert cfg.lead >= 4 and flagged == {0, 1, 2}
    g.stamp("mfend")
    acc = ACC2 + 60; PR = ACC2
    g.wait_lg0()
    for t in range(5):
        if True:
            if t == 0: e("s_nop 3")
            for r in (0, 2): e(f"v_pk_add_f32 {vr(PR+4*t+r,2)}, {vr(PR+4*t+r,2)}, {vr(acc+4*t+r,2)}")
        else:
            for r in range(4): e(f"v_add_f32 v{PR+40+4*t+r}, v{PR+40+4*t+r}, v{acc+4*t+r}"); e(f"v_add_f32 v{PR+4*t+r}, v{PR+4*t+r}, v{PR+40+4*t+r}")
        e(f"v_cvt_pk_bf16_f32 v{PR+20+2*t}, v{PR+4*t}, v{PR+4*t+1}"); e(f"v_cvt_pk_bf16_f32 v{PR+21+2*t}, v{PR+4*t+2}, v{PR+4*t+3}")
        e(f"ds_write_b64 {vTW}, {vr(PR+20+2*t,2)} offset:{32*t}")
    e("s_waitcnt lgkmcnt(0)")
    for i in range(3): e(f"ds_read_b128 {vr(PR+40+4*i,4)}, v{42+i}")
    for i in range(3):
        e(f"s_waitcnt lgkmcnt({2-i})")
        if i == 2: e("s_mov_b32 exec_hi, 0")
        e(f"buffer_store_dwordx4 {vr(PR+40+4*i,4)}, {vOUT2[i]}, {SOUT}, {sOUT} offen {cfg.outsc}")
    if cfg.prof:
        e("s_waitcnt vmcnt(0)"); g.stamp("end"); e("s_memrealtime s[74:75]"); e("s_waitcnt lgkmcnt(0)")
        e(f"s_lshl_b32 {sT0}, s2, 2"); e(f"s_add_u32 {sT0}, {sT0}, {sW}"); e(f"s_lshl_b32 {sT0}, {sT0}, 7"); e(f"s_add_u32 {sT0}, {sT0}, {PROF_OFF}")
        if cfg.prof == 2:
            for k in range(max(0, g.nstamp - 4), g.nstamp): e(f"v_writelane_b32 v47, s{76+2*(k%8)}, {k}")
            e("s_mov_b64 exec, -1"); e(f"s_lshl_b32 {sT1}, s2, 2"); e(f"s_add_u32 {sT1}, {sT1}, {sW}"); e(f"s_lshl_b32 {sT1}, {sT1}, 8"); e(f"s_add_u32 {sT1}, {sT1}, {PROF_OFF + 0x100000}")
            e(f"v_lshlrev_b32 v24, 2, {vL}"); e(f"buffer_store_dword v47, v24, {SWS}, {sT1} offen"); e("s_nop 1")
            g.L.append("; STAMPS " + " ".join(g.names)); g.nstamp = 0
        e("s_mov_b64 exec, 1")
        regs = ["s72", "s74"] + [f"s{76+2*i}" for i in range(g.nstamp)]
        for i, r in enumerate(regs):
            e(f"v_mov_b32 v24, {r}"); e(f"buffer_store_dword v24, off, {SWS}, {sT0} offset:{4*i}"); e("s_nop 1")
    if cfg.probe:
        e("s_waitcnt vmcnt(0)"); g.stamp("end"); e("s_mov_b64 exec, -1"); e("s_waitcnt lgkmcnt(0)")
        e("s_add_u32 s80, s70, 3000" if cfg.probe == "non" else "s_add_u32 s80, s78, 3000")
        g.label("Lpr")
        for i in range(4): e(f"buffer_load_dwordx4 v[80:83], {vW2A}, {SWS}, s{4+i} offen")
        e("s_memrealtime s[82:83]"); e("s_waitcnt vmcnt(0) lgkmcnt(0)"); e("s_sub_u32 s84, s80, s82"); e("s_cmp_gt_i32 s84, 0"); e("s_cbranch_scc1 Lpr")
    if cfg.delay:
        e(f"s_mov_b32 {sCNT}, 0"); g.label("Ldel"); e("s_nop 15"); e("s_nop 15"); e("s_nop 15"); e("s_nop 15"); e(f"s_add_u32 {sCNT}, {sCNT}, 1"); e(f"s_cmp_lt_u32 {sCNT}, {cfg.delay}"); e("s_cbranch_scc1 Ldel")
    if cfg.xhit:
        e("s_mov_b64 exec, -1"); e(f"s_mov_b32 {sCNT}, 0"); g.label("Lxh")
        for i in range(12): e(f"buffer_load_dwordx4 v[80:83], {vW2A}, {SWS}, s{4+i} offen"); e(f"buffer_load_dwordx4 v[80:83], {vH[i%4]}, {SWS}, s{4+i} offen"); e(f"buffer_load_dwordx4 v[80:83], {vH[(i+1)%4]}, {SWS}, s{4+i} offen")
        e("s_waitcnt vmcnt(12)"); e(f"s_add_u32 {sCNT}, {sCNT}, 1"); e(f"s_cmp_lt_u32 {sCNT}, {cfg.xhit}"); e("s_cbranch_scc1 Lxh")
        e("s_waitcnt vmcnt(0)")
    g.label("Lend")
    body = "\n".join(g.L)
    pf = ".set CODE_END_PF, Lend - Lpc\n" if cfg.cpf else ""
    return f"""{HDR}; @launch grid=(256,1,1) block=(256,1,1) lds={lds_bytes}
.amdgcn_target "amdgcn-amd-amdhsa--gfx950"
.text
.globl {KN}
.p2align 8
.type {KN},@function
{KN}:
{body}
    s_endpgm
{pf}.section .rodata,"a"
.p2align 6
.amdhsa_kernel {KN}
  .amdhsa_next_free_vgpr 512
  .amdhsa_next_free_sgpr 102
  .amdhsa_accum_offset 256
  .amdhsa_group_segment_fixed_size 0
  .amdhsa_kernarg_size 48
  .amdhsa_user_sgpr_count 2
  .amdhsa_user_sgpr_kernarg_segment_ptr 1
  .amdhsa_system_sgpr_workgroup_id_x 1
.end_amdhsa_kernel
"""

def parser():
    ap = argparse.ArgumentParser()
    ap.add_argument("-o", default="k.s"); ap.add_argument("--prof", type=int, default=0)
    ap.add_argument("--p1", default="B"); ap.add_argument("--p2", default="B")
    for name, d in (("r1", 2), ("trot", 1), ("tsh", 1), ("rk", 1), ("LA", 4), ("npro", 2), ("npro2", 3), ("p0first", 0), ("p0s", 2), ("flagw", 6), ("pollw", 14), ("pgap", 2),
                    ("sleep", 2), ("n0", 20), ("n1a", 12), ("n1", 24), ("lead", 6), ("own0", 4), ("pd", 8), ("pd0", 12), ("depth", 12), ("d0", 3), ("d1", 6),
                    ("fh0", 16), ("fh1", 99), ("cpf", 0), ("warm", 1), ("w2", 1), ("both", 0), ("nons", 1), ("fake16", 0), ("xcold", 0), ("xhit", 0), ("delay", 0), ("holdp", 1), ("pwc", 1), ("tail2", 1), ("nocomp", 0), ("xp0st", 0), ("xp0ld", 0)):
        ap.add_argument("--" + name, type=int, default=d)
    ap.add_argument("--outsc", default=""); ap.add_argument("--probe", default="")
    ap.add_argument("--stamps", default="start,b0,b5,b10,b15,p1end,c0b,g0,c1b,c2b,mfend,end")
    return ap
if __name__ == "__main__":
    cfg = parser().parse_args()
    cfg.fh = [cfg.fh0, cfg.fh1]; cfg.stamps = cfg.stamps.split(",")
    open(cfg.o, "w").write(gen(cfg))
```

```python
import sys, argparse

KN = "standalone__dense_activation_relu__prompt_kernel"
HDR = """; Kernarg layout for this problem (48 bytes, ptrs only, base s[0:1]):
"""
DOC = """; out = relu(x @ w1) @ w2, one launch, 256 workgroups x 4 waves (one workgroup per CU).
; Hand-offs: write-through stores, counted vmcnt, barrier, then a flag tagged with a per-launch nonce
"""
HBAND = 256 << 10
W2P_OFF = 8 << 20
FW_OFF = W2P_OFF + (1920 << 10)
FH_OFF = FW_OFF + 8192
PROF_OFF = 0x8000000
WS_USED = 0x10000000

class G:
    def __init__(s, cfg):
        s.L = []; s.vm = []; s.lg = []; s.cfg = cfg; s.nstamp = 0; s.lgmax = 15; s.names = []
    def e(s, t):
        if s.cfg.nocomp & 1 and t.startswith("v_mfma"): return
        if s.cfg.nocomp & 2 and (t.startswith("ds_read_b64_tr_b16 v[2") or t.startswith("ds_read_b128")): return
        if s.cfg.nocomp & 4 and t.startswith("v_mfma_f32_32x32x16"):
            import re
            m = re.match(r"v_mfma_f32_32x32x16_bf16 v\[(\d+):\d+\], (\S+), (\S+), ", t)
            d = int(m.group(1))
            s.flip = getattr(s, "flip", 0) ^ 1
            for h in range(2):
                dd = d + 8 * s.flip + 4 * h
                s.L.append(f"    v_mfma_f32_16x16x32_bf16 v[{dd}:{dd+3}], {m.group(2)}, {m.group(3)}, v[{dd}:{dd+3}]")
            return
        s.L.append("    " + t)
    def label(s, n): s.L.append(n + ":")
    def vmem(s, t, tag): s.e(t); s.vm.append(tag)
    def lds(s, t, tag): s.e(t); s.lg.append(tag); assert len(s.lg) <= 15, s.lg
    def wait_vm(s, *tags):
        idxs = [i for i, t in enumerate(s.vm) if t in tags]
        if not idxs: return
        idx = max(idxs); n = len(s.vm) - 1 - idx
        assert n <= 63, n
        s.e(f"s_waitcnt vmcnt({n})"); s.vm = s.vm[idx + 1:]
    def wait_lg(s, *tags):
        idxs = [i for i, t in enumerate(s.lg) if t in tags]
        if not idxs: return
        idx = max(idxs); n = len(s.lg) - 1 - idx
        s.e(f"s_waitcnt lgkmcnt({n})"); s.lg = s.lg[idx + 1:]
    def wait_lg0(s): s.e("s_waitcnt lgkmcnt(0)"); s.lg = []
    def stamp(s, name):
        if s.cfg.probe and name == "start": s.e("s_memrealtime s[76:77]")
        if s.cfg.probe == name: s.e("s_memrealtime s[78:79]")
        if s.cfg.prof == 2:
            k = s.nstamp; assert k < 64
            if k >= 4: s.e(f"v_writelane_b32 v47, s{76+2*((k-4)%8)}, {k-4}")
            r = 76 + 2 * (k % 8)
            if s.cfg.both:
                if name not in s.cfg.stamps: return
                s.e(f"s_memtime s[{r}:{r+1}] ; {name}"); s.nstamp += 1; s.names.append(name)
                k = s.nstamp
                if k >= 4: s.e(f"v_writelane_b32 v47, s{76+2*((k-4)%8)}, {k-4}")
                r = 76 + 2 * (k % 8)
                s.e(f"s_memrealtime s[{r}:{r+1}] ; {name}"); s.nstamp += 1; s.names.append(name + "_rt")
                return
            s.e(f"s_memtime s[{r}:{r+1}] ; {name}"); s.nstamp += 1; s.names.append(name)
        elif s.cfg.prof and name in s.cfg.stamps:
            r = 76 + 2 * s.nstamp; assert r + 1 < 100
            s.e(f"s_memtime s[{r}:{r+1}] ; {name}"); s.nstamp += 1

SX, SW2, SDBG, SWS, SW1, SOUT = "s[16:19]", "s[20:23]", "s[24:27]", "s[32:35]", "s[36:39]", "s[40:43]"
WSB = "s[32:33]"; sNON = "s[70:71]"
sW, sB1, sJ1, sB2, sJ2, sFW = "s44", "s28", "s29", "s30", "s31", "s45"
sXB, sFH, sKS, sT0, sT1, sT2, sM0 = "s46", "s47", "s48", "s49", "s50", "s51", "s52"
sHST, sTP, sCNT, sP0A, sPWA, sTD, sOUT = "s53", "s54", "s55", "s56", "s57", "s58", "s59"
sDA, sPH, sT3 = "s0", "s1", "s3"
KW = 60
vL = "v1"; vX = ["v2", "v3"]; vW = ["v4", "v5"]; vP0 = "v6"; vL16 = "v7"
vRX = [[8, 9, 10, 11], [12, 13, 14, 15]]; vRW = [16, 17]
vHST, vOUT, vTW, vTR, vT0, vT1, vT2 = "v18", "v19", "v20", "v21", "v22", "v23", "v24"
vRDW = ["v25", "v26", "v27"]; vRDR, vP0R, vW2A, vW2B = "v28", "v29", "v30", "v31"
vH = ["v32", "v33", "v34", "v35"]; NON = 36; vOUT2 = ["v38", "v39", "v40"]; vDUM = "v41"
ACC1 = 48; XR = 80; WF = 224; HB = 80; NHB = 24; ACC2 = 176
def vr(a, n): return f"v[{a}:{a+n-1}]"
def xreg(n): return vr(XR + 4 * n, 4) if n < 36 else f"a[{240+4*(n-36)}:{240+4*(n-36)+3}]"

def gen(cfg):
    g = G(cfg); e = g.e
    R = 8; LA = cfg.LA; NST = 20; SLOT = 16384
    LDS_P0 = R * SLOT
    lds_bytes = LDS_P0 + 8192
    LDS_T = 65536
    def mod3(dst, src, tmp):
        e(f"s_mul_i32 {tmp}, {src}, 86"); e(f"s_lshr_b32 {tmp}, {tmp}, 8"); e(f"s_mul_i32 {tmp}, {tmp}, 3"); e(f"s_sub_u32 {dst}, {src}, {tmp}")
    e("s_cmp_ge_u32 s2, 256"); e("s_cbranch_scc1 Lend")
    e("s_load_dwordx4 s[4:7], s[0:1], 0"); e("s_load_dwordx4 s[8:11], s[0:1], 16"); e("s_load_dwordx4 s[12:15], s[0:1], 32")
    e("s_memrealtime s[100:101]")
    g.stamp("start")
    if cfg.probe == "karg": e("s_waitcnt lgkmcnt(0)"); g.stamp("karg")
    if cfg.prof: e("s_memrealtime s[72:73]")
    e(f"v_lshrrev_b32 {vT0}, 6, v0"); e(f"v_and_b32 {vL}, 63, v0"); e(f"s_and_b32 {sT0}, s2, 7"); e(f"v_readfirstlane_b32 {sW}, {vT0}")
    e(f"s_lshr_b32 {sT1}, s2, 3")
    def part(kind, sb, sj):
        if kind == "A":
            e(f"s_lshl_b32 {sb}, {sT0}, 2"); e(f"s_lshr_b32 {sT2}, {sT1}, 3"); e(f"s_add_u32 {sb}, {sb}, {sT2}"); e(f"s_and_b32 {sj}, {sT1}, 7")
        else:
            e(f"s_lshr_b32 {sb}, {sT0}, 1"); e(f"s_lshl_b32 {sb}, {sb}, 3"); e(f"s_lshr_b32 {sT2}, {sT1}, 2"); e(f"s_add_u32 {sb}, {sb}, {sT2}")
            e(f"s_and_b32 {sj}, {sT0}, 1"); e(f"s_lshl_b32 {sj}, {sj}, 2"); e(f"s_and_b32 {sT2}, {sT1}, 3"); e(f"s_add_u32 {sj}, {sj}, {sT2}")
    part(cfg.p1, sB1, sJ1)
    def t0_of(dst, band):
        if cfg.trot == 2: e(f"s_and_b32 {dst}, {band}, 1")
        elif cfg.trot: e(f"s_lshr_b32 {dst}, {band}, {cfg.tsh}"); mod3(dst, dst, sT2)
        else: e(f"s_mov_b32 {dst}, 0")
    t0_of(sTD, sB1)
    if cfg.trot == 2:
        e(f"s_lshr_b32 {sKS}, {sB1}, 1"); e(f"s_add_u32 {sKS}, {sKS}, {sJ1}"); e(f"s_and_b32 {sKS}, {sKS}, {cfg.r1-1}"); e(f"s_lshl_b32 {sKS}, {sKS}, 1"); e(f"s_add_u32 {sKS}, {sKS}, {sTD}")
        e(f"s_mul_i32 {sKS}, {sKS}, 10"); e(f"s_lshr_b32 {sKS}, {sKS}, {cfg.r1.bit_length()}")
    elif cfg.r1 == 10:
        e(f"s_lshl_b32 {sKS}, {sJ1}, 1"); e(f"s_add_u32 {sKS}, {sKS}, {sB1}"); e(f"s_and_b32 {sKS}, {sKS}, 7"); e(f"s_mul_i32 {sKS}, {sKS}, 5"); e(f"s_lshr_b32 {sKS}, {sKS}, 3")
        if cfg.hx == 0: e(f"s_and_b32 {sCNT}, {sT0}, 1")
        elif cfg.hx == 1: e(f"s_lshr_b32 {sCNT}, {sT0}, 2"); e(f"s_xor_b32 {sCNT}, {sCNT}, {sT0}"); e(f"s_and_b32 {sCNT}, {sCNT}, 1")
        else: e(f"s_mov_b32 {sCNT}, 0")
        e(f"s_mul_i32 {sCNT}, {sCNT}, 5"); e(f"s_add_u32 {sKS}, {sKS}, {sCNT}"); e(f"s_add_u32 {sOUT}, {sCNT}, 5")
    elif cfg.r1 == 9:
        e(f"s_lshl_b32 {sKS}, {sJ1}, 1"); e(f"s_add_u32 {sKS}, {sKS}, {sB1}"); e(f"s_and_b32 {sKS}, {sKS}, 7"); e(f"s_mul_i32 {sKS}, {sKS}, 10"); e(f"s_lshr_b32 {sKS}, {sKS}, 3")
    elif cfg.r1 > 1:
        e(f"s_add_u32 {sKS}, {sB1}, {sJ1}"); e(f"s_and_b32 {sKS}, {sKS}, {cfg.r1-1}"); e(f"s_mul_i32 {sKS}, {sKS}, 10"); e(f"s_lshr_b32 {sKS}, {sKS}, {cfg.r1.bit_length()-1}")
    else: e(f"s_mov_b32 {sKS}, 0")
    e(f"s_mul_i32 {sXB}, {sB1}, {64*1280}"); e(f"s_mul_i32 {sT3}, {sJ1}, 384"); e(f"s_mov_b32 {sTP}, {sTD}")
    e(f"s_lshl_b32 {sT2}, {sTD}, 7"); e(f"s_add_u32 {sT3}, {sT3}, {sT2}")
    e(f"s_lshl_b32 {sM0}, {sW}, 11")
    e(f"v_lshrrev_b32 {vT0}, 3, {vL}"); e(f"s_lshl_b32 {sT2}, {sW}, 4"); e(f"v_add_u32 {vT0}, {sT2}, {vT0}")
    e(f"v_mul_u32_u24 {vP0}, 1280, {vT0}"); e(f"v_mul_u32_u24 {vW[1]}, 3072, {vT0}")
    e(f"v_and_b32 {vT1}, 7, {vL}"); e(f"v_lshrrev_b32 {vT2}, 4, {vL}"); e(f"v_xor_b32 {vT0}, {vT1}, {vT2}")
    e(f"v_lshl_add_u32 {vX[0]}, {vT0}, 4, {vP0}")
    e(f"v_xor_b32 {vT0}, 4, {vT0}"); e(f"v_lshl_add_u32 {vX[1]}, {vT0}, 4, {vP0}"); e(f"v_add_u32 {vX[1]}, {8*1280-1024}, {vX[1]}")
    e(f"v_lshl_add_u32 {vP0}, {vT1}, 4, {vP0}")
    e(f"v_and_b32 {vT2}, 1, {vT2}"); e(f"v_lshlrev_b32 {vT2}, 2, {vT2}"); e(f"v_xor_b32 {vT1}, {vT1}, {vT2}")
    e(f"v_add_u32 {vW[1]}, {sT3}, {vW[1]}")
    e(f"v_lshl_add_u32 {vW[0]}, {vT1}, 4, {vW[1]}"); e(f"v_add_u32 {vW[1]}, {8*3072-1024}, {vW[0]}")
    for srd, n in ((16, 2621440), (36, 1966080), (20, 1966080), (24, 256)):
        e(f"s_mov_b32 s{srd+2}, {n}"); e(f"s_mov_b32 s{srd+3}, 0x00020000")
    e(f"s_lshl_b32 {sFH}, {sB1}, 3"); e(f"s_add_u32 {sFH}, {sFH}, {sJ1}")
    e(f"s_sub_u32 {sHST}, {sFH}, 16"); e(f"s_cmp_lt_u32 {sFH}, 240"); e(f"s_cselect_b32 {sHST}, {sFH}, {sHST}")
    e(f"s_mul_i32 {sPWA}, {sHST}, 2731"); e(f"s_lshr_b32 {sPWA}, {sPWA}, 16")
    e(f"s_mul_i32 {sT2}, {sPWA}, 24"); e(f"s_sub_u32 {sHST}, {sHST}, {sT2}")
    e(f"s_mul_i32 {sT2}, {sHST}, {64*1280}"); e(f"s_lshl_b32 {sP0A}, {sPWA}, 7"); e(f"s_add_u32 {sP0A}, {sP0A}, {sT2}")
    def p0_loads():
        e(f"s_add_u32 m0, {sM0}, {LDS_P0}"); e(f"s_add_u32 {sT2}, {sP0A}, {8*1280-1024}")
        if cfg.xp0ld: return
        g.vmem(f"buffer_load_dwordx4 {vP0}, {SW2}, {sP0A} offen lds", "p0")
        g.vmem(f"buffer_load_dwordx4 {vP0}, {SW2}, {sT2} offen offset:1024 lds", "p0")
    g.stamp("prew")
    e("s_waitcnt lgkmcnt(0)")
    for srd, p in ((16, 4), (36, 6), (20, 8)): e(f"s_mov_b64 s[{srd}:{srd+1}], s[{p}:{p+1}]")
    e("s_mov_b64 s[24:25], s[12:13]")
    e(f"s_or_b32 {sT2}, s2, {sW}"); e("s_cbranch_scc1 Lnn")
    e("s_bitset1_b32 s101, 31"); e(f"v_mov_b32 v{NON}, s100"); e(f"v_mov_b32 v{NON+1}, s101")
    e("s_mov_b64 exec, 1"); e(f"buffer_store_dwordx2 {vr(NON,2)}, off, {SDBG}, 0 sc1"); e("s_mov_b64 exec, -1")
    g.label("Lnn")
    g.stamp("srd")
    adv = [f"s_add_u32 {sKS}, {sKS}, 1", f"s_cmp_eq_u32 {sKS}, 10", f"s_cselect_b32 {sKS}, 0, {sKS}"]
    def advh(s):
        o = [f"s_add_u32 {sKS}, {sKS}, 1", f"s_sub_u32 s101, {sKS}, 5", f"s_cmp_eq_u32 {sKS}, s100", f"s_cselect_b32 {sKS}, s101, {sKS}"]
        if s == 4: o += [f"s_sub_u32 {sKS}, {sKS}, s100", "s_sub_u32 s100, 15, s100", f"s_add_u32 {sKS}, {sKS}, s100"]
        return o
    if cfg.r1 == 10: e(f"s_mov_b32 s100, {sOUT}")
    def wchunk(base, tag, c, pre):
        return [(pre + [f"s_add_u32 m0, {sM0}, {base}", "s_nop 0"], f"buffer_load_dwordx4 {vW[0]}, {SW1}, s{KW+c} offen lds", tag),
                ([], f"buffer_load_dwordx4 {vW[1]}, {SW1}, s{KW+c} offen offset:1024 lds", tag)]
    nextpass = [f"s_add_u32 {sTD}, {sTD}, 1", f"s_cmp_eq_u32 {sTD}, 3", f"s_cselect_b32 {sTD}, 0, {sTD}", f"s_cselect_b32 {sT3}, -2, 1", f"s_lshl_b32 {sT3}, {sT3}, 7",
                f"v_add_u32 {vW[0]}, {sT3}, {vW[0]}", f"v_add_u32 {vW[1]}, {sT3}, {vW[1]}"]
    def dma_groups(s):
        slot = (s % R) * SLOT; tag = f"st{s}"
        if s < 10:
            return [([f"s_lshl_b32 {sDA}, {sKS}, 7", f"s_add_u32 m0, {sM0}, {slot}", f"s_add_u32 {sDA}, {sDA}, {sXB}"], f"buffer_load_dwordx4 {vX[0]}, {SX}, {sDA} offen lds", tag),
                    ([f"s_mul_i32 s{KW+s}, {sKS}, {64*3072}"], f"buffer_load_dwordx4 {vX[1]}, {SX}, {sDA} offen offset:1024 lds", tag)] + wchunk(slot + 8192, tag, s, adv if cfg.r1 != 10 else advh(s))
        c = 2 * ((s - 10) % 5)
        np_ = nextpass
        if cfg.trot == 2:
            new = f"s_xor_b32 {sT3}, {sTD}, 1" if s == 10 else f"s_mov_b32 {sT3}, 2"
            np_ = [new, f"s_sub_u32 {sTD}, {sT3}, {sTD}", f"s_lshl_b32 {sTD}, {sTD}, 7", f"v_add_u32 {vW[0]}, {sTD}, {vW[0]}", f"v_add_u32 {vW[1]}, {sTD}, {vW[1]}", f"s_mov_b32 {sTD}, {sT3}"]
        return wchunk(slot, tag, c, np_ if c == 0 else []) + wchunk(slot + 8192, tag, c + 1, [])
    def issue(gr):
        for t in gr[0]: e(t)
        g.vmem(gr[1], gr[2])
    NPRO = min(cfg.npro, LA)
    if cfg.xcold:
        e("s_mov_b64 s[32:33], s[14:15]"); e(f"s_mov_b32 s34, {WS_USED}"); e("s_mov_b32 s35, 0x00020000")
        e(f"s_lshl_b32 {sT2}, s2, 2"); e(f"s_add_u32 {sT2}, {sT2}, {sW}"); e(f"s_lshl_b32 {sT2}, {sT2}, 16"); e(f"s_add_u32 {sT2}, {sT2}, 0x4000000")
        e(f"v_lshlrev_b32 {vL16}, 4, {vL}")
        for i in range(cfg.xcold):
            e(f"buffer_load_dwordx4 v[80:83], {vL16}, {SWS}, {sT2} offen"); e(f"s_add_u32 {sT2}, {sT2}, 1024")
        e("s_waitcnt vmcnt(0)")
    if cfg.xhit:
        pass
    if cfg.p0first: p0_loads()
    for s in range(NPRO): [issue(gr) for gr in dma_groups(s)]
    g.stamp("iss")
    for srd, p, n in ((40, 10, 2621440), (32, 14, WS_USED)):
        e(f"s_mov_b64 s[{srd}:{srd+1}], s[{p}:{p+1}]"); e(f"s_mov_b32 s{srd+2}, {n}"); e(f"s_mov_b32 s{srd+3}, 0x00020000")
    if cfg.cpf:
        e("s_getpc_b64 s[100:101]"); e(f"s_lshl_b32 {sT2}, {sT1}, 2"); e(f"s_add_u32 {sT2}, {sT2}, {sW}"); e(f"s_lshl_b32 {sT2}, {sT2}, 7")
        e(f"s_min_u32 {sT2}, {sT2}, CODE_END_PF"); e(f"s_add_u32 s100, s100, {sT2}"); e("s_addc_u32 s101, s101, 0"); e("s_load_dword s101, s[100:101], 0")
        g.label("Lpc")
    part(cfg.p2, sB2, sJ2)
    if cfg.p0late: e(f"s_mov_b32 s100, {sP0A}")
    elif not cfg.p0first: p0_loads()
    e(f"s_mov_b32 {sT0}, {sHST}"); e(f"s_mov_b32 {sT1}, {sPWA}"); e(f"s_mov_b32 {sT3}, {sFH}")
    e(f"s_mul_i32 {sT2}, {sT0}, 43"); e(f"s_lshr_b32 {sT2}, {sT2}, 8")
    e(f"s_lshl_b32 {sFW}, {sT1}, 2"); e(f"s_add_u32 {sFW}, {sFW}, {sT2}"); e(f"s_lshl_b32 {sFW}, {sFW}, 5")
    e(f"s_mul_i32 {sT2}, {sT2}, 6"); e(f"s_sub_u32 {sT2}, {sT0}, {sT2}"); e(f"s_add_u32 {sFW}, {sFW}, {sT2}"); e(f"s_lshl_b32 {sFW}, {sFW}, 2")
    e(f"s_sub_u32 {sT2}, {sT3}, 200"); e(f"s_lshl_b32 {sT2}, {sT2}, 7"); e(f"s_cmp_lt_u32 {sT3}, 240"); e(f"s_cselect_b32 {sFW}, {sFW}, {sT2}")
    e(f"s_add_u32 {sFW}, {sFW}, {FW_OFF}")
    e(f"s_lshl_b32 {sT1}, {sT1}, 2"); e(f"s_add_u32 {sT1}, {sT1}, {sW}")
    e(f"s_mul_i32 {sT2}, {sT1}, 52"); e(f"s_lshr_b32 {sT2}, {sT2}, 8")
    e(f"s_mul_i32 {sP0A}, {sT2}, 235"); e(f"s_add_u32 {sP0A}, {sP0A}, {sT1}")
    e(f"s_mul_i32 {sT2}, {sT0}, 10"); e(f"s_add_u32 {sP0A}, {sP0A}, {sT2}")
    e(f"s_lshl_b32 {sP0A}, {sP0A}, 10"); e(f"s_add_u32 {sP0A}, {sP0A}, {W2P_OFF}")
    e(f"s_lshr_b32 {sFH}, {sT3}, 1"); e(f"s_lshl_b32 {sFH}, {sFH}, 7"); e(f"s_and_b32 {sT2}, {sJ1}, 1"); e(f"s_lshl_b32 {sT2}, {sT2}, 3")
    e(f"s_add_u32 {sFH}, {sFH}, {sT2}"); e(f"s_add_u32 {sFH}, {sFH}, {FH_OFF}")
    e(f"v_lshlrev_b32 {vL16}, 4, {vL}")
    e(f"s_lshl_b32 {sOUT}, {sB2}, 2"); e(f"s_add_u32 {sOUT}, {sOUT}, {sW}"); e(f"s_mul_i32 {sOUT}, {sOUT}, {16*1280}")
    e(f"s_mul_i32 {sT2}, {sJ2}, 160"); e(f"s_add_u32 {sOUT}, {sOUT}, {sT2}")
    if cfg.warm:
        e("s_mov_b64 exec, 1")
        g.vmem(f"buffer_load_dword {vDUM}, off, {SOUT}, {sOUT}", "warm")
        e(f"s_lshl_b32 {sT2}, {sB1}, 18"); e(f"s_add_u32 {sT2}, {sT2}, {200<<10}")
        g.vmem(f"buffer_load_dword {vDUM}, off, {SWS}, {sT2}", "warm")
        e(f"s_mov_b32 {sT2}, {FH_OFF + 32768}")
        g.vmem(f"buffer_load_dword {vDUM}, off, {SWS}, {sT2}", "warm")
        if cfg.p1 != cfg.p2:
            e(f"s_lshl_b32 {sT2}, {sB2}, 18"); e(f"s_add_u32 {sT2}, {sT2}, {200<<10}")
            g.vmem(f"buffer_load_dword {vDUM}, off, {SWS}, {sT2}", "warm")
        e("s_mov_b64 exec, -1")
    e(f"s_and_b32 {sT0}, {sW}, 1"); e(f"s_lshr_b32 {sT1}, {sW}, 1")
    e(f"v_and_b32 {vT0}, 31, {vL}"); e(f"s_lshl_b32 {sT2}, {sT0}, 5"); e(f"v_add_u32 {vT0}, {sT2}, {vT0}"); e(f"v_lshlrev_b32 {vT0}, 7, {vT0}")
    e(f"v_bfe_u32 {vT1}, {vL}, 1, 3"); e(f"v_lshrrev_b32 {vT2}, 5, {vL}"); e(f"v_xor_b32 {vT1}, {vT1}, {vT2}")
    e(f"v_lshl_add_u32 v{vRX[0][0]}, {vT1}, 4, {vT0}")
    for q in range(1, 4): e(f"v_xor_b32 v{vRX[0][q]}, {32*q}, v{vRX[0][0]}")
    for q in range(4): e(f"v_add_u32 v{vRX[1][q]}, 0x10000, v{vRX[0][q]}")
    e(f"v_lshrrev_b32 {vT0}, 5, {vL}"); e(f"v_lshlrev_b32 {vT0}, 3, {vT0}"); e(f"v_bfe_u32 {vT1}, {vL}, 2, 2"); e(f"v_add_u32 {vT0}, {vT0}, {vT1}")
    e(f"v_lshlrev_b32 {vT0}, 7, {vT0}")
    e(f"v_bfe_u32 {vT1}, {vL}, 4, 1"); e(f"v_lshl_add_u32 {vT0}, {vT1}, 5, {vT0}")
    e(f"v_and_b32 {vT1}, 1, {vL}"); e(f"v_lshl_add_u32 {vT0}, {vT1}, 4, {vT0}")
    e(f"v_bfe_u32 {vT1}, {vL}, 1, 1"); e(f"v_lshl_add_u32 {vT0}, {vT1}, 3, {vT0}")
    e(f"v_bfe_u32 {vT1}, {vL}, 3, 1"); e(f"v_xor_b32 {vT1}, {sT1}, {vT1}"); e(f"v_lshl_add_u32 v{vRW[0]}, {vT1}, 6, {vT0}")
    e(f"v_add_u32 v{vRW[1]}, 0x10000, v{vRW[0]}")
    e(f"v_bfe_u32 {vT0}, {vL}, 4, 1"); e(f"v_mul_u32_u24 {vT0}, 49152, {vT0}"); e(f"v_and_b32 {vT1}, 15, {vL}"); e(f"v_lshl_add_u32 {vT0}, {vT1}, 4, {vT0}")
    e(f"v_lshrrev_b32 {vT1}, 5, {vL}"); e(f"v_lshl_add_u32 {vHST}, {vT1}, 8, {vT0}")
    e(f"s_lshl_b32 {sHST}, {sB1}, 8"); e(f"s_mul_i32 {sT2}, {sT0}, 96"); e(f"s_add_u32 {sHST}, {sHST}, {sT2}")
    e(f"s_mul_i32 {sT2}, {sJ1}, 6"); e(f"s_add_u32 {sHST}, {sHST}, {sT2}"); e(f"s_add_u32 {sHST}, {sHST}, {sT1}")
    e(f"s_lshl_b32 {sHST}, {sHST}, 10")
    e(f"v_lshrrev_b32 {vT0}, 4, {vL}"); e(f"v_lshlrev_b32 {vT0}, 3, {vT0}"); e(f"v_bfe_u32 {vT1}, {vL}, 2, 2"); e(f"v_add_u32 {vT0}, {vT0}, {vT1}")
    e(f"v_lshlrev_b32 {vT0}, 7, {vT0}"); e(f"v_and_b32 {vT1}, 3, {vL}"); e(f"v_lshl_add_u32 {vT0}, {vT1}, 3, {vT0}")
    e(f"s_lshl_b32 {sT2}, {sW}, 5"); e(f"s_add_u32 {sT2}, {sT2}, {LDS_P0}"); e(f"v_add_u32 {vP0R}, {sT2}, {vT0}")
    if not cfg.p0late:
        for s in range(NPRO, min(LA, cfg.npro2)): [issue(gr) for gr in dma_groups(s)]
    late_mark = len(g.L)
    e(f"s_mul_i32 {sPWA}, {sJ2}, 5"); e(f"s_lshr_b32 {sPWA}, {sPWA}, 2"); e(f"s_lshl_b32 {sPWA}, {sPWA}, 2"); e(f"s_add_u32 {sPWA}, {sPWA}, {sW}")
    e(f"s_lshl_b32 {sPWA}, {sPWA}, 7"); e(f"s_add_u32 {sPWA}, {sPWA}, {FW_OFF}")
    e(f"s_lshl_b32 {sPH}, {sB2}, 2"); e(f"s_add_u32 {sPH}, {sPH}, {sW}"); e(f"s_lshl_b32 {sPH}, {sPH}, 7"); e(f"s_add_u32 {sPH}, {sPH}, {FH_OFF}")
    for i in range(4):
        e(f"s_add_u32 {sT0}, {sW}, {1+i}"); e(f"s_and_b32 {sT0}, {sT0}, 3")
        if i < 3:
            e(f"s_mul_i32 {sT2}, {sT0}, {3*5120}"); e(f"s_add_u32 {sT2}, {sT2}, {i*5120}"); e(f"v_add_u32 {vRDW[i]}, {sT2}, {vL16}")
        e(f"s_lshl_b32 {sT1}, {sB2}, 8"); e(f"s_mul_i32 {sT2}, {sT0}, 48"); e(f"s_add_u32 {sT1}, {sT1}, {sT2}")
        e(f"s_mul_i32 {sT2}, {sW}, 12"); e(f"s_add_u32 {sT1}, {sT1}, {sT2}"); e(f"s_lshl_b32 {sT1}, {sT1}, 10")
        e(f"v_add_u32 {vH[i]}, {sT1}, {vL16}")
    e(f"s_mul_i32 {sT2}, {sW}, {3*5120}"); e(f"v_add_u32 {vRDR}, {sT2}, {vL16}")
    e(f"s_mul_i32 {sT2}, {sW}, 2816"); e(f"s_add_u32 {sT2}, {sT2}, {LDS_T}")
    e(f"v_and_b32 {vT0}, 15, {vL}"); e(f"v_mul_u32_u24 {vT0}, 176, {vT0}"); e(f"v_lshrrev_b32 {vT1}, 4, {vL}"); e(f"v_lshl_add_u32 {vT0}, {vT1}, 3, {vT0}")
    e(f"v_add_u32 {vTW}, {sT2}, {vT0}")
    vTRs = [vTR, vOUT, vDUM]
    for i in range(3):
        e(f"v_add_u32 {vT0}, {64*i}, {vL}"); e(f"v_mul_u32_u24 {vT1}, 205, {vT0}"); e(f"v_lshrrev_b32 {vT1}, 11, {vT1}")
        e(f"v_mul_u32_u24 {vT2}, 10, {vT1}"); e(f"v_sub_u32 {vT0}, {vT0}, {vT2}"); e(f"v_lshlrev_b32 {vT0}, 4, {vT0}")
        e(f"v_mul_u32_u24 {vT2}, 1280, {vT1}"); e(f"v_add_u32 {vOUT2[i]}, {vT2}, {vT0}")
        e(f"v_mul_u32_u24 {vT2}, 176, {vT1}"); e(f"v_add3_u32 v{42+i}, {vT2}, {vT0}, {sT2}")
    e(f"s_lshl_b32 {sT0}, {sJ2}, 2"); e(f"s_add_u32 {sT0}, {sT0}, {sW}"); e(f"s_mul_i32 {sT0}, {sT0}, {60*1024}"); e(f"s_add_u32 {sT0}, {sT0}, {W2P_OFF}")
    e(f"v_add_u32 {vW2A}, {sT0}, {vL16}"); e(f"v_add_u32 {vW2B}, 4096, {vW2A}")
    t0_of(sT0, sB2)
    if cfg.rk == 0: e(f"s_mov_b32 {sT1}, 0")
    elif cfg.rk == 1: e(f"s_and_b32 {sT1}, {sB2}, 1"); e(f"s_lshl_b32 {sT1}, {sT1}, 1")
    elif cfg.rk == 2: e(f"s_and_b32 {sT1}, {sB2}, 1"); e(f"s_lshl_b32 {sT1}, {sT1}, 1"); e(f"s_add_u32 {sT1}, {sT1}, {sJ2}")
    elif cfg.rk == 4: e(f"s_lshr_b32 {sT1}, {sB2}, 1")
    elif cfg.rk == 5: e(f"s_and_b32 {sT1}, {sB2}, 2")
    elif cfg.rk == 6: e(f"s_mov_b32 {sT1}, {sB2}")
    elif cfg.rk == 7: e(f"s_add_u32 {sT1}, {sB2}, {sJ2}")
    elif cfg.rk == 8: e(f"s_lshl_b32 {sT1}, {sJ2}, 1"); e(f"s_add_u32 {sT1}, {sT1}, {sB2}")
    elif cfg.rk == 3: e(f"s_add_u32 {sT1}, {sB2}, {sJ2}"); e(f"s_lshl_b32 {sT1}, {sT1}, 1")
    for kk in range(4):
        e(f"s_add_u32 {sT2}, {sT1}, {kk}"); e(f"s_and_b32 {sCNT}, {sT2}, 1"); e(f"s_bfe_u32 {sT2}, {sT2}, 0x10001"); e(f"s_mul_i32 {sT2}, {sT2}, 6")
        e(f"s_add_u32 {sT2}, {sT2}, {sCNT}"); e(f"s_lshl_b32 s{4+kk}, {sT2}, 10")
    for p in (2, 1, 0):
        if cfg.trot == 2:
            e(f"s_mov_b32 {sT2}, 2" if p == 2 else f"s_xor_b32 {sT2}, {sT0}, {p}"); e(f"s_lshl_b32 {sT2}, {sT2}, 11")
        else:
            e(f"s_add_u32 {sT2}, {sT0}, {p}"); e(f"s_sub_u32 {sCNT}, {sT2}, 3"); e(f"s_cmp_ge_u32 {sT2}, 3"); e(f"s_cselect_b32 {sT2}, {sCNT}, {sT2}"); e(f"s_lshl_b32 {sT2}, {sT2}, 11")
        for kk in range(4): e(f"s_add_u32 s{4+4*p+kk}, s{4+kk}, {sT2}")
    late_setup = []
    if cfg.late:
        late_setup = g.L[late_mark:]; del g.L[late_mark:]
    if cfg.p0late:
        for s in range(NPRO, min(LA, cfg.npro2)):
            if s == cfg.p0late:
                e(f"s_add_u32 m0, {sM0}, {LDS_P0}"); e(f"s_add_u32 {sT2}, s100, {8*1280-1024}")
                g.vmem(f"buffer_load_dwordx4 {vP0}, {SW2}, s100 offen lds", "p0")
                g.vmem(f"buffer_load_dwordx4 {vP0}, {SW2}, {sT2} offen offset:1024 lds", "p0")
            [issue(gr) for gr in dma_groups(s)]
    pend = []
    for s in range(max(NPRO, min(LA, cfg.npro2)), LA): pend.extend(dma_groups(s))

    g.stamp("setup")
    def flag_store(name, sreg, off, wide):
        e(f"s_cmp_lg_u32 {sW}, 0"); e(f"s_cbranch_scc1 L{name}")
        e("s_mov_b64 exec, 1")
        if wide: e(f"buffer_store_dwordx2 {vr(NON,2)}, off, {SWS}, {sreg} offset:{off} sc1")
        else: e(f"buffer_store_dword v{NON}, off, {SWS}, {sreg} sc1")
        e("s_mov_b64 exec, -1")
        g.label(f"L{name}")
    ld_non = f"buffer_load_dwordx2 {vr(NON,2)}, off, {SDBG}, 0 sc1"; cmp_non = f"v_cmp_eq_u32 vcc, 0, v{NON+1}"
    def spin_non():
        e(cmp_non); e(f"s_mov_b32 {sCNT}, 0"); e("s_nop 0"); e(f"s_cbranch_vccz Lnon_ok")
        g.label("Lnon")
        e(f"s_sleep {cfg.sleep}"); e(ld_non); e("s_waitcnt vmcnt(0)"); e(cmp_non)
        e(f"s_add_u32 {sCNT}, {sCNT}, 1"); e(f"s_cmp_gt_u32 {sCNT}, 200000"); e(f"s_cbranch_scc1 Lnon_ok")
        e(f"s_cbranch_vccnz Lnon")
        g.label("Lnon_ok")
        e(f"v_readfirstlane_b32 s70, v{NON}"); e(f"v_readfirstlane_b32 s71, v{NON+1}")
    ld_pw = f"s_load_dwordx8 s[16:23], {WSB}, {sPWA} glc\n    s_load_dwordx8 s[24:31], {WSB}, {sPWA} offset:512 glc"
    def s_check(name, reload, test):
        g.wait_lg0(); e(f"s_mov_b32 {sCNT}, 0")
        g.label(f"L{name}")
        test(); e(f"s_cbranch_scc1 L{name}_ok")
        e(f"s_sleep {cfg.sleep}"); e(reload); e("s_waitcnt lgkmcnt(0)")
        e(f"s_add_u32 {sCNT}, {sCNT}, 1"); e(f"s_cmp_lt_u32 {sCNT}, 400000"); e(f"s_cbranch_scc1 L{name}")
        g.label(f"L{name}_ok")
    def test_pw():
        e("s_xor_b64 s[16:17], s[16:17], s[18:19]"); e("s_xor_b64 s[18:19], s[18:19], s[20:21]"); e("s_xor_b64 s[22:23], s[20:21], s[24:25]")
        e("s_xor_b64 s[24:25], s[24:25], s[26:27]"); e("s_xor_b64 s[26:27], s[26:27], s[28:29]"); e("s_xor_b32 s30, s28, s29"); e("s_xor_b32 s31, s28, s70")
        e("s_or_b64 s[16:17], s[16:17], s[18:19]"); e("s_or_b64 s[22:23], s[22:23], s[24:25]"); e("s_or_b64 s[26:27], s[26:27], s[30:31]")
        e("s_or_b64 s[16:17], s[16:17], s[22:23]"); e("s_or_b64 s[16:17], s[16:17], s[26:27]"); e("s_cmp_eq_u64 s[16:17], 0")
    def test_ph():
        e(f"s_xor_b64 s[16:17], s[16:17], {sNON}"); e(f"s_xor_b64 s[18:19], s[18:19], {sNON}"); e("s_or_b64 s[16:17], s[16:17], s[18:19]"); e("s_cmp_eq_u64 s[16:17], 0")
    ld_ph = f"s_load_dwordx4 s[16:19], {WSB}, {sPH} glc"

    def wblk(s):
        out = []
        for t in range(5):
            a = 4 * (5 * s + t)
            pre = [f"s_mul_i32 {sXB}, s{4+s}, 5"] if t == 0 else []
            if t < 4: out.append(("W", pre, f"buffer_load_dwordx4 a[{a}:{a+3}], {vW2A}, {SWS}, {sXB} offen offset:{1024*t} sc1", f"w{s}"))
            else: out.append(("W", pre, f"buffer_load_dwordx4 a[{a}:{a+3}], {vW2B}, {SWS}, {sXB} offen sc1", f"w{s}"))
        return out
    stream = []; groups = []
    KT = cfg.kt; OD = cfg.od
    nw = 0
    for s in range(KT):
        ld = round(cfg.lead + (cfg.leadz - cfg.lead) * s / max(1, KT - 1))
        while nw < min(12, s + ld): stream += wblk(nw); nw += 1
        for i in range(4):
            if not (i == 3 and s >= cfg.ol): stream.append(("H", s, i))
            if i < 3 or s < OD: groups.append((s, i))
    while nw < 12: stream += wblk(nw); nw += 1
    for i in range(4):
        if i == 3:
            for s in range(OD, KT): groups.append((s, 3))
            for s in range(cfg.ol, KT): stream.append(("H", s, 3))
        for s in range(KT, 12): stream.append(("H", s, i)); groups.append((s, i))
    wpos = {}
    for p in (2, 1, 0):
        idx = stream.index(("H", 4 * p, 0))
        stream.insert(idx, ("C", p))
        stream.insert(max(0, idx - (cfg.pd if p else cfg.pd0)), ("P", p))
    hbuf = {}; hcount = [0]
    def stream_issue(allow_h=True):
        it = stream[0]
        if it[0] == "W":
            stream.pop(0)
            for t in it[1]: e(t)
            g.vmem(it[2], it[3]); return True
        if it[0] == "P" and not allow_h and cfg.holdp:
            if len(stream) > 1 and stream[1][0] == "W":
                stream[0], stream[1] = stream[1], stream[0]
                return stream_issue(allow_h)
            return False
        if it[0] == "P":
            stream.pop(0)
            if it[1]: e(f"s_add_u32 {sPH}, {sPH}, 16")
            e(ld_ph); g.lgmax = 13
            return stream_issue(allow_h)
        if not allow_h: return False
        if it[0] == "C":
            stream.pop(0); g.stamp(f"c{it[1]}a"); s_check(f"ph{it[1]}", ld_ph, test_ph); g.stamp(f"c{it[1]}b"); return stream_issue()
        _, s, i = stream.pop(0)
        while hcount[0] % NHB in hbuf.values(): hcount[0] += 1
        b = hcount[0] % NHB; hcount[0] += 1
        hbuf[(s, i)] = b
        g.vmem(f"buffer_load_dwordx4 {vr(HB+4*b,4)}, {vH[i]}, {SWS}, s{4+s} offen sc1", f"h{s}_{i}")
        return True

    NSTEP = 120
    def stage_of(n): return n // 4 if n < 40 else 10 + (n - 40) // 8
    def first_step(s): return 4 * s if s < 10 else 40 + 8 * (s - 10)
    def last_step(s): return first_step(s + 1) - 1
    def DD(n): return cfg.d0 if n < 40 else cfg.d1
    def reads(n):
        s = stage_of(n); slot = s % R; hi = slot >> 2; base = (slot & 3) * SLOT
        q = n % 4; out = []
        if n < 40:
            out.append(f"ds_read_b128 {xreg(n)}, v{vRX[hi][q]} offset:{base}"); wb = base + 8192
        else: wb = base + 8192 * (((n - 40) % 8) // 4)
        for half in range(2):
            out.append(f"ds_read_b64_tr_b16 {vr(WF+4*(n%8)+2*half,2)}, v{vRW[hi]} offset:{wb+(16*q+4*half)*128}")
        return out
    w2_ok = [False]; early = [cfg.n0]; done_step = [-1]; flagged = set(); issued_tags = set()
    def barrier(s):
        tags = [f"st{s}"]
        if s == cfg.p0s: tags.append("p0")
        if s == cfg.flagw: tags += ["p0st"]
        for p in (0, 1):
            if s == cfg.fh[p]: tags.append(f"hst{p}")
        while pend and int(pend[0][2][2:]) <= s: issue(pend.pop(0))
        g.wait_vm(*tags)
        e("s_barrier")
        g.stamp(f"b{s}")
        if s == cfg.p0s:
            for kk in range(2):
                for half in range(2): g.lds(f"ds_read_b64_tr_b16 {vr(ACC1+16+4*kk+2*half,2)}, {vP0R} offset:{half*512+kk*4096}", "p0r")
            e(f"s_add_u32 {sT0}, {sP0A}, 5120")
            g.wait_lg("p0r")
            if not cfg.xp0st:
                g.vmem(f"buffer_store_dwordx4 {vr(ACC1+16,4)}, {vL16}, {SWS}, {sP0A} offen sc1", "p0st")
                g.vmem(f"buffer_store_dwordx4 {vr(ACC1+20,4)}, {vL16}, {SWS}, {sT0} offen sc1", "p0st")
        if s == cfg.nons: e(f"s_load_dwordx2 {sNON}, s[24:25], 0"); g.lgmax = 13
        if s == cfg.nons + 2:
            s_check("non", f"s_load_dwordx2 {sNON}, s[24:25], 0 glc", lambda: e("s_cmp_lg_u32 s71, 0")); g.lgmax = 15
            e(f"v_mov_b32 v{NON}, s70"); e(f"v_mov_b32 v{NON+1}, s71")
        if s == cfg.flagw: assert cfg.nons + 2 <= s; flag_store("nf1", sFW, 0, False)
        if s == cfg.pollw: assert not any(int(x[2][2:]) < 10 for x in pend) and s + LA > 10 and s > cfg.flagw; e(ld_pw.replace(' glc', '') if cfg.pwc else ld_pw); g.lgmax = 11
        if s == cfg.pollw + cfg.pgap:
            g.stamp("pwa"); s_check("pw", ld_pw, test_pw); w2_ok[0] = True; g.lgmax = 15; g.stamp("pwb")
        for p in (0, 1):
            if s == cfg.fh[p]: assert f"hst{p}" in issued_tags; flag_store(f"nh{p}", sFH, 16 * p, True); flagged.add(p)
        ns = s + LA
        if ns < NST:
            old = ns - R
            assert old < 0 or last_step(old) <= done_step[0], (s, old, done_step[0])
            pend.extend(dma_groups(ns))
    def slot_issue():
        if pend: issue(pend.pop(0))
        elif w2_ok[0] and early[0] > 0 and stream_issue(allow_h=False): early[0] -= 1
    def epilogue_ops(p):
        a = ACC1 + 16 * (p & 1); ops = []
        for i in range(8): ops.append(("v", f"v_cvt_pk_bf16_f32 v{a+i}, v{a+2*i}, v{a+2*i+1}"))
        for i in range(8): ops.append(("v", f"v_pk_max_i16 v{a+i}, v{a+i}, 0"))
        ops.append(("v", f"s_lshl_b32 {sT1}, {sTP}, 11")); ops.append(("v", f"s_add_u32 {sT1}, {sT1}, {sHST}"))
        for c in range(2): ops.append(("m", f"buffer_store_dwordx4 {vr(a+4*c,4)}, {vHST}, {SWS}, {sT1} offen offset:{c*512} sc1", f"hst{p}"))
        if cfg.trot == 2: ops += [("v", f"s_xor_b32 {sTP}, {sTP}, 1" if p == 0 else f"s_mov_b32 {sTP}, 2")]
        else: ops += [("v", f"s_add_u32 {sTP}, {sTP}, 1"), ("v", f"s_cmp_eq_u32 {sTP}, 3\n    s_cselect_b32 {sTP}, 0, {sTP}")]
        return ops
    def run_ops(ops, k):
        for _ in range(k):
            if not ops: return
            o = ops.pop(0)
            if o[0] == "v": e(o[1])
            else: g.vmem(o[1], o[2]); issued_tags.add(o[2])
    nread = [0]
    def issue_reads_upto(m):
        while nread[0] <= min(m, NSTEP - 1):
            n = nread[0]
            assert n - 8 <= done_step[0]
            if n == first_step(stage_of(n)): barrier(stage_of(n))
            for t in reads(n): g.lds(t, f"r{n}")
            nread[0] += 1
    issue_reads_upto(cfg.d0 - 1)
    if cfg.late == 1:
        for _ in range(cfg.lateq): slot_issue()
        g.L.extend(late_setup); late_setup = []
    ep = []
    for n in range(NSTEP):
        p = n // 40
        if n < 40 or not cfg.w2: g.wait_lg(f"r{n}")
        elif n % 2 == 0: g.wait_lg(f"r{n}", f"r{n+1}")
        a = vr(ACC1 + 16 * (p & 1), 16)
        if cfg.fake16:
            ab = ACC1 + 16 * (p & 1) + 8 * (n & 1)
            z = n % 40 < 2
            e(f"v_mfma_f32_16x16x32_bf16 {vr(ab,4)}, {vr(WF+4*(n%8),4)}, {xreg((n&~1)%40)}, {'0' if z else vr(ab,4)}")
            mid16 = f"v_mfma_f32_16x16x32_bf16 {vr(ab+4,4)}, {vr(WF+4*(n%8),4)}, {xreg((n|1)%40)}, {'0' if z else vr(ab+4,4)}"
        else:
            e(f"v_mfma_f32_32x32x16_bf16 {a}, {vr(WF+4*(n%8),4)}, {xreg(n%40)}, {'0' if n % 40 == 0 else a}")
        done_step[0] = n
        tgt = min(n + DD(n + 1), nread[0] + 1)
        while len(g.lg) + sum(len(reads(k)) for k in range(nread[0], min(tgt, NSTEP - 1) + 1)) > g.lgmax: tgt -= 1
        tgt = max(tgt, min(n + 2, NSTEP - 1))
        issue_reads_upto(tgt)
        if cfg.fake16: e(mid16)
        if n < 40:
            slot_issue()
            if len(pend) > 4: slot_issue()
        elif n % 2 == 1 or len(pend) > 4: slot_issue()
        if n % 40 == 3 and p > 0: ep = epilogue_ops(p - 1)
        run_ops(ep, cfg.epr)
        if cfg.late > 1 and n == cfg.late: g.L.extend(late_setup); late_setup = []
    g.stamp("p1end")
    assert not pend and w2_ok[0]
    if stream[0][0] == "P": stream_issue()
    for _ in range(2): stream_issue(allow_h=False)
    e("s_nop 7"); e("s_nop 3")
    ep = epilogue_ops(2); run_ops(ep, 100)
    pos = [0]; hpos = {}
    def emit_group(s, i, extra):
        acc = ACC2 + 20 * i; b = hbuf[(s, i)]
        g.wait_vm(f"h{s}_{i}", f"w{s}")
        for t in range(5):
            a = 4 * (5 * s + t)
            cc = "0" if s == 0 else vr(acc+4*t,4)
            e(f"v_mfma_f32_16x16x32_bf16 {vr(acc+4*t,4)}, a[{a}:{a+3}], {vr(HB+4*b,4)}, {cc}")
            for x in extra[t]: x()
    nafter = 0; first = True; lastdone = [None]; st = [0]
    while stream or groups:
        if stream:
            stream_issue(); pos[0] += 1; nafter += 1
            if pos[0] % 6 == 0: g.stamp(f"q{pos[0]}")
            for k in hbuf:
                if k not in hpos: hpos[k] = pos[0]
            if g.vm and g.vm[-1].startswith("w"): wpos[int(g.vm[-1][1:])] = pos[0]
            for p, nn in ((1, cfg.n1a), (2, cfg.n1)):
                if p not in flagged and nafter >= nn:
                    g.wait_vm(f"hst{p}"); g.stamp(f"hst{p}"); e("s_barrier"); flag_store(f"nh{p}", sFH, 16 * p, True); flagged.add(p)
        if groups and groups[0] in hpos and (not stream or max(hpos[groups[0]], wpos.get(groups[0][0], -99)) <= pos[0] - cfg.depth):
            s, i = groups[0]
            extra = [[] for _ in range(5)]
            W = lambda t, ii: (lambda: g.lds(f"ds_write_b128 {vRDW[ii]}, {vr(ACC2+20*ii+4*t,4)} offset:{1024*t}", "rw"))
            Rd = lambda k, u: (lambda: g.lds(f"ds_read_b128 {vr(ACC2+20*k+4*u,4)}, {vRDR} offset:{5120*k+1024*u}", f"rr{k}"))
            A = lambda r, k: (lambda: e(f"v_add_f32 v{ACC2+r}, v{ACC2+r}, v{ACC2+20*k+r}"))
            left = len(groups)
            nown = 12 - OD
            if lastdone[0] is not None:
                ii = lastdone[0]; lastdone[0] = None
                for t in range(5): extra[min(4, t + 3)].append(W(t, ii))
                if ii == 2: st[0] = 1
            elif st[0] == 1:
                extra[3].append(lambda: (g.wait_lg0(), e("s_barrier")))
                for q in range(15): extra[3 + (q >= 7)].append(Rd(q // 5, q % 5))
                st[0] = 2
            elif st[0] == 2 and left == 2:
                extra[1].append(lambda: g.wait_lg("rr1"))
                for r in range(20): extra[1 + r // 5].append(A(r, 1))
                st[0] = 3
            elif st[0] == 3:
                extra[0].append(lambda: g.wait_lg0())
                for r in range(20): extra[r // 4].append(A(r, 2))
                st[0] = 4
            if s == 11 and i < 3: lastdone[0] = i
            emit_group(s, i, extra)
            groups.pop(0); del hbuf[(s, i)]
            if first: g.stamp("g0"); first = False
            if not stream and len(groups) % 3 == 0: g.stamp(f"G{len(groups)}")
    assert flagged == {0, 1, 2} and st[0] == 4, st
    g.stamp("mfend")
    acc = ACC2 + 60; PR = ACC2
    g.wait_lg0()
    for t in range(5):
        if True:
            if t == 0: e("s_nop 3")
            for r in (0, 2): e(f"v_pk_add_f32 {vr(PR+4*t+r,2)}, {vr(PR+4*t+r,2)}, {vr(acc+4*t+r,2)}")
        else:
            for r in range(4): e(f"v_add_f32 v{PR+40+4*t+r}, v{PR+40+4*t+r}, v{acc+4*t+r}"); e(f"v_add_f32 v{PR+4*t+r}, v{PR+4*t+r}, v{PR+40+4*t+r}")
        e(f"v_cvt_pk_bf16_f32 v{PR+20+2*t}, v{PR+4*t}, v{PR+4*t+1}"); e(f"v_cvt_pk_bf16_f32 v{PR+21+2*t}, v{PR+4*t+2}, v{PR+4*t+3}")
        e(f"ds_write_b64 {vTW}, {vr(PR+20+2*t,2)} offset:{32*t}")
    e("s_waitcnt lgkmcnt(0)")
    for i in range(3): e(f"ds_read_b128 {vr(PR+40+4*i,4)}, v{42+i}")
    for i in range(3):
        e(f"s_waitcnt lgkmcnt({2-i})")
        if i == 2: e("s_mov_b32 exec_hi, 0")
        e(f"buffer_store_dwordx4 {vr(PR+40+4*i,4)}, {vOUT2[i]}, {SOUT}, {sOUT} offen {cfg.outsc}")
    if cfg.prof:
        e("s_waitcnt vmcnt(0)"); g.stamp("end"); e("s_memrealtime s[74:75]"); e("s_waitcnt lgkmcnt(0)")
        e(f"s_lshl_b32 {sT0}, s2, 2"); e(f"s_add_u32 {sT0}, {sT0}, {sW}"); e(f"s_lshl_b32 {sT0}, {sT0}, 7"); e(f"s_add_u32 {sT0}, {sT0}, {PROF_OFF}")
        if cfg.prof == 2:
            for k in range(max(0, g.nstamp - 4), g.nstamp): e(f"v_writelane_b32 v47, s{76+2*(k%8)}, {k}")
            e("s_mov_b64 exec, -1"); e(f"s_lshl_b32 {sT1}, s2, 2"); e(f"s_add_u32 {sT1}, {sT1}, {sW}"); e(f"s_lshl_b32 {sT1}, {sT1}, 8"); e(f"s_add_u32 {sT1}, {sT1}, {PROF_OFF + 0x100000}")
            e(f"v_lshlrev_b32 v24, 2, {vL}"); e(f"buffer_store_dword v47, v24, {SWS}, {sT1} offen"); e("s_nop 1")
            g.L.append("; STAMPS " + " ".join(g.names)); g.nstamp = 0
        e("s_mov_b64 exec, 1")
        regs = ["s72", "s74"] + [f"s{76+2*i}" for i in range(g.nstamp)]
        for i, r in enumerate(regs):
            e(f"v_mov_b32 v24, {r}"); e(f"buffer_store_dword v24, off, {SWS}, {sT0} offset:{4*i}"); e("s_nop 1")
    if cfg.probe:
        e("s_waitcnt vmcnt(0)"); g.stamp("end"); e("s_mov_b64 exec, -1"); e("s_waitcnt lgkmcnt(0)")
        e("s_add_u32 s80, s70, 3000" if cfg.probe == "non" else "s_add_u32 s80, s78, 3000")
        g.label("Lpr")
        for i in range(4): e(f"buffer_load_dwordx4 v[80:83], {vW2A}, {SWS}, s{4+i} offen")
        e("s_memrealtime s[82:83]"); e("s_waitcnt vmcnt(0) lgkmcnt(0)"); e("s_sub_u32 s84, s80, s82"); e("s_cmp_gt_i32 s84, 0"); e("s_cbranch_scc1 Lpr")
    if cfg.delay:
        e(f"s_mov_b32 {sCNT}, 0"); g.label("Ldel"); e("s_nop 15"); e("s_nop 15"); e("s_nop 15"); e("s_nop 15"); e(f"s_add_u32 {sCNT}, {sCNT}, 1"); e(f"s_cmp_lt_u32 {sCNT}, {cfg.delay}"); e("s_cbranch_scc1 Ldel")
    if cfg.xhit:
        e("s_mov_b64 exec, -1"); e(f"s_mov_b32 {sCNT}, 0"); g.label("Lxh")
        for i in range(12): e(f"buffer_load_dwordx4 v[80:83], {vW2A}, {SWS}, s{4+i} offen"); e(f"buffer_load_dwordx4 v[80:83], {vH[i%4]}, {SWS}, s{4+i} offen"); e(f"buffer_load_dwordx4 v[80:83], {vH[(i+1)%4]}, {SWS}, s{4+i} offen")
        e("s_waitcnt vmcnt(12)"); e(f"s_add_u32 {sCNT}, {sCNT}, 1"); e(f"s_cmp_lt_u32 {sCNT}, {cfg.xhit}"); e("s_cbranch_scc1 Lxh")
        e("s_waitcnt vmcnt(0)")
    g.label("Lend")
    body = "\n".join(g.L)
    pf = ".set CODE_END_PF, Lend - Lpc\n" if cfg.cpf else ""
    return f"""{HDR}; @launch grid=(256,1,1) block=(256,1,1) lds={lds_bytes}
.amdgcn_target "amdgcn-amd-amdhsa--gfx950"
.text
.globl {KN}
.p2align 8
.type {KN},@function
{DOC}{KN}:
{body}
    s_endpgm
{pf}.section .rodata,"a"
.p2align 6
.amdhsa_kernel {KN}
  .amdhsa_next_free_vgpr 512
  .amdhsa_next_free_sgpr 102
  .amdhsa_accum_offset 256
  .amdhsa_group_segment_fixed_size 0
  .amdhsa_kernarg_size 48
  .amdhsa_user_sgpr_count 2
  .amdhsa_user_sgpr_kernarg_segment_ptr 1
  .amdhsa_system_sgpr_workgroup_id_x 1
.end_amdhsa_kernel
"""

def parser():
    ap = argparse.ArgumentParser()
    ap.add_argument("-o", default="k.s"); ap.add_argument("--prof", type=int, default=0)
    ap.add_argument("--p1", default="B"); ap.add_argument("--p2", default="B")
    for name, d in (("r1", 9), ("trot", 1), ("tsh", 3), ("rk", 6), ("LA", 4), ("npro", 3), ("npro2", 3), ("p0first", 0), ("p0s", 3), ("flagw", 7), ("pollw", 14), ("pgap", 2),
                    ("sleep", 4), ("n0", 20), ("n1a", 12), ("n1", 24), ("lead", 6), ("own0", 4), ("pd", 8), ("pd0", 12), ("depth", 12), ("d0", 3), ("d1", 6),
                    ("fh0", 16), ("fh1", 99), ("cpf", 0), ("warm", 0), ("w2", 1), ("both", 0), ("nons", 3), ("ol", 8), ("late", 0), ("lateq", 4), ("p0late", 0), ("epr", 2), ("kt", 12), ("od", 8), ("leadz", 1), ("hx", 0), ("fake16", 0), ("xcold", 0), ("xhit", 0), ("delay", 0), ("holdp", 1), ("pwc", 1), ("tail2", 1), ("nocomp", 0), ("xp0st", 0), ("xp0ld", 0)):
        ap.add_argument("--" + name, type=int, default=d)
    ap.add_argument("--outsc", default=""); ap.add_argument("--probe", default="")
    ap.add_argument("--stamps", default="start,b0,b5,b10,b15,p1end,c0b,g0,c1b,c2b,mfend,end")
    return ap
if __name__ == "__main__":
    cfg = parser().parse_args()
    cfg.fh = [cfg.fh0, cfg.fh1]; cfg.stamps = cfg.stamps.split(",")
    open(cfg.o, "w").write(gen(cfg))
```

```python
import sys, argparse

KN = "standalone__dense_activation_relu__prompt_kernel"
HDR = """; Kernarg layout for this problem (48 bytes, ptrs only, base s[0:1]):
"""
DOC = """; out = relu(x @ w1) @ w2, one launch, 256 workgroups x 4 waves (one workgroup per CU).
; Hand-offs: write-through stores, counted vmcnt, barrier, then a flag tagged with a per-launch nonce
"""
HBAND = 256 << 10
W2P_OFF = 8 << 20
FW_OFF = W2P_OFF + (1920 << 10)
FH_OFF = FW_OFF + 8192
PROF_OFF = 0x8000000
WS_USED = 0x10000000

class G:
    def __init__(s, cfg):
        s.L = []; s.vm = []; s.lg = []; s.cfg = cfg; s.nstamp = 0; s.lgmax = 15; s.names = []
    def e(s, t):
        if s.cfg.swapab and t.startswith("v_mfma") and ((s.cfg.swapab & 1 and "32x32" in t) or (s.cfg.swapab & 2 and "16x16" in t)):
            op, rest = t.split(" ", 1); d, a, b, c = [x.strip() for x in rest.split(",")]; t = f"{op} {d}, {b}, {a}, {c}"
        if s.cfg.nocomp & 1 and t.startswith("v_mfma"): return
        if s.cfg.nocomp & 2 and (t.startswith("ds_read_b64_tr_b16 v[2") or t.startswith("ds_read_b128")): return
        if s.cfg.nocomp & 4 and t.startswith("v_mfma_f32_32x32x16"):
            import re
            m = re.match(r"v_mfma_f32_32x32x16_bf16 v\[(\d+):\d+\], (\S+), (\S+), ", t)
            d = int(m.group(1))
            s.flip = getattr(s, "flip", 0) ^ 1
            for h in range(2):
                dd = d + 8 * s.flip + 4 * h
                s.L.append(f"    v_mfma_f32_16x16x32_bf16 v[{dd}:{dd+3}], {m.group(2)}, {m.group(3)}, v[{dd}:{dd+3}]")
            return
        s.L.append("    " + t)
    def label(s, n): s.L.append(n + ":")
    def vmem(s, t, tag): s.e(t); s.vm.append(tag)
    def lds(s, t, tag): s.e(t); s.lg.append(tag); assert len(s.lg) <= 15, s.lg
    def wait_vm(s, *tags):
        idxs = [i for i, t in enumerate(s.vm) if t in tags]
        if not idxs: return
        idx = max(idxs); n = len(s.vm) - 1 - idx
        assert n <= 63, n
        s.e(f"s_waitcnt vmcnt({n})"); s.vm = s.vm[idx + 1:]
    def wait_lg(s, *tags):
        idxs = [i for i, t in enumerate(s.lg) if t in tags]
        if not idxs: return
        idx = max(idxs); n = len(s.lg) - 1 - idx
        s.e(f"s_waitcnt lgkmcnt({n})"); s.lg = s.lg[idx + 1:]
    def wait_lg0(s): s.e("s_waitcnt lgkmcnt(0)"); s.lg = []
    def stamp(s, name):
        if s.cfg.probe and name == "start": s.e("s_memrealtime s[76:77]")
        if s.cfg.probe == name: s.e("s_memrealtime s[78:79]")
        if s.cfg.prof == 2:
            k = s.nstamp; assert k < 64
            if k >= 4: s.e(f"v_writelane_b32 v47, s{76+2*((k-4)%8)}, {k-4}")
            r = 76 + 2 * (k % 8)
            if s.cfg.both:
                if name not in s.cfg.stamps: return
                s.e(f"s_memtime s[{r}:{r+1}] ; {name}"); s.nstamp += 1; s.names.append(name)
                k = s.nstamp
                if k >= 4: s.e(f"v_writelane_b32 v47, s{76+2*((k-4)%8)}, {k-4}")
                r = 76 + 2 * (k % 8)
                s.e(f"s_memrealtime s[{r}:{r+1}] ; {name}"); s.nstamp += 1; s.names.append(name + "_rt")
                return
            s.e(f"s_memtime s[{r}:{r+1}] ; {name}"); s.nstamp += 1; s.names.append(name)
        elif s.cfg.prof and name in s.cfg.stamps:
            r = 76 + 2 * s.nstamp; assert r + 1 < 100
            s.e(f"s_memtime s[{r}:{r+1}] ; {name}"); s.nstamp += 1

SX, SW2, SDBG, SWS, SW1, SOUT = "s[16:19]", "s[20:23]", "s[24:27]", "s[32:35]", "s[36:39]", "s[40:43]"
WSB = "s[32:33]"; sNON = "s[70:71]"
sW, sB1, sJ1, sB2, sJ2, sFW = "s44", "s28", "s29", "s30", "s31", "s45"
sXB, sFH, sKS, sT0, sT1, sT2, sM0 = "s46", "s47", "s48", "s49", "s50", "s51", "s52"
sHST, sTP, sCNT, sP0A, sPWA, sTD, sOUT = "s53", "s54", "s55", "s56", "s57", "s58", "s59"
sDA, sPH, sT3 = "s0", "s1", "s3"
KW = 60
vL = "v1"; vX = ["v2", "v3"]; vW = ["v4", "v5"]; vP0 = "v6"; vL16 = "v7"
vRX = [[8, 9, 10, 11], [12, 13, 14, 15]]; vRW = [16, 17]
vHST, vOUT, vTW, vTR, vT0, vT1, vT2 = "v18", "v19", "v20", "v21", "v22", "v23", "v24"
vRDW = ["v25", "v26", "v27"]; vRDR, vP0R, vW2A, vW2B = "v28", "v29", "v30", "v31"
vH = ["v32", "v33", "v34", "v35"]; NON = 36; vOUT2 = ["v38", "v39", "v40"]; vDUM = "v41"
ACC1 = 48; XR = 80; WF = 224; HB = 80; NHB = 24; ACC2 = 176
def vr(a, n): return f"v[{a}:{a+n-1}]"
def xreg(n): return vr(XR + 4 * n, 4) if n < 36 else f"a[{240+4*(n-36)}:{240+4*(n-36)+3}]"

def gen(cfg):
    g = G(cfg); e = g.e
    R = 8; LA = cfg.LA; NST = 20; SLOT = 16384
    LDS_P0 = R * SLOT
    lds_bytes = LDS_P0 + 8192
    LDS_T = 65536
    def mod3(dst, src, tmp):
        e(f"s_mul_i32 {tmp}, {src}, 86"); e(f"s_lshr_b32 {tmp}, {tmp}, 8"); e(f"s_mul_i32 {tmp}, {tmp}, 3"); e(f"s_sub_u32 {dst}, {src}, {tmp}")
    e("s_cmp_ge_u32 s2, 256"); e("s_cbranch_scc1 Lend")
    e("s_load_dwordx4 s[4:7], s[0:1], 0"); e("s_load_dwordx4 s[8:11], s[0:1], 16"); e("s_load_dwordx4 s[12:15], s[0:1], 32")
    e("s_memrealtime s[100:101]")
    g.stamp("start")
    if cfg.probe == "karg": e("s_waitcnt lgkmcnt(0)"); g.stamp("karg")
    if cfg.prof: e("s_memrealtime s[72:73]")
    e(f"v_lshrrev_b32 {vT0}, 6, v0"); e(f"v_and_b32 {vL}, 63, v0"); e(f"s_and_b32 {sT0}, s2, 7"); e(f"v_readfirstlane_b32 {sW}, {vT0}")
    e(f"s_lshr_b32 {sT1}, s2, 3")
    def part(kind, sb, sj):
        if kind == "A":
            e(f"s_lshl_b32 {sb}, {sT0}, 2"); e(f"s_lshr_b32 {sT2}, {sT1}, 3"); e(f"s_add_u32 {sb}, {sb}, {sT2}"); e(f"s_and_b32 {sj}, {sT1}, 7")
        else:
            e(f"s_lshr_b32 {sb}, {sT0}, 1"); e(f"s_lshl_b32 {sb}, {sb}, 3"); e(f"s_lshr_b32 {sT2}, {sT1}, 2"); e(f"s_add_u32 {sb}, {sb}, {sT2}")
            e(f"s_and_b32 {sj}, {sT0}, 1"); e(f"s_lshl_b32 {sj}, {sj}, 2"); e(f"s_and_b32 {sT2}, {sT1}, 3"); e(f"s_add_u32 {sj}, {sj}, {sT2}")
    part(cfg.p1, sB1, sJ1)
    def t0_of(dst, band):
        if cfg.trot == 2: e(f"s_and_b32 {dst}, {band}, 1")
        elif cfg.trot: e(f"s_lshr_b32 {dst}, {band}, {cfg.tsh}"); mod3(dst, dst, sT2)
        else: e(f"s_mov_b32 {dst}, 0")
    t0_of(sTD, sB1)
    if cfg.trot == 2:
        e(f"s_lshr_b32 {sKS}, {sB1}, 1"); e(f"s_add_u32 {sKS}, {sKS}, {sJ1}"); e(f"s_and_b32 {sKS}, {sKS}, {cfg.r1-1}"); e(f"s_lshl_b32 {sKS}, {sKS}, 1"); e(f"s_add_u32 {sKS}, {sKS}, {sTD}")
        e(f"s_mul_i32 {sKS}, {sKS}, 10"); e(f"s_lshr_b32 {sKS}, {sKS}, {cfg.r1.bit_length()}")
    elif cfg.r1 == 10:
        e(f"s_lshl_b32 {sKS}, {sJ1}, 1"); e(f"s_add_u32 {sKS}, {sKS}, {sB1}"); e(f"s_and_b32 {sKS}, {sKS}, 7"); e(f"s_mul_i32 {sKS}, {sKS}, 5"); e(f"s_lshr_b32 {sKS}, {sKS}, 3")
        if cfg.hx == 0: e(f"s_and_b32 {sCNT}, {sT0}, 1")
        elif cfg.hx == 1: e(f"s_lshr_b32 {sCNT}, {sT0}, 2"); e(f"s_xor_b32 {sCNT}, {sCNT}, {sT0}"); e(f"s_and_b32 {sCNT}, {sCNT}, 1")
        else: e(f"s_mov_b32 {sCNT}, 0")
        e(f"s_mul_i32 {sCNT}, {sCNT}, 5"); e(f"s_add_u32 {sKS}, {sKS}, {sCNT}"); e(f"s_add_u32 {sOUT}, {sCNT}, 5")
    elif cfg.r1 == 9:
        e(f"s_lshl_b32 {sKS}, {sJ1}, 1"); e(f"s_add_u32 {sKS}, {sKS}, {sB1}"); e(f"s_and_b32 {sKS}, {sKS}, 7"); e(f"s_mul_i32 {sKS}, {sKS}, 10"); e(f"s_lshr_b32 {sKS}, {sKS}, 3")
    elif cfg.r1 > 1:
        e(f"s_add_u32 {sKS}, {sB1}, {sJ1}"); e(f"s_and_b32 {sKS}, {sKS}, {cfg.r1-1}"); e(f"s_mul_i32 {sKS}, {sKS}, 10"); e(f"s_lshr_b32 {sKS}, {sKS}, {cfg.r1.bit_length()-1}")
    else: e(f"s_mov_b32 {sKS}, 0")
    e(f"s_mul_i32 {sXB}, {sB1}, {64*1280}"); e(f"s_mul_i32 {sT3}, {sJ1}, 384"); e(f"s_mov_b32 {sTP}, {sTD}")
    e(f"s_lshl_b32 {sT2}, {sTD}, 7"); e(f"s_add_u32 {sT3}, {sT3}, {sT2}")
    e(f"s_lshl_b32 {sM0}, {sW}, 11")
    e(f"v_lshrrev_b32 {vT0}, 3, {vL}"); e(f"s_lshl_b32 {sT2}, {sW}, 4"); e(f"v_add_u32 {vT0}, {sT2}, {vT0}")
    e(f"v_mul_u32_u24 {vP0}, 1280, {vT0}"); e(f"v_mul_u32_u24 {vW[1]}, 3072, {vT0}")
    e(f"v_and_b32 {vT1}, 7, {vL}"); e(f"v_lshrrev_b32 {vT2}, 4, {vL}"); e(f"v_xor_b32 {vT0}, {vT1}, {vT2}")
    e(f"v_lshl_add_u32 {vX[0]}, {vT0}, 4, {vP0}")
    e(f"v_xor_b32 {vT0}, 4, {vT0}"); e(f"v_lshl_add_u32 {vX[1]}, {vT0}, 4, {vP0}"); e(f"v_add_u32 {vX[1]}, {8*1280-1024}, {vX[1]}")
    e(f"v_lshl_add_u32 {vP0}, {vT1}, 4, {vP0}")
    e(f"v_and_b32 {vT2}, 1, {vT2}"); e(f"v_lshlrev_b32 {vT2}, 2, {vT2}"); e(f"v_xor_b32 {vT1}, {vT1}, {vT2}")
    e(f"v_add_u32 {vW[1]}, {sT3}, {vW[1]}")
    e(f"v_lshl_add_u32 {vW[0]}, {vT1}, 4, {vW[1]}"); e(f"v_add_u32 {vW[1]}, {8*3072-1024}, {vW[0]}")
    for srd, n in ((16, 2621440), (36, 1966080), (20, 1966080), (24, 256)):
        e(f"s_mov_b32 s{srd+2}, {n}"); e(f"s_mov_b32 s{srd+3}, 0x00020000")
    e(f"s_lshl_b32 {sFH}, {sB1}, 3"); e(f"s_add_u32 {sFH}, {sFH}, {sJ1}")
    e(f"s_sub_u32 {sHST}, {sFH}, 16"); e(f"s_cmp_lt_u32 {sFH}, 240"); e(f"s_cselect_b32 {sHST}, {sFH}, {sHST}")
    e(f"s_mul_i32 {sPWA}, {sHST}, 2731"); e(f"s_lshr_b32 {sPWA}, {sPWA}, 16")
    e(f"s_mul_i32 {sT2}, {sPWA}, 24"); e(f"s_sub_u32 {sHST}, {sHST}, {sT2}")
    e(f"s_mul_i32 {sT2}, {sHST}, {64*1280}"); e(f"s_lshl_b32 {sP0A}, {sPWA}, 7"); e(f"s_add_u32 {sP0A}, {sP0A}, {sT2}")
    def p0_loads():
        e(f"s_add_u32 m0, {sM0}, {LDS_P0}"); e(f"s_add_u32 {sT2}, {sP0A}, {8*1280-1024}")
        if cfg.xp0ld: return
        g.vmem(f"buffer_load_dwordx4 {vP0}, {SW2}, {sP0A} offen lds", "p0")
        g.vmem(f"buffer_load_dwordx4 {vP0}, {SW2}, {sT2} offen offset:1024 lds", "p0")
    g.stamp("prew")
    e("s_waitcnt lgkmcnt(0)")
    for srd, p in ((16, 4), (36, 6), (20, 8)): e(f"s_mov_b64 s[{srd}:{srd+1}], s[{p}:{p+1}]")
    e("s_mov_b64 s[24:25], s[12:13]")
    e(f"s_or_b32 {sT2}, s2, {sW}"); e("s_cbranch_scc1 Lnn")
    e("s_bitset1_b32 s101, 31"); e(f"v_mov_b32 v{NON}, s100"); e(f"v_mov_b32 v{NON+1}, s101")
    e("s_mov_b64 exec, 1"); e(f"buffer_store_dwordx2 {vr(NON,2)}, off, {SDBG}, 0 sc1"); e("s_mov_b64 exec, -1")
    g.label("Lnn")
    g.stamp("srd")
    adv = [f"s_add_u32 {sKS}, {sKS}, 1", f"s_cmp_eq_u32 {sKS}, 10", f"s_cselect_b32 {sKS}, 0, {sKS}"]
    def advh(s):
        o = [f"s_add_u32 {sKS}, {sKS}, 1", f"s_sub_u32 s101, {sKS}, 5", f"s_cmp_eq_u32 {sKS}, s100", f"s_cselect_b32 {sKS}, s101, {sKS}"]
        if s == 4: o += [f"s_sub_u32 {sKS}, {sKS}, s100", "s_sub_u32 s100, 15, s100", f"s_add_u32 {sKS}, {sKS}, s100"]
        return o
    if cfg.r1 == 10: e(f"s_mov_b32 s100, {sOUT}")
    def wchunk(base, tag, c, pre):
        return [(pre + [f"s_add_u32 m0, {sM0}, {base}", "s_nop 0"], f"buffer_load_dwordx4 {vW[0]}, {SW1}, s{KW+c} offen lds", tag),
                ([], f"buffer_load_dwordx4 {vW[1]}, {SW1}, s{KW+c} offen offset:1024 lds", tag)]
    nextpass = [f"s_add_u32 {sTD}, {sTD}, 1", f"s_cmp_eq_u32 {sTD}, 3", f"s_cselect_b32 {sTD}, 0, {sTD}", f"s_cselect_b32 {sT3}, -2, 1", f"s_lshl_b32 {sT3}, {sT3}, 7",
                f"v_add_u32 {vW[0]}, {sT3}, {vW[0]}", f"v_add_u32 {vW[1]}, {sT3}, {vW[1]}"]
    def dma_groups(s):
        slot = (s % R) * SLOT; tag = f"st{s}"
        if s < 10:
            return [([f"s_lshl_b32 {sDA}, {sKS}, 7", f"s_add_u32 m0, {sM0}, {slot}", f"s_add_u32 {sDA}, {sDA}, {sXB}"], f"buffer_load_dwordx4 {vX[0]}, {SX}, {sDA} offen lds", tag),
                    ([f"s_mul_i32 s{KW+s}, {sKS}, {64*3072}"], f"buffer_load_dwordx4 {vX[1]}, {SX}, {sDA} offen offset:1024 lds", tag)] + wchunk(slot + 8192, tag, s, adv if cfg.r1 != 10 else advh(s))
        c = 2 * ((s - 10) % 5)
        np_ = nextpass
        if cfg.trot == 2:
            new = f"s_xor_b32 {sT3}, {sTD}, 1" if s == 10 else f"s_mov_b32 {sT3}, 2"
            np_ = [new, f"s_sub_u32 {sTD}, {sT3}, {sTD}", f"s_lshl_b32 {sTD}, {sTD}, 7", f"v_add_u32 {vW[0]}, {sTD}, {vW[0]}", f"v_add_u32 {vW[1]}, {sTD}, {vW[1]}", f"s_mov_b32 {sTD}, {sT3}"]
        return wchunk(slot, tag, c, np_ if c == 0 else []) + wchunk(slot + 8192, tag, c + 1, [])
    def issue(gr):
        for t in gr[0]: e(t)
        g.vmem(gr[1], gr[2])
    NPRO = min(cfg.npro, LA)
    if cfg.xcold:
        e("s_mov_b64 s[32:33], s[14:15]"); e(f"s_mov_b32 s34, {WS_USED}"); e("s_mov_b32 s35, 0x00020000")
        e(f"s_lshl_b32 {sT2}, s2, 2"); e(f"s_add_u32 {sT2}, {sT2}, {sW}"); e(f"s_lshl_b32 {sT2}, {sT2}, 16"); e(f"s_add_u32 {sT2}, {sT2}, 0x4000000")
        e(f"v_lshlrev_b32 {vL16}, 4, {vL}")
        for i in range(cfg.xcold):
            e(f"buffer_load_dwordx4 v[80:83], {vL16}, {SWS}, {sT2} offen"); e(f"s_add_u32 {sT2}, {sT2}, 1024")
        e("s_waitcnt vmcnt(0)")
    if cfg.xhit:
        pass
    if cfg.p0first: p0_loads()
    for s in range(NPRO): [issue(gr) for gr in dma_groups(s)]
    g.stamp("iss")
    for srd, p, n in ((40, 10, 2621440), (32, 14, WS_USED)):
        e(f"s_mov_b64 s[{srd}:{srd+1}], s[{p}:{p+1}]"); e(f"s_mov_b32 s{srd+2}, {n}"); e(f"s_mov_b32 s{srd+3}, 0x00020000")
    if cfg.cpf:
        e("s_getpc_b64 s[100:101]"); e(f"s_lshl_b32 {sT2}, {sT1}, 2"); e(f"s_add_u32 {sT2}, {sT2}, {sW}"); e(f"s_lshl_b32 {sT2}, {sT2}, 7")
        e(f"s_min_u32 {sT2}, {sT2}, CODE_END_PF"); e(f"s_add_u32 s100, s100, {sT2}"); e("s_addc_u32 s101, s101, 0"); e("s_load_dword s101, s[100:101], 0")
        g.label("Lpc")
    part(cfg.p2, sB2, sJ2)
    if cfg.p0late: e(f"s_mov_b32 s100, {sP0A}")
    elif not cfg.p0first: p0_loads()
    e(f"s_mov_b32 {sT0}, {sHST}"); e(f"s_mov_b32 {sT1}, {sPWA}"); e(f"s_mov_b32 {sT3}, {sFH}")
    e(f"s_mul_i32 {sT2}, {sT0}, 43"); e(f"s_lshr_b32 {sT2}, {sT2}, 8")
    e(f"s_lshl_b32 {sFW}, {sT1}, 2"); e(f"s_add_u32 {sFW}, {sFW}, {sT2}"); e(f"s_lshl_b32 {sFW}, {sFW}, 5")
    e(f"s_mul_i32 {sT2}, {sT2}, 6"); e(f"s_sub_u32 {sT2}, {sT0}, {sT2}"); e(f"s_add_u32 {sFW}, {sFW}, {sT2}"); e(f"s_lshl_b32 {sFW}, {sFW}, 2")
    e(f"s_sub_u32 {sT2}, {sT3}, 200"); e(f"s_lshl_b32 {sT2}, {sT2}, 7"); e(f"s_cmp_lt_u32 {sT3}, 240"); e(f"s_cselect_b32 {sFW}, {sFW}, {sT2}")
    e(f"s_add_u32 {sFW}, {sFW}, {FW_OFF}")
    e(f"s_lshl_b32 {sT1}, {sT1}, 2"); e(f"s_add_u32 {sT1}, {sT1}, {sW}")
    e(f"s_mul_i32 {sT2}, {sT1}, 52"); e(f"s_lshr_b32 {sT2}, {sT2}, 8")
    e(f"s_mul_i32 {sP0A}, {sT2}, 235"); e(f"s_add_u32 {sP0A}, {sP0A}, {sT1}")
    e(f"s_mul_i32 {sT2}, {sT0}, 10"); e(f"s_add_u32 {sP0A}, {sP0A}, {sT2}")
    e(f"s_lshl_b32 {sP0A}, {sP0A}, 10"); e(f"s_add_u32 {sP0A}, {sP0A}, {W2P_OFF}")
    e(f"s_lshr_b32 {sFH}, {sT3}, 1"); e(f"s_lshl_b32 {sFH}, {sFH}, 7"); e(f"s_and_b32 {sT2}, {sJ1}, 1"); e(f"s_lshl_b32 {sT2}, {sT2}, 3")
    e(f"s_add_u32 {sFH}, {sFH}, {sT2}"); e(f"s_add_u32 {sFH}, {sFH}, {FH_OFF}")
    e(f"v_lshlrev_b32 {vL16}, 4, {vL}")
    e(f"s_lshl_b32 {sOUT}, {sB2}, 2"); e(f"s_add_u32 {sOUT}, {sOUT}, {sW}"); e(f"s_mul_i32 {sOUT}, {sOUT}, {16*1280}")
    e(f"s_mul_i32 {sT2}, {sJ2}, 160"); e(f"s_add_u32 {sOUT}, {sOUT}, {sT2}")
    if cfg.warm:
        e("s_mov_b64 exec, 1")
        g.vmem(f"buffer_load_dword {vDUM}, off, {SOUT}, {sOUT}", "warm")
        e(f"s_lshl_b32 {sT2}, {sB1}, 18"); e(f"s_add_u32 {sT2}, {sT2}, {200<<10}")
        g.vmem(f"buffer_load_dword {vDUM}, off, {SWS}, {sT2}", "warm")
        e(f"s_mov_b32 {sT2}, {FH_OFF + 32768}")
        g.vmem(f"buffer_load_dword {vDUM}, off, {SWS}, {sT2}", "warm")
        if cfg.p1 != cfg.p2:
            e(f"s_lshl_b32 {sT2}, {sB2}, 18"); e(f"s_add_u32 {sT2}, {sT2}, {200<<10}")
            g.vmem(f"buffer_load_dword {vDUM}, off, {SWS}, {sT2}", "warm")
        e("s_mov_b64 exec, -1")
    e(f"s_and_b32 {sT0}, {sW}, 1"); e(f"s_lshr_b32 {sT1}, {sW}, 1")
    e(f"v_and_b32 {vT0}, 31, {vL}"); e(f"s_lshl_b32 {sT2}, {sT0}, 5"); e(f"v_add_u32 {vT0}, {sT2}, {vT0}"); e(f"v_lshlrev_b32 {vT0}, 7, {vT0}")
    e(f"v_bfe_u32 {vT1}, {vL}, 1, 3"); e(f"v_lshrrev_b32 {vT2}, 5, {vL}"); e(f"v_xor_b32 {vT1}, {vT1}, {vT2}")
    e(f"v_lshl_add_u32 v{vRX[0][0]}, {vT1}, 4, {vT0}")
    for q in range(1, 4): e(f"v_xor_b32 v{vRX[0][q]}, {32*q}, v{vRX[0][0]}")
    for q in range(4): e(f"v_add_u32 v{vRX[1][q]}, 0x10000, v{vRX[0][q]}")
    e(f"v_lshrrev_b32 {vT0}, 5, {vL}"); e(f"v_lshlrev_b32 {vT0}, 3, {vT0}"); e(f"v_bfe_u32 {vT1}, {vL}, 2, 2"); e(f"v_add_u32 {vT0}, {vT0}, {vT1}")
    e(f"v_lshlrev_b32 {vT0}, 7, {vT0}")
    e(f"v_bfe_u32 {vT1}, {vL}, 4, 1"); e(f"v_lshl_add_u32 {vT0}, {vT1}, 5, {vT0}")
    e(f"v_and_b32 {vT1}, 1, {vL}"); e(f"v_lshl_add_u32 {vT0}, {vT1}, 4, {vT0}")
    e(f"v_bfe_u32 {vT1}, {vL}, 1, 1"); e(f"v_lshl_add_u32 {vT0}, {vT1}, 3, {vT0}")
    e(f"v_bfe_u32 {vT1}, {vL}, 3, 1"); e(f"v_xor_b32 {vT1}, {sT1}, {vT1}"); e(f"v_lshl_add_u32 v{vRW[0]}, {vT1}, 6, {vT0}")
    e(f"v_add_u32 v{vRW[1]}, 0x10000, v{vRW[0]}")
    e(f"v_bfe_u32 {vT0}, {vL}, 4, 1"); e(f"v_mul_u32_u24 {vT0}, 49152, {vT0}"); e(f"v_and_b32 {vT1}, 15, {vL}"); e(f"v_lshl_add_u32 {vT0}, {vT1}, 4, {vT0}")
    e(f"v_lshrrev_b32 {vT1}, 5, {vL}"); e(f"v_lshl_add_u32 {vHST}, {vT1}, 8, {vT0}")
    e(f"s_lshl_b32 {sHST}, {sB1}, 8"); e(f"s_mul_i32 {sT2}, {sT0}, 96"); e(f"s_add_u32 {sHST}, {sHST}, {sT2}")
    e(f"s_mul_i32 {sT2}, {sJ1}, 6"); e(f"s_add_u32 {sHST}, {sHST}, {sT2}"); e(f"s_add_u32 {sHST}, {sHST}, {sT1}")
    e(f"s_lshl_b32 {sHST}, {sHST}, 10")
    e(f"v_lshrrev_b32 {vT0}, 4, {vL}"); e(f"v_lshlrev_b32 {vT0}, 3, {vT0}"); e(f"v_bfe_u32 {vT1}, {vL}, 2, 2"); e(f"v_add_u32 {vT0}, {vT0}, {vT1}")
    e(f"v_lshlrev_b32 {vT0}, 7, {vT0}"); e(f"v_and_b32 {vT1}, 3, {vL}"); e(f"v_lshl_add_u32 {vT0}, {vT1}, 3, {vT0}")
    e(f"s_lshl_b32 {sT2}, {sW}, 5"); e(f"s_add_u32 {sT2}, {sT2}, {LDS_P0}"); e(f"v_add_u32 {vP0R}, {sT2}, {vT0}")
    if not cfg.p0late:
        for s in range(NPRO, min(LA, cfg.npro2)): [issue(gr) for gr in dma_groups(s)]
    late_mark = len(g.L)
    e(f"s_mul_i32 {sPWA}, {sJ2}, 5"); e(f"s_lshr_b32 {sPWA}, {sPWA}, 2"); e(f"s_lshl_b32 {sPWA}, {sPWA}, 2"); e(f"s_add_u32 {sPWA}, {sPWA}, {sW}")
    e(f"s_lshl_b32 {sPWA}, {sPWA}, 7"); e(f"s_add_u32 {sPWA}, {sPWA}, {FW_OFF}")
    e(f"s_lshl_b32 {sPH}, {sB2}, 2"); e(f"s_add_u32 {sPH}, {sPH}, {sW}"); e(f"s_lshl_b32 {sPH}, {sPH}, 7"); e(f"s_add_u32 {sPH}, {sPH}, {FH_OFF}")
    for i in range(4):
        e(f"s_add_u32 {sT0}, {sW}, {1+i}"); e(f"s_and_b32 {sT0}, {sT0}, 3")
        if i < 3:
            e(f"s_mul_i32 {sT2}, {sT0}, {3*5120}"); e(f"s_add_u32 {sT2}, {sT2}, {i*5120}"); e(f"v_add_u32 {vRDW[i]}, {sT2}, {vL16}")
        e(f"s_lshl_b32 {sT1}, {sB2}, 8"); e(f"s_mul_i32 {sT2}, {sT0}, 48"); e(f"s_add_u32 {sT1}, {sT1}, {sT2}")
        e(f"s_mul_i32 {sT2}, {sW}, 12"); e(f"s_add_u32 {sT1}, {sT1}, {sT2}"); e(f"s_lshl_b32 {sT1}, {sT1}, 10")
        e(f"v_add_u32 {vH[i]}, {sT1}, {vL16}")
    e(f"s_mul_i32 {sT2}, {sW}, {3*5120}"); e(f"v_add_u32 {vRDR}, {sT2}, {vL16}")
    e(f"s_mul_i32 {sT2}, {sW}, 2816"); e(f"s_add_u32 {sT2}, {sT2}, {LDS_T}")
    e(f"v_and_b32 {vT0}, 15, {vL}"); e(f"v_mul_u32_u24 {vT0}, 176, {vT0}"); e(f"v_lshrrev_b32 {vT1}, 4, {vL}"); e(f"v_lshl_add_u32 {vT0}, {vT1}, 3, {vT0}")
    e(f"v_add_u32 {vTW}, {sT2}, {vT0}")
    vTRs = [vTR, vOUT, vDUM]
    for i in range(3):
        e(f"v_add_u32 {vT0}, {64*i}, {vL}"); e(f"v_mul_u32_u24 {vT1}, 205, {vT0}"); e(f"v_lshrrev_b32 {vT1}, 11, {vT1}")
        e(f"v_mul_u32_u24 {vT2}, 10, {vT1}"); e(f"v_sub_u32 {vT0}, {vT0}, {vT2}"); e(f"v_lshlrev_b32 {vT0}, 4, {vT0}")
        e(f"v_mul_u32_u24 {vT2}, 1280, {vT1}"); e(f"v_add_u32 {vOUT2[i]}, {vT2}, {vT0}")
        e(f"v_mul_u32_u24 {vT2}, 176, {vT1}"); e(f"v_add3_u32 v{42+i}, {vT2}, {vT0}, {sT2}")
    e(f"s_lshl_b32 {sT0}, {sJ2}, 2"); e(f"s_add_u32 {sT0}, {sT0}, {sW}"); e(f"s_mul_i32 {sT0}, {sT0}, {60*1024}"); e(f"s_add_u32 {sT0}, {sT0}, {W2P_OFF}")
    e(f"v_add_u32 {vW2A}, {sT0}, {vL16}"); e(f"v_add_u32 {vW2B}, 4096, {vW2A}")
    t0_of(sT0, sB2)
    if cfg.rk == 0: e(f"s_mov_b32 {sT1}, 0")
    elif cfg.rk == 1: e(f"s_and_b32 {sT1}, {sB2}, 1"); e(f"s_lshl_b32 {sT1}, {sT1}, 1")
    elif cfg.rk == 2: e(f"s_and_b32 {sT1}, {sB2}, 1"); e(f"s_lshl_b32 {sT1}, {sT1}, 1"); e(f"s_add_u32 {sT1}, {sT1}, {sJ2}")
    elif cfg.rk == 4: e(f"s_lshr_b32 {sT1}, {sB2}, 1")
    elif cfg.rk == 5: e(f"s_and_b32 {sT1}, {sB2}, 2")
    elif cfg.rk == 6: e(f"s_mov_b32 {sT1}, {sB2}")
    elif cfg.rk == 7: e(f"s_add_u32 {sT1}, {sB2}, {sJ2}")
    elif cfg.rk == 8: e(f"s_lshl_b32 {sT1}, {sJ2}, 1"); e(f"s_add_u32 {sT1}, {sT1}, {sB2}")
    elif cfg.rk == 3: e(f"s_add_u32 {sT1}, {sB2}, {sJ2}"); e(f"s_lshl_b32 {sT1}, {sT1}, 1")
    for kk in range(4):
        e(f"s_add_u32 {sT2}, {sT1}, {kk}"); e(f"s_and_b32 {sCNT}, {sT2}, 1"); e(f"s_bfe_u32 {sT2}, {sT2}, 0x10001"); e(f"s_mul_i32 {sT2}, {sT2}, 6")
        e(f"s_add_u32 {sT2}, {sT2}, {sCNT}"); e(f"s_lshl_b32 s{4+kk}, {sT2}, 10")
    for p in (2, 1, 0):
        if cfg.trot == 2:
            e(f"s_mov_b32 {sT2}, 2" if p == 2 else f"s_xor_b32 {sT2}, {sT0}, {p}"); e(f"s_lshl_b32 {sT2}, {sT2}, 11")
        else:
            e(f"s_add_u32 {sT2}, {sT0}, {p}"); e(f"s_sub_u32 {sCNT}, {sT2}, 3"); e(f"s_cmp_ge_u32 {sT2}, 3"); e(f"s_cselect_b32 {sT2}, {sCNT}, {sT2}"); e(f"s_lshl_b32 {sT2}, {sT2}, 11")
        for kk in range(4): e(f"s_add_u32 s{4+4*p+kk}, s{4+kk}, {sT2}")
    late_setup = []
    if cfg.late:
        late_setup = g.L[late_mark:]; del g.L[late_mark:]
    if cfg.p0late:
        for s in range(NPRO, min(LA, cfg.npro2)):
            if s == cfg.p0late:
                e(f"s_add_u32 m0, {sM0}, {LDS_P0}"); e(f"s_add_u32 {sT2}, s100, {8*1280-1024}")
                g.vmem(f"buffer_load_dwordx4 {vP0}, {SW2}, s100 offen lds", "p0")
                g.vmem(f"buffer_load_dwordx4 {vP0}, {SW2}, {sT2} offen offset:1024 lds", "p0")
            [issue(gr) for gr in dma_groups(s)]
    pend = []
    for s in range(max(NPRO, min(LA, cfg.npro2)), LA): pend.extend(dma_groups(s))

    g.stamp("setup")
    def flag_store(name, sreg, off, wide):
        e(f"s_cmp_lg_u32 {sW}, 0"); e(f"s_cbranch_scc1 L{name}")
        e("s_mov_b64 exec, 1")
        if wide: e(f"buffer_store_dwordx2 {vr(NON,2)}, off, {SWS}, {sreg} offset:{off} sc1")
        else: e(f"buffer_store_dword v{NON}, off, {SWS}, {sreg} sc1")
        e("s_mov_b64 exec, -1")
        g.label(f"L{name}")
    ld_non = f"buffer_load_dwordx2 {vr(NON,2)}, off, {SDBG}, 0 sc1"; cmp_non = f"v_cmp_eq_u32 vcc, 0, v{NON+1}"
    def spin_non():
        e(cmp_non); e(f"s_mov_b32 {sCNT}, 0"); e("s_nop 0"); e(f"s_cbranch_vccz Lnon_ok")
        g.label("Lnon")
        e(f"s_sleep {cfg.sleep}"); e(ld_non); e("s_waitcnt vmcnt(0)"); e(cmp_non)
        e(f"s_add_u32 {sCNT}, {sCNT}, 1"); e(f"s_cmp_gt_u32 {sCNT}, 200000"); e(f"s_cbranch_scc1 Lnon_ok")
        e(f"s_cbranch_vccnz Lnon")
        g.label("Lnon_ok")
        e(f"v_readfirstlane_b32 s70, v{NON}"); e(f"v_readfirstlane_b32 s71, v{NON+1}")
    ld_pw = f"s_load_dwordx8 s[16:23], {WSB}, {sPWA} glc\n    s_load_dwordx8 s[24:31], {WSB}, {sPWA} offset:512 glc"
    def s_check(name, reload, test):
        g.wait_lg0(); e(f"s_mov_b32 {sCNT}, 0")
        g.label(f"L{name}")
        test(); e(f"s_cbranch_scc1 L{name}_ok")
        e(f"s_sleep {cfg.sleep}"); e(reload); e("s_waitcnt lgkmcnt(0)")
        e(f"s_add_u32 {sCNT}, {sCNT}, 1"); e(f"s_cmp_lt_u32 {sCNT}, 400000"); e(f"s_cbranch_scc1 L{name}")
        g.label(f"L{name}_ok")
    def test_pw():
        e("s_xor_b64 s[16:17], s[16:17], s[18:19]"); e("s_xor_b64 s[18:19], s[18:19], s[20:21]"); e("s_xor_b64 s[22:23], s[20:21], s[24:25]")
        e("s_xor_b64 s[24:25], s[24:25], s[26:27]"); e("s_xor_b64 s[26:27], s[26:27], s[28:29]"); e("s_xor_b32 s30, s28, s29"); e("s_xor_b32 s31, s28, s70")
        e("s_or_b64 s[16:17], s[16:17], s[18:19]"); e("s_or_b64 s[22:23], s[22:23], s[24:25]"); e("s_or_b64 s[26:27], s[26:27], s[30:31]")
        e("s_or_b64 s[16:17], s[16:17], s[22:23]"); e("s_or_b64 s[16:17], s[16:17], s[26:27]"); e("s_cmp_eq_u64 s[16:17], 0")
    def test_ph():
        e(f"s_xor_b64 s[16:17], s[16:17], {sNON}"); e(f"s_xor_b64 s[18:19], s[18:19], {sNON}"); e("s_or_b64 s[16:17], s[16:17], s[18:19]"); e("s_cmp_eq_u64 s[16:17], 0")
    ld_ph = f"s_load_dwordx4 s[16:19], {WSB}, {sPH} glc"

    def wblk(s):
        out = []
        for t in range(5):
            a = 4 * (5 * s + t)
            pre = [f"s_mul_i32 {sXB}, s{4+s}, 5"] if t == 0 else []
            if t < 4: out.append(("W", pre, f"buffer_load_dwordx4 a[{a}:{a+3}], {vW2A}, {SWS}, {sXB} offen offset:{1024*t} sc1", f"w{s}"))
            else: out.append(("W", pre, f"buffer_load_dwordx4 a[{a}:{a+3}], {vW2B}, {SWS}, {sXB} offen sc1", f"w{s}"))
        return out
    stream = []; groups = []
    KT = cfg.kt; OD = cfg.od
    nw = 0
    for s in range(KT):
        ld = round(cfg.lead + (cfg.leadz - cfg.lead) * s / max(1, KT - 1))
        while nw < min(12, s + ld): stream += wblk(nw); nw += 1
        for i in range(4):
            if not (i == 3 and s >= cfg.ol): stream.append(("H", s, i))
            if i < 3 or s < OD: groups.append((s, i))
    while nw < 12: stream += wblk(nw); nw += 1
    for i in range(4):
        if i == 3:
            for s in range(OD, KT): groups.append((s, 3))
            for s in range(cfg.ol, KT): stream.append(("H", s, 3))
        for s in range(KT, 12): stream.append(("H", s, i)); groups.append((s, i))
    if cfg.order:
        stream = []
        for tok in cfg.order.split(","):
            a_, b_ = (tok[1:].split("-") + [tok[1:]])[:2]
            for s in range(int(a_), int(b_) + 1):
                if tok[0] == "W": stream += wblk(s)
                else: stream += [("H", s, i) for i in range(4) if not (i == 3 and s >= cfg.ol)]
        for s in range(cfg.ol, 12): stream.append(("H", s, 3))
    wpos = {}
    for p in (2, 1, 0):
        idx = stream.index(("H", 4 * p, 0))
        stream.insert(idx, ("C", p))
        stream.insert(max(0, idx - (cfg.pd if p else cfg.pd0)), ("P", p))
    hbuf = {}; hcount = [0]
    def stream_issue(allow_h=True):
        it = stream[0]
        if it[0] == "W":
            stream.pop(0)
            for t in it[1]: e(t)
            g.vmem(it[2], it[3]); return True
        if it[0] == "P" and not allow_h and cfg.holdp:
            if len(stream) > 1 and stream[1][0] == "W":
                stream[0], stream[1] = stream[1], stream[0]
                return stream_issue(allow_h)
            return False
        if it[0] == "P":
            stream.pop(0)
            if it[1]: e(f"s_add_u32 {sPH}, {sPH}, 16")
            e(ld_ph); g.lgmax = 13
            return stream_issue(allow_h)
        if not allow_h: return False
        if it[0] == "C":
            stream.pop(0); g.stamp(f"c{it[1]}a"); s_check(f"ph{it[1]}", ld_ph, test_ph); g.stamp(f"c{it[1]}b"); return stream_issue()
        _, s, i = stream.pop(0)
        while hcount[0] % NHB in hbuf.values(): hcount[0] += 1
        b = hcount[0] % NHB; hcount[0] += 1
        hbuf[(s, i)] = b
        g.vmem(f"buffer_load_dwordx4 {vr(HB+4*b,4)}, {vH[i]}, {SWS}, s{4+s} offen sc1", f"h{s}_{i}")
        return True

    NSTEP = 120
    def stage_of(n): return n // 4 if n < 40 else 10 + (n - 40) // 8
    def first_step(s): return 4 * s if s < 10 else 40 + 8 * (s - 10)
    def last_step(s): return first_step(s + 1) - 1
    def DD(n): return cfg.d0 if n < 40 else cfg.d1
    def reads(n):
        s = stage_of(n); slot = s % R; hi = slot >> 2; base = (slot & 3) * SLOT
        q = n % 4; out = []
        if n < 40:
            out.append(f"ds_read_b128 {xreg(n)}, v{vRX[hi][q]} offset:{base}"); wb = base + 8192
        else: wb = base + 8192 * (((n - 40) % 8) // 4)
        for half in range(2):
            out.append(f"ds_read_b64_tr_b16 {vr(WF+4*(n%8)+2*half,2)}, v{vRW[hi]} offset:{wb+(16*q+4*half)*128}")
        return out
    w2_ok = [False]; early = [cfg.n0]; done_step = [-1]; flagged = set(); issued_tags = set()
    def barrier(s):
        tags = [f"st{s}"]
        if s == cfg.p0s: tags.append("p0")
        if s == cfg.flagw: tags += ["p0st"]
        for p in (0, 1):
            if s == cfg.fh[p]: tags.append(f"hst{p}")
        while pend and int(pend[0][2][2:]) <= s: issue(pend.pop(0))
        g.wait_vm(*tags)
        e("s_barrier")
        g.stamp(f"b{s}")
        if s == cfg.p0s:
            for kk in range(2):
                for half in range(2): g.lds(f"ds_read_b64_tr_b16 {vr(ACC1+16+4*kk+2*half,2)}, {vP0R} offset:{half*512+kk*4096}", "p0r")
            e(f"s_add_u32 {sT0}, {sP0A}, 5120")
            g.wait_lg("p0r")
            if not cfg.xp0st:
                g.vmem(f"buffer_store_dwordx4 {vr(ACC1+16,4)}, {vL16}, {SWS}, {sP0A} offen sc1", "p0st")
                g.vmem(f"buffer_store_dwordx4 {vr(ACC1+20,4)}, {vL16}, {SWS}, {sT0} offen sc1", "p0st")
        if s == cfg.nons: e(f"s_load_dwordx2 {sNON}, s[24:25], 0"); g.lgmax = 13
        if s == cfg.nons + 2:
            s_check("non", f"s_load_dwordx2 {sNON}, s[24:25], 0 glc", lambda: e("s_cmp_lg_u32 s71, 0")); g.lgmax = 15
            e(f"v_mov_b32 v{NON}, s70"); e(f"v_mov_b32 v{NON+1}, s71")
        if s == cfg.flagw: assert cfg.nons + 2 <= s; flag_store("nf1", sFW, 0, False)
        if s == cfg.pollw: assert not any(int(x[2][2:]) < 10 for x in pend) and s + LA > 10 and s > cfg.flagw; e(ld_pw.replace(' glc', '') if cfg.pwc else ld_pw); g.lgmax = 11
        if s == cfg.pollw + cfg.pgap:
            g.stamp("pwa"); s_check("pw", ld_pw, test_pw); w2_ok[0] = True; g.lgmax = 15; g.stamp("pwb")
        for p in (0, 1):
            if s == cfg.fh[p]: assert f"hst{p}" in issued_tags; flag_store(f"nh{p}", sFH, 16 * p, True); flagged.add(p)
        ns = s + LA
        if ns < NST:
            old = ns - R
            assert old < 0 or last_step(old) <= done_step[0], (s, old, done_step[0])
            pend.extend(dma_groups(ns))
    def slot_issue():
        if pend: issue(pend.pop(0))
        elif w2_ok[0] and early[0] > 0 and stream_issue(allow_h=False): early[0] -= 1
    def epilogue_ops(p):
        a = ACC1 + 16 * (p & 1); ops = []
        for i in range(8): ops.append(("v", f"v_cvt_pk_bf16_f32 v{a+i}, v{a+2*i}, v{a+2*i+1}"))
        for i in range(8): ops.append(("v", f"v_pk_max_i16 v{a+i}, v{a+i}, 0"))
        ops.append(("v", f"s_lshl_b32 {sT1}, {sTP}, 11")); ops.append(("v", f"s_add_u32 {sT1}, {sT1}, {sHST}"))
        for c in range(2): ops.append(("m", f"buffer_store_dwordx4 {vr(a+4*c,4)}, {vHST}, {SWS}, {sT1} offen offset:{c*512} sc1", f"hst{p}"))
        if cfg.trot == 2: ops += [("v", f"s_xor_b32 {sTP}, {sTP}, 1" if p == 0 else f"s_mov_b32 {sTP}, 2")]
        else: ops += [("v", f"s_add_u32 {sTP}, {sTP}, 1"), ("v", f"s_cmp_eq_u32 {sTP}, 3\n    s_cselect_b32 {sTP}, 0, {sTP}")]
        return ops
    def run_ops(ops, k):
        for _ in range(k):
            if not ops: return
            o = ops.pop(0)
            if o[0] == "v": e(o[1])
            else: g.vmem(o[1], o[2]); issued_tags.add(o[2])
    nread = [0]
    def issue_reads_upto(m):
        while nread[0] <= min(m, NSTEP - 1):
            n = nread[0]
            assert n - 8 <= done_step[0]
            if n == first_step(stage_of(n)): barrier(stage_of(n))
            for t in reads(n): g.lds(t, f"r{n}")
            nread[0] += 1
    issue_reads_upto(cfg.d0 - 1)
    if cfg.late == 1:
        for _ in range(cfg.lateq): slot_issue()
        g.L.extend(late_setup); late_setup = []
    ep = []
    for n in range(NSTEP):
        p = n // 40
        if n < 40 or not cfg.w2: g.wait_lg(f"r{n}")
        elif n % 2 == 0: g.wait_lg(f"r{n}", f"r{n+1}")
        a = vr(ACC1 + 16 * (p & 1), 16)
        if cfg.fake16:
            ab = ACC1 + 16 * (p & 1) + 8 * (n & 1)
            z = n % 40 < 2
            e(f"v_mfma_f32_16x16x32_bf16 {vr(ab,4)}, {vr(WF+4*(n%8),4)}, {xreg((n&~1)%40)}, {'0' if z else vr(ab,4)}")
            mid16 = f"v_mfma_f32_16x16x32_bf16 {vr(ab+4,4)}, {vr(WF+4*(n%8),4)}, {xreg((n|1)%40)}, {'0' if z else vr(ab+4,4)}"
        else:
            e(f"v_mfma_f32_32x32x16_bf16 {a}, {vr(WF+4*(n%8),4)}, {xreg(n%40)}, {'0' if n % 40 == 0 else a}")
        done_step[0] = n
        tgt = min(n + DD(n + 1), nread[0] + 1)
        while len(g.lg) + sum(len(reads(k)) for k in range(nread[0], min(tgt, NSTEP - 1) + 1)) > g.lgmax: tgt -= 1
        tgt = max(tgt, min(n + 2, NSTEP - 1))
        issue_reads_upto(tgt)
        if cfg.fake16: e(mid16)
        if n < 40:
            slot_issue()
            if len(pend) > 4: slot_issue()
        elif n % 2 == 1 or len(pend) > 4: slot_issue()
        if n % 40 == 3 and p > 0: ep = epilogue_ops(p - 1)
        run_ops(ep, cfg.epr)
        if cfg.late > 1 and n == cfg.late: g.L.extend(late_setup); late_setup = []
    g.stamp("p1end")
    assert not pend and w2_ok[0]
    if stream[0][0] == "P": stream_issue()
    for _ in range(2): stream_issue(allow_h=False)
    e("s_nop 7"); e("s_nop 3")
    ep = epilogue_ops(2); run_ops(ep, 100)
    pos = [0]; hpos = {}
    def emit_group(s, i, extra):
        acc = ACC2 + 20 * i; b = hbuf[(s, i)]
        g.wait_vm(f"h{s}_{i}", f"w{s}")
        for t in range(5):
            a = 4 * (5 * s + t)
            cc = "0" if s == 0 else vr(acc+4*t,4)
            e(f"v_mfma_f32_16x16x32_bf16 {vr(acc+4*t,4)}, a[{a}:{a+3}], {vr(HB+4*b,4)}, {cc}")
            for x in extra[t]: x()
    nafter = 0; first = True; lastdone = [None]; st = [0]
    while stream or groups:
        if stream:
            stream_issue(); pos[0] += 1; nafter += 1
            if pos[0] % 6 == 0: g.stamp(f"q{pos[0]}")
            for k in hbuf:
                if k not in hpos: hpos[k] = pos[0]
            if g.vm and g.vm[-1].startswith("w"): wpos[int(g.vm[-1][1:])] = pos[0]
            for p, nn in ((1, cfg.n1a), (2, cfg.n1)):
                if p not in flagged and nafter >= nn:
                    g.wait_vm(f"hst{p}"); g.stamp(f"hst{p}"); e("s_barrier"); flag_store(f"nh{p}", sFH, 16 * p, True); flagged.add(p)
        if groups and groups[0] in hpos and (not stream or max(hpos[groups[0]], wpos.get(groups[0][0], -99)) <= pos[0] - cfg.depth):
            s, i = groups[0]
            extra = [[] for _ in range(5)]
            W = lambda t, ii: (lambda: g.lds(f"ds_write_b128 {vRDW[ii]}, {vr(ACC2+20*ii+4*t,4)} offset:{1024*t}", "rw"))
            Rd = lambda k, u: (lambda: g.lds(f"ds_read_b128 {vr(ACC2+20*k+4*u,4)}, {vRDR} offset:{5120*k+1024*u}", f"rr{k}"))
            A = lambda r, k: (lambda: e(f"v_add_f32 v{ACC2+r}, v{ACC2+r}, v{ACC2+20*k+r}"))
            left = len(groups)
            nown = 12 - OD
            if lastdone[0] is not None:
                ii = lastdone[0]; lastdone[0] = None
                for t in range(5): extra[min(4, t + 3)].append(W(t, ii))
                if ii == 2: st[0] = 1
            elif st[0] == 1:
                extra[3].append(lambda: (g.wait_lg0(), e("s_barrier")))
                for q in range(15): extra[3 + (q >= 7)].append(Rd(q // 5, q % 5))
                st[0] = 2
            elif st[0] == 2 and left == 2:
                extra[1].append(lambda: g.wait_lg("rr1"))
                for r in range(20): extra[1 + r // 5].append(A(r, 1))
                st[0] = 3
            elif st[0] == 3:
                extra[0].append(lambda: g.wait_lg0())
                for r in range(20): extra[r // 4].append(A(r, 2))
                st[0] = 4
            if s == 11 and i < 3: lastdone[0] = i
            emit_group(s, i, extra)
            groups.pop(0); del hbuf[(s, i)]
            if first: g.stamp("g0"); first = False
            if not stream and len(groups) % 3 == 0: g.stamp(f"G{len(groups)}")
    assert flagged == {0, 1, 2} and st[0] == 4, st
    g.stamp("mfend")
    acc = ACC2 + 60; PR = ACC2
    g.wait_lg0()
    for t in range(5):
        if True:
            if t == 0: e("s_nop 3")
            for r in (0, 2): e(f"v_pk_add_f32 {vr(PR+4*t+r,2)}, {vr(PR+4*t+r,2)}, {vr(acc+4*t+r,2)}")
        else:
            for r in range(4): e(f"v_add_f32 v{PR+40+4*t+r}, v{PR+40+4*t+r}, v{acc+4*t+r}"); e(f"v_add_f32 v{PR+4*t+r}, v{PR+4*t+r}, v{PR+40+4*t+r}")
        e(f"v_cvt_pk_bf16_f32 v{PR+20+2*t}, v{PR+4*t}, v{PR+4*t+1}"); e(f"v_cvt_pk_bf16_f32 v{PR+21+2*t}, v{PR+4*t+2}, v{PR+4*t+3}")
        e(f"ds_write_b64 {vTW}, {vr(PR+20+2*t,2)} offset:{32*t}")
    e("s_waitcnt lgkmcnt(0)")
    for i in range(3): e(f"ds_read_b128 {vr(PR+40+4*i,4)}, v{42+i}")
    for i in range(3):
        e(f"s_waitcnt lgkmcnt({2-i})")
        if i == 2: e("s_mov_b32 exec_hi, 0")
        e(f"buffer_store_dwordx4 {vr(PR+40+4*i,4)}, {vOUT2[i]}, {SOUT}, {sOUT} offen {cfg.outsc}")
    if cfg.prof:
        e("s_waitcnt vmcnt(0)"); g.stamp("end"); e("s_memrealtime s[74:75]"); e("s_waitcnt lgkmcnt(0)")
        e(f"s_lshl_b32 {sT0}, s2, 2"); e(f"s_add_u32 {sT0}, {sT0}, {sW}"); e(f"s_lshl_b32 {sT0}, {sT0}, 7"); e(f"s_add_u32 {sT0}, {sT0}, {PROF_OFF}")
        if cfg.prof == 2:
            for k in range(max(0, g.nstamp - 4), g.nstamp): e(f"v_writelane_b32 v47, s{76+2*(k%8)}, {k}")
            e("s_mov_b64 exec, -1"); e(f"s_lshl_b32 {sT1}, s2, 2"); e(f"s_add_u32 {sT1}, {sT1}, {sW}"); e(f"s_lshl_b32 {sT1}, {sT1}, 8"); e(f"s_add_u32 {sT1}, {sT1}, {PROF_OFF + 0x100000}")
            e(f"v_lshlrev_b32 v24, 2, {vL}"); e(f"buffer_store_dword v47, v24, {SWS}, {sT1} offen"); e("s_nop 1")
            g.L.append("; STAMPS " + " ".join(g.names)); g.nstamp = 0
        e("s_mov_b64 exec, 1")
        regs = ["s72", "s74"] + [f"s{76+2*i}" for i in range(g.nstamp)]
        for i, r in enumerate(regs):
            e(f"v_mov_b32 v24, {r}"); e(f"buffer_store_dword v24, off, {SWS}, {sT0} offset:{4*i}"); e("s_nop 1")
    if cfg.probe:
        e("s_waitcnt vmcnt(0)"); g.stamp("end"); e("s_mov_b64 exec, -1"); e("s_waitcnt lgkmcnt(0)")
        e("s_add_u32 s80, s70, 3000" if cfg.probe == "non" else "s_add_u32 s80, s78, 3000")
        g.label("Lpr")
        for i in range(4): e(f"buffer_load_dwordx4 v[80:83], {vW2A}, {SWS}, s{4+i} offen")
        e("s_memrealtime s[82:83]"); e("s_waitcnt vmcnt(0) lgkmcnt(0)"); e("s_sub_u32 s84, s80, s82"); e("s_cmp_gt_i32 s84, 0"); e("s_cbranch_scc1 Lpr")
    if cfg.delay:
        e(f"s_mov_b32 {sCNT}, 0"); g.label("Ldel"); e("s_nop 15"); e("s_nop 15"); e("s_nop 15"); e("s_nop 15"); e(f"s_add_u32 {sCNT}, {sCNT}, 1"); e(f"s_cmp_lt_u32 {sCNT}, {cfg.delay}"); e("s_cbranch_scc1 Ldel")
    if cfg.xhit:
        e("s_mov_b64 exec, -1"); e(f"s_mov_b32 {sCNT}, 0"); g.label("Lxh")
        for i in range(12): e(f"buffer_load_dwordx4 v[80:83], {vW2A}, {SWS}, s{4+i} offen"); e(f"buffer_load_dwordx4 v[80:83], {vH[i%4]}, {SWS}, s{4+i} offen"); e(f"buffer_load_dwordx4 v[80:83], {vH[(i+1)%4]}, {SWS}, s{4+i} offen")
        e("s_waitcnt vmcnt(12)"); e(f"s_add_u32 {sCNT}, {sCNT}, 1"); e(f"s_cmp_lt_u32 {sCNT}, {cfg.xhit}"); e("s_cbranch_scc1 Lxh")
        e("s_waitcnt vmcnt(0)")
    g.label("Lend")
    body = "\n".join(g.L)
    pf = ".set CODE_END_PF, Lend - Lpc\n" if cfg.cpf else ""
    return f"""{HDR}; @launch grid=(256,1,1) block=(256,1,1) lds={lds_bytes}
.amdgcn_target "amdgcn-amd-amdhsa--gfx950"
.text
.globl {KN}
.p2align 8
.type {KN},@function
{DOC}{KN}:
{body}
    s_endpgm
{pf}.section .rodata,"a"
.p2align 6
.amdhsa_kernel {KN}
  .amdhsa_next_free_vgpr 512
  .amdhsa_next_free_sgpr 102
  .amdhsa_accum_offset 256
  .amdhsa_group_segment_fixed_size 0
  .amdhsa_kernarg_size 48
  .amdhsa_user_sgpr_count 2
  .amdhsa_user_sgpr_kernarg_segment_ptr 1
  .amdhsa_system_sgpr_workgroup_id_x 1
.end_amdhsa_kernel
"""

def parser():
    ap = argparse.ArgumentParser()
    ap.add_argument("-o", default="k.s"); ap.add_argument("--prof", type=int, default=0)
    ap.add_argument("--p1", default="B"); ap.add_argument("--p2", default="B")
    for name, d in (("r1", 9), ("trot", 1), ("tsh", 3), ("rk", 6), ("LA", 4), ("npro", 3), ("npro2", 3), ("p0first", 0), ("p0s", 3), ("flagw", 7), ("pollw", 14), ("pgap", 2),
                    ("sleep", 4), ("n0", 20), ("n1a", 12), ("n1", 24), ("lead", 6), ("own0", 4), ("pd", 8), ("pd0", 12), ("depth", 12), ("d0", 3), ("d1", 6),
                    ("fh0", 16), ("fh1", 99), ("cpf", 0), ("warm", 0), ("w2", 1), ("both", 0), ("nons", 3), ("ol", 8), ("swapab", 0), ("late", 0), ("lateq", 4), ("p0late", 0), ("epr", 2), ("kt", 12), ("od", 8), ("leadz", 1), ("hx", 0), ("fake16", 0), ("xcold", 0), ("xhit", 0), ("delay", 0), ("holdp", 1), ("pwc", 1), ("tail2", 1), ("nocomp", 0), ("xp0st", 0), ("xp0ld", 0)):
        ap.add_argument("--" + name, type=int, default=d)
    ap.add_argument("--outsc", default=""); ap.add_argument("--probe", default=""); ap.add_argument("--order", default="")
    ap.add_argument("--stamps", default="start,b0,b5,b10,b15,p1end,c0b,g0,c1b,c2b,mfend,end")
    return ap
if __name__ == "__main__":
    cfg = parser().parse_args()
    cfg.fh = [cfg.fh0, cfg.fh1]; cfg.stamps = cfg.stamps.split(",")
    open(cfg.o, "w").write(gen(cfg))
```
